```python
import torch

def _softmax(x, axis=-1):
    return torch.softmax(x, dim=axis)

def _gelu(x):
    return torch.nn.functional.gelu(x, approximate='tanh')

def _silu(x):
    return torch.nn.functional.silu(x)

def _sigmoid(x):
    return torch.sigmoid(x)

def _layernorm(x, axis=-1, eps=1e-05):
    m = x.mean(dim=axis, keepdim=True)
    v = x.var(dim=axis, keepdim=True, unbiased=False)
    return (x - m) / torch.sqrt(v + eps)

def _scatter_add(tgt, idx, src, axis=0):
    return tgt.clone().index_add_(axis, idx, src)

def _segment_sum(src, seg, n):
    out = torch.zeros((n,) + src.shape[1:], dtype=src.dtype)
    return out.index_add_(0, seg, src)

def _pad(x, pw):
    flat = tuple((v for pair in reversed(pw) for v in pair))
    return torch.nn.functional.pad(x, flat)
kernel_name = 'standalone__autoregressive_conv_wavenet__speech'

def setup_inputs():

    _w = lambda a: (lambda t: t.to(torch.bfloat16) if t.is_floating_point() else t)(torch.as_tensor(a))
    B, T, D, K = (2, 4000, 256, 31)
    return {'x': _w((lambda *s: torch.randn(*s, dtype=torch.bfloat16) * 0.1)(B, T, D)), 'w': _w((lambda *s: torch.randn(*s, dtype=torch.bfloat16) * 0.1)(K, D, 2 * D)), 'w_o': _w((lambda *s: torch.randn(*s, dtype=torch.bfloat16) * 0.05)(D, D))}

def reference(x, w, w_o):
    B, T, D = x.shape
    K = w.shape[0]
    dil = 2
    pad = (K - 1) * dil
    xp = _pad(x, ((0, 0), (pad, 0), (0, 0)))
    h = torch.einsum('btc,cd->btd', xp[:, pad:pad + T, :], w[0])
    for i in range(1, K):
        off = pad - i * dil
        h = h + torch.einsum('btc,cd->btd', xp[:, off:off + T, :], w[i])
    f = h[..., :D].clone()
    g = h[..., D:].clone()
    z = torch.tanh(f) * _sigmoid(g)
    return z @ w_o
```

```python
import sys, argparse

MAIN = "standalone__autoregressive_conv_wavenet__speech_kernel"
ST2 = "wavenet_stage2_kernel"

XROWG = 19
XARR = 152 * 64
XBUF = 3 * XARR
WRING = 2 * XBUF
WSLOT = 8192
NSLOT = 8
LDS_MAIN = WRING + NSLOT * WSLOT
HPITCH = 144
STAMP_OFF = 16 << 20

class Asm:
    def __init__(self): self.lines = []
    def __call__(self, s): self.lines.append("    " + s)
    def label(self, s): self.lines.append(s + ":")
    def raw(self, s): self.lines.append(s)
    def text(self): return "\n".join(self.lines) + "\n"

def vr(b, n=4): return f"v[{b}:{b+n-1}]"

V_XA0, V_XA1, V_XA2, V_WA = 1, 2, 3, 4
TMP = [8, 12]
WSET = {0: 16, 1: 28, 2: 232}
WIN = {"D1": 40, "D2": 72, "X0": 104}
ARR = {"D1": 0, "D2": 1, "X0": 2}
ACC = {"Q1": 136, "Q2": 168, "Q0": 200}
NV_MAIN = 244

def wset(a):
    a %= 16
    return WSET[2] if a == 0 else WSET[a & 1]

class LdsTracker:
    def __init__(self): self.out = []
    def issue(self, regs): self.out.append(set(regs))
    def need(self, regs):
        regs = set(regs); p = -1
        for i, d in enumerate(self.out):
            if d & regs: p = i
        if p < 0: return None
        n = len(self.out) - p - 1
        n = min(n, 15)
        self.out = self.out[len(self.out) - n:] if n > 0 else []
        return n
    def waitall(self): self.out = []

def rng(b, n): return list(range(b, b + n))

def x_read(arr, idx0, dst, nxt=False):
    q0, mp = idx0 >> 3, idx0 & 7
    areg = V_XA2 if nxt else (V_XA0 if q0 == 0 else V_XA1)
    if nxt: assert q0 == 2
    else: assert q0 in (0, 1)
    off = ARR[arr] * XARR + (mp * XROWG + q0) * 64
    return ("lds", f"ds_read_b128 {vr(dst)}, v{areg} offset:{off}", rng(dst, 4), [])

def w_read(slot, tile, dst):
    off = (slot % NSLOT) * WSLOT + tile * 4096
    return [("lds", f"ds_read_b64_tr_b16 {vr(dst,2)}, v{V_WA} offset:{off}", rng(dst, 2), []),
            ("lds", f"ds_read_b64_tr_b16 {vr(dst+2,2)}, v{V_WA} offset:{off+512}", rng(dst + 2, 2), [])]

def ws_valu(base, e64=False):
    ops = []
    sfx = "_e64" if e64 else ""
    for d in range(4):
        o, e, s = base + d, base + 4 + d, base + 8 + d
        t = TMP[d & 1]
        ops += [("valu", f"v_lshlrev_b32{sfx} v{t}, 16, v{o}", [], [o]),
                ("valu", f"v_lshlrev_b32{sfx} v{t+1}, 16, v{e}", [], [e]),
                ("valu", f"v_and_b32{sfx} v{t+2}, s36, v{o}", [], [o]),
                ("valu", f"v_and_b32{sfx} v{t+3}, s36, v{e}", [], [e]),
                ("valu", f"v_add_f32{sfx} v{t}, v{t}, v{t+1}", [], []),
                ("valu", f"v_add_f32{sfx} v{t+2}, v{t+2}, v{t+3}", [], []),
                ("valu", f"v_cvt_pk_bf16_f32 v{s}, v{t}, v{t+2}", [], [])]
    return ops

def gen_period(a, opt):
    cur = wset(a)
    if a <= 14:
        steps = [("Q1", cur + 0, "D1"), ("Q2", cur + 4, "D2"), ("Q0", cur + 8, "X0")]
    else:
        steps = [("Q2", cur + 8, "D2"), ("Q0", cur + 8, "X0")]
    ng = 8 * len(steps)
    fill = [[] for _ in range(ng)]
    mf = []
    last = {"D1": 14, "D2": 15, "X0": 15}
    for si, (q, wreg, arr) in enumerate(steps):
        for k in range(8):
            m = 7 - k
            sl = (m - a) % 8
            b = WIN[arr] + 4 * sl
            acc = ACC[q] + 4 * m
            mf.append(("mfma", f"v_mfma_f32_16x16x32_bf16 {vr(acc)}, {vr(wreg)}, {vr(b)}, {vr(acc)}", [], rng(wreg, 4) + rng(b, 4)))
            g = 8 * si + k
            if a == last[arr]:
                fill[g].append(x_read(arr, 16 + sl, b, nxt=True))
            elif k == 0:
                fill[g].append(x_read(arr, 15 - a, b))
    def place(ops, gaps):
        for o, g in zip(ops, gaps): fill[g].append(o)
    if a <= 12:
        nb = wset(a + 2)
        place(w_read(a + 2, 0, nb + 0), [9, 10])
        place(w_read(a + 2, 1, nb + 4), [17, 18])
    elif a == 14:
        nb = wset(0)
        place(w_read(16, 0, nb + 0), [0, 1])
        place(w_read(16, 1, nb + 4), [2, 3])
        place(w_read(15, 1, wset(15) + 8), [4, 5])
    elif a == 15:
        nb = wset(1)
        place(w_read(17, 0, nb + 0), [1, 3])
        place(w_read(17, 1, nb + 4), [9, 11])
    valu = []
    g0 = 0
    if a <= 13: valu = ws_valu(wset(a + 1), opt.e64)
    elif a == 14: valu = ws_valu(wset(0), opt.e64); g0 = 9
    extra = []
    if a == 0: extra.append(("valu", f"v_add_u32 v{V_XA2}, s37, v{V_XA2}", [], []))
    if a == 15:
        fill[12].append(("valu", f"v_add_u32 v{V_XA0}, s37, v{V_XA0}", [], []))
        fill[13].append(("valu", f"v_add_u32 v{V_XA1}, s37, v{V_XA1}", [], []))
    valu = extra + valu
    if valu:
        gaps = list(range(g0, ng))
        n = len(valu)
        cap = {g: max(0, opt.cap - len(fill[g])) for g in gaps}
        if sum(cap.values()) < n:
            for g in gaps: cap[g] = max(cap[g], 1)
        assert sum(cap.values()) >= n, (a, sum(cap.values()), n)
        tot = sum(cap.values()); i = 0; accq = 0.0
        for g in gaps:
            accq += cap[g] * n / tot
            k = min(cap[g], int(accq + 1e-9) - sum(1 for x in range(0)) )
            take = int(accq + 1e-9) - i
            take = min(take, cap[g])
            for _ in range(take):
                fill[g].append(valu[i]); i += 1
        while i < n:
            fill[ng - 1].append(valu[i]); i += 1
    out = []
    for g in range(ng):
        out.append(mf[g]); out += fill[g]
    return out

def emit_with_waits(A, ops, tr):
    for kind, text, dests, reads in ops:
        if reads:
            n = tr.need(reads)
            if n is not None: A(f"s_waitcnt lgkmcnt({n})")
        A(text)
        if kind == "lds": tr.issue(dests)

def stamp(A, idx, opt):
    if not opt.stamps: return
    A(f"s_memtime s[{60+4*idx}:{61+4*idx}]")
    A(f"s_memrealtime s[{62+4*idx}:{63+4*idx}]")

def gen_main(opt):
    A = Asm()
    A.raw(f".globl {MAIN}\n.p2align 8\n.type {MAIN},@function\n{MAIN}:")
    A("s_cmp_ge_u32 s2, 256")
    A("s_cbranch_scc1 L_end")
    A("s_load_dwordx4 s[4:7], s[0:1], 0")
    A("s_load_dwordx4 s[8:11], s[0:1], 16")
    A("s_load_dwordx4 s[12:15], s[0:1], 32")
    if opt.stamps:
        stamp(A, 0, opt)
    A("v_lshrrev_b32 v1, 6, v0")
    A("v_and_b32 v5, 63, v0")
    A("s_and_b32 s28, s2, 7")
    A("v_readfirstlane_b32 s30, v1")
    A("s_lshr_b32 s29, s2, 3")
    A("s_and_b32 s31, s29, 7")
    A("s_lshl_b32 s31, s31, 7")
    A("s_lshr_b32 s32, s29, 3")
    A("s_and_b32 s33, s32, 1")
    A("s_lshr_b32 s34, s32, 1")
    A("s_mov_b32 s36, 0xffff0000")
    A(f"s_mov_b32 s37, {XBUF}")
    A("s_mul_i32 s35, s34, 2048000")
    A("s_waitcnt lgkmcnt(0)")
    A("s_add_u32 s16, s4, s35")
    A("s_addc_u32 s17, s5, 0")
    A("s_mov_b32 s18, 2048000")
    A("s_mov_b32 s19, 0x20000")
    A("s_mov_b32 s20, s6")
    A("s_mov_b32 s21, s7")
    A(f"s_mov_b32 s22, {31*256*512*2}")
    A("s_mov_b32 s23, 0x20000")
    A("s_mov_b32 s24, s14")
    A("s_mov_b32 s25, s15")
    A(f"s_mov_b32 s26, {32*256*1024}")
    A("s_mov_b32 s27, 0x20000")
    A("s_cmp_ge_u32 s30, 4")
    A("s_cbranch_scc1 L_prod")

    if opt.prio: A(f"s_setprio {opt.prio}")
    A("v_and_b32 v6, 15, v5")
    A("v_lshrrev_b32 v7, 4, v5")
    for q0, reg in ((0, V_XA0), (1, V_XA1), (2, V_XA2)):
        A(f"v_add_u32 v8, {q0}, v6")
        A("v_lshrrev_b32 v8, 2, v8")
        A("v_and_b32 v8, 1, v8")
        A("v_lshlrev_b32 v8, 1, v8")
        A("v_xor_b32 v8, v8, v7")
        A("v_lshlrev_b32 v8, 4, v8")
        A(f"v_lshl_add_u32 v{reg}, v6, 6, v8")
    A("v_lshrrev_b32 v8, 2, v6")
    A("v_and_b32 v9, 3, v6")
    A("v_lshrrev_b32 v10, 1, v8")
    A("v_and_b32 v10, 1, v10")
    A("v_and_b32 v11, 1, v7")
    A("v_lshl_or_b32 v10, v11, 1, v10")
    A("v_xor_b32 v10, s30, v10")
    A("v_lshlrev_b32 v10, 5, v10")
    A("v_lshl_add_u32 v11, v7, 3, v8")
    A("v_lshl_add_u32 v10, v11, 7, v10")
    A("v_lshl_add_u32 v10, v9, 3, v10")
    A(f"v_add_u32 v{V_WA}, {WRING}, v10")
    for q in ("Q1", "Q2", "Q0"):
        for i in range(32): A(f"v_mov_b32 v{ACC[q]+i}, 0")
    A("s_barrier")
    if opt.dbglds:
        A("v_lshlrev_b32 v6, 4, v0")
        A("s_lshl_b32 s39, s2, 17")
        A(f"s_add_u32 s39, s39, {32 << 20}")
        A("s_mov_b32 s26, 0x8000000")
        for i in range(31):
            A(f"v_add_u32 v7, {i*4096}, v6")
            A("ds_read_b128 v[8:11], v7")
            A("s_waitcnt lgkmcnt(0)")
            A("buffer_store_dwordx4 v[8:11], v7, s[24:27], s39 offen")
            A("s_waitcnt vmcnt(0)")
        A("s_endpgm")
    if opt.stamps: stamp(A, 1, opt)
    tr = LdsTracker()
    pro = []
    pro += w_read(0, 0, wset(0)) + w_read(0, 1, wset(0) + 4)
    for arr in ("D1", "D2", "X0"):
        for jj in range(8):
            pro.append(x_read(arr, 16 + jj, WIN[arr] + 4 * jj, nxt=True))
    pro += w_read(1, 0, wset(1)) + w_read(1, 1, wset(1) + 4)
    pro += ws_valu(wset(0), opt.e64)
    emit_with_waits(A, pro, tr)
    A("s_waitcnt lgkmcnt(0)")
    tr.waitall()
    A("s_mov_b32 s38, 8")
    class Null:
        def __call__(self, s): pass
    def body(AA, tr):
        for a in range(16):
            if a == 15:
                n = tr.need(rng(wset(15) + 8, 4))
                if n is not None: AA(f"s_waitcnt lgkmcnt({n})")
            AA("s_barrier")
            emit_with_waits(AA, gen_period(a, opt), tr)
    body(Null(), tr)
    if opt.align: A.raw(".p2align 6")
    A.label("L_cloop")
    body(A, tr)
    A("s_sub_u32 s37, 0, s37")
    A("s_sub_u32 s38, s38, 1")
    A("s_cmp_lg_u32 s38, 0")
    A("s_cbranch_scc1 L_cloop")
    if opt.stamps: stamp(A, 2, opt)
    A("s_nop 7")
    A("s_nop 7")
    A("s_waitcnt lgkmcnt(0)")
    A("v_and_b32 v6, 15, v5")
    A("v_lshrrev_b32 v7, 4, v5")
    A(f"v_mul_u32_u24 v1, {HPITCH}, v6")
    A("v_lshl_add_u32 v1, v7, 3, v1")
    A("s_lshl_b32 s39, s30, 5")
    A("v_add_u32 v1, s39, v1")
    for m in range(8):
        for q, acc in ((0, "Q1"), (1, "Q2")):
            a0 = ACC["Q0"] + 4 * m; a1 = ACC[acc] + 4 * m
            t = 8 + 8 * ((2 * m + q) % 4)
            for i in range(4): A(f"v_add_f32 v{t+i}, v{a0+i}, v{a1+i}")
            A(f"v_cvt_pk_bf16_f32 v{t+4}, v{t}, v{t+1}")
            A(f"v_cvt_pk_bf16_f32 v{t+5}, v{t+2}, v{t+3}")
            A(f"ds_write_b64 v1, {vr(t+4,2)} offset:{(2*m+q)*16*HPITCH}")
    A("s_waitcnt lgkmcnt(0)")
    A("s_branch L_store")

    A.label("L_prod")
    A("s_sub_u32 s40, s30, 4")
    A("v_lshrrev_b32 v6, 3, v5")
    A("s_lshl_b32 s41, s40, 3")
    A("v_add_u32 v6, s41, v6")
    A("v_and_b32 v7, 7, v5")
    A("v_lshrrev_b32 v8, 1, v6")
    A("v_and_b32 v8, 1, v8")
    A("v_lshrrev_b32 v9, 3, v6")
    A("v_and_b32 v9, 1, v9")
    A("v_lshl_or_b32 v8, v9, 1, v8")
    A("v_lshrrev_b32 v9, 1, v7")
    A("v_xor_b32 v8, v8, v9")
    A("v_lshlrev_b32 v8, 5, v8")
    A("v_and_b32 v9, 1, v7")
    A("v_lshl_add_u32 v8, v9, 4, v8")
    A("v_lshl_add_u32 v8, v6, 10, v8")
    A("s_lshl_b32 s41, s28, 7")
    A("v_add_u32 v1, s41, v8")
    A("s_lshl_b32 s42, s40, 10")
    A(f"s_add_u32 s42, s42, {WRING}")
    XO, XW = 110, 116
    A("v_lshrrev_b32 v11, 2, v5")
    A("v_and_b32 v12, 3, v5")
    A("s_mul_i32 s41, s40, 36")
    A("v_add_u32 v11, s41, v11")
    A("s_mov_b32 s43, 0x40000000")
    A("s_lshl_b32 s44, s33, 9")
    for t in range(3):
        A(f"v_add_u32 v13, {12*t}, v11")
        A("v_add_u32 v14, s31, v13")
        A("v_subrev_u32 v14, 16, v14")
        A("v_lshlrev_b32 v15, 11, v14")
        A("v_lshl_add_u32 v15, v12, 4, v15")
        A("v_add_u32 v15, s44, v15")
        A("v_subrev_u32 v16, 1024, v15") if False else A("v_add_u32 v16, 0xfffffc00, v15")
        A("v_mov_b32 v17, s43")
        A("v_cmp_gt_i32 vcc, 0, v14")
        A("s_nop 1")
        A(f"v_cndmask_b32 v{XO+1+2*t}, v15, v17, vcc")
        A("v_cmp_gt_i32 vcc, 1, v14")
        A("s_nop 1")
        A(f"v_cndmask_b32 v{XO+2*t}, v16, v17, vcc")
        A("v_cmp_le_u32 vcc, 48, v5")
        A("s_nop 1")
        A(f"v_cndmask_b32 v{XO+1+2*t}, v{XO+1+2*t}, v17, vcc")
        A(f"v_cndmask_b32 v{XO+2*t}, v{XO+2*t}, v17, vcc")
        A("v_and_b32 v14, 7, v13")
        A("v_lshrrev_b32 v15, 3, v13")
        A(f"v_mad_u32_u24 v14, v14, {XROWG}, v15")
        A("v_lshrrev_b32 v15, 2, v15")
        A("v_and_b32 v15, 1, v15")
        A("v_lshlrev_b32 v15, 1, v15")
        A("v_xor_b32 v15, v15, v12")
        A("v_lshlrev_b32 v15, 4, v15")
        A(f"v_lshl_add_u32 v{XW+t}, v14, 6, v15")
    A("s_mov_b64 s[46:47], exec")
    A("s_mov_b32 s48, -1")
    A("s_mov_b32 s49, 0xffff")
    RAW, RAWP = 16, 52
    PT = 88
    PD1, PD2 = 100, 104
    vm = []
    def xloads(AA, base, t, soff, tag):
        b = base + 12 * t
        AA(f"buffer_load_dwordx4 {vr(b)}, v{XO+2*t}, s[16:19], {soff} offen")
        AA(f"buffer_load_dwordx4 {vr(b+4)}, v{XO+1+2*t}, s[16:19], {soff} offen")
        AA(f"buffer_load_dwordx4 {vr(b+8)}, v{XO+1+2*t}, s[16:19], {soff} offen offset:1024")
        vm.extend([tag] * 3)
    def dma(AA, sig_slot, a, creg, tag):
        for tile, tap in ((0, min(2 * a + 1, 30)), (1, 2 * a)):
            AA(f"s_add_u32 m0, s42, {(sig_slot % NSLOT) * WSLOT + tile * 4096}")
            AA(f"s_add_u32 s45, {creg}, {tap * 262144}")
            AA(f"buffer_load_dwordx4 v1, s[20:23], s45 offen lds")
            vm.append(tag)
    def xvalu(AA, base, t, d):
        b = base + 12 * t
        m_, x0, x1 = b + d, b + 4 + d, b + 8 + d
        T = PT
        AA(f"v_lshlrev_b32 v{T}, 16, v{x0}")
        AA(f"v_and_b32 v{T+1}, s36, v{x0}")
        AA(f"v_lshlrev_b32 v{T+2}, 16, v{x1}")
        AA(f"v_and_b32 v{T+3}, s36, v{x1}")
        AA(f"v_lshlrev_b32 v{T+4}, 16, v{m_}")
        AA(f"v_and_b32 v{T+5}, s36, v{m_}")
        AA(f"v_sub_f32 v{T+2}, v{T+2}, v{T}")
        AA(f"v_sub_f32 v{T+3}, v{T+3}, v{T+1}")
        AA(f"v_sub_f32 v{T+4}, v{T+4}, v{T}")
        AA(f"v_sub_f32 v{T+5}, v{T+5}, v{T+1}")
        AA(f"v_cvt_pk_bf16_f32 v{PD2+d}, v{T+2}, v{T+3}")
        AA(f"v_cvt_pk_bf16_f32 v{PD1+d}, v{T+4}, v{T+5}")
    def xwrites(AA, base, t):
        b = base + 12 * t
        AA("s_mov_b64 exec, s[48:49]")
        AA(f"ds_write_b128 v{XW+t}, {vr(PD1)} offset:{0*XARR}")
        AA(f"ds_write_b128 v{XW+t}, {vr(PD2)} offset:{1*XARR}")
        AA(f"ds_write_b128 v{XW+t}, {vr(b+4)} offset:{2*XARR}")
        AA("s_mov_b64 exec, s[46:47]")
    def vmwait(AA, tag):
        l = [i for i, x in enumerate(vm) if x == tag]
        if not l: return 0
        return len(vm) - max(l) - 1
    A("s_mov_b32 s50, 0")
    A("s_mov_b32 s51, 32768")
    A("s_mov_b32 s52, 0")
    A("s_mov_b32 s53, 64")
    for t in range(3): xloads(A, RAWP, t, "s52", "x0")
    for s in range(2): dma(A, s, s, "s50", ("w", s))
    for t in range(3): xloads(A, RAW, t, "s53", ("x", 1, t))
    for s in range(2, 8): dma(A, s, s, "s50", ("w", s))
    if opt.prefetch:
        A("v_and_b32 v11, 31, v5")
        A("v_lshrrev_b32 v12, 5, v5")
        A("s_lshl_b32 s41, s40, 1")
        A("v_add_u32 v12, s41, v12")
        A("v_lshl_add_u32 v11, v12, 5, v11")
        A("v_lshlrev_b32 v11, 10, v11")
        A("s_lshl_b32 s41, s28, 7")
        A("v_add_u32 v11, s41, v11")
        A("s_mul_i32 s41, s29, 262144")
        A("buffer_load_dword v108, v11, s[20:23], s41 offen")
        vm.append("pf")
    A(f"s_waitcnt vmcnt({vmwait(A, 'x0')})")
    for t in range(3):
        for d in range(4): xvalu(A, RAWP, t, d)
        xwrites(A, RAWP, t)
        if t < 2: A("s_nop 1")
    for t in range(3): A(f"v_add_u32 v{XW+t}, s37, v{XW+t}")
    A(f"s_waitcnt vmcnt({vmwait(A, ('w', 1))}) lgkmcnt(0)")
    if opt.dbglds: A("s_waitcnt vmcnt(0)")
    A("s_barrier")
    if opt.dbglds: A("s_endpgm")
    A(f"s_waitcnt vmcnt({vmwait(A, ('w', 2))})")
    A("s_mov_b32 s38, 8")
    A("s_mov_b32 s53, 128")
    def pbody(AA, c, record):
        for a in range(16):
            s = 16 * c + a
            AA("s_barrier")
            sig = s + 8
            a2 = sig & 15
            dma(AA, sig, a2, "s51" if a >= 8 else "s50", ("w", sig))
            wrote = False
            if 1 <= a <= 12:
                t, d = (a - 1) >> 2, (a - 1) & 3
                if d == 0:
                    n = vmwait(AA, ("x", c + 1, t))
                    record.setdefault(("x", a), []).append(n)
                    AA(("XW", a))
                xvalu(AA, RAW, t, d)
                if d == 3:
                    xwrites(AA, RAW, t); wrote = True
            if a in (5, 9, 13):
                xloads(AA, RAW, (a - 5) >> 2, "s53", ("x", c + 2, (a - 5) >> 2))
            if a == 15:
                for t in range(3): AA(f"v_subrev_u32 v{XW+t}, s37, v{XW+t}")
                AA("s_sub_u32 s37, 0, s37")
                AA("s_mov_b32 s50, s51")
                AA("s_add_u32 s51, s51, 32768")
                AA(f"s_and_b32 s51, s51, {8*32768-1}")
                AA("s_add_u32 s53, s53, 64")
            n = vmwait(AA, ("w", s + 3))
            record.setdefault(("w", a), []).append(n)
            AA(("WW", a, wrote))
    rec = {}
    vm_save = list(vm)
    class Null2:
        def __call__(self, s): pass
    for c in range(3): pbody(Null2(), c, rec)
    waits = {k: min(min(v), 63) for k, v in rec.items()}
    vm[:] = vm_save
    A.label("L_ploop")
    class Emit:
        def __call__(self, s):
            if isinstance(s, tuple):
                if s[0] == "XW":
                    pass
                else:
                    a, wrote = s[1], s[2]
                    A(f"s_waitcnt vmcnt({waits[('w', a)]})" + (" lgkmcnt(0)" if wrote else ""))
            else: A(s)
    class Emit2(Emit):
        def __call__(self, s):
            if isinstance(s, tuple) and s[0] == "XW":
                A(f"s_waitcnt vmcnt({waits[('x', s[1])]})")
            else: super().__call__(s)
    pbody(Emit2(), 1, {})
    A("s_sub_u32 s38, s38, 1")
    A("s_cmp_lg_u32 s38, 0")
    A("s_cbranch_scc1 L_ploop")
    A("s_waitcnt vmcnt(0) lgkmcnt(0)")

    A.label("L_store")
    A("s_barrier")
    A("v_and_b32 v1, 7, v0")
    A("v_lshrrev_b32 v2, 3, v0")
    A(f"v_mul_u32_u24 v3, {HPITCH}, v2")
    A("v_lshl_add_u32 v3, v1, 4, v3")
    A("v_lshlrev_b32 v4, 10, v2")
    A("v_lshl_add_u32 v4, v1, 4, v4")
    A("s_lshl_b32 s39, s29, 18")
    A("s_lshl_b32 s40, s28, 7")
    A("s_add_u32 s39, s39, s40")
    for i in range(4):
        A(f"ds_read_b128 {vr(8+4*i)}, v3 offset:{i*64*HPITCH}")
    for i in range(4):
        A(f"s_waitcnt lgkmcnt({3-i})")
        A(f"buffer_store_dwordx4 {vr(8+4*i)}, v4, s[24:27], s39 offen")
        if i < 3: A("s_add_u32 s39, s39, 65536")
    if opt.stamps:
        stamp(A, 3, opt)
        A("s_waitcnt vmcnt(0) lgkmcnt(0)")
        stamp(A, 4, opt)
        A("s_waitcnt lgkmcnt(0)")
        A("v_cmp_eq_u32 vcc, 0, v0")
        A("s_and_saveexec_b64 s[48:49], vcc")
        A("s_cbranch_execz L_end")
        A("s_lshl_b32 s50, s2, 6")
        A(f"s_add_u32 s50, s50, {STAMP_OFF}")
        A("v_mov_b32 v1, s50")
        order = [60, 61, 76, 77, 62, 63, 78, 79, 64, 65, 68, 69, 72, 73, 72, 73]
        for i in range(0, 16, 4):
            for k in range(4): A(f"v_mov_b32 v{4+k}, s{order[i+k]}")
            A(f"global_store_dwordx4 v1, v[4:7], s[14:15] offset:{i*4}")
            A("s_nop 1")
    A.label("L_end")
    A("s_endpgm")
    return A.text()

def gen_stage2(opt):
    A = Asm()
    WO_LDS = 0
    ZT = 131072
    ZP = 528
    A.raw(f".globl {ST2}\n.p2align 8\n.type {ST2},@function\n{ST2}:")
    A("s_cmp_ge_u32 s2, 256")
    A("s_cbranch_scc1 L2_end")
    A("s_load_dwordx4 s[8:11], s[0:1], 16")
    A("s_load_dwordx2 s[14:15], s[0:1], 40")
    A("v_lshrrev_b32 v1, 6, v0")
    A("v_and_b32 v5, 63, v0")
    A("s_and_b32 s28, s2, 7")
    A("v_readfirstlane_b32 s30, v1")
    A("s_lshr_b32 s29, s2, 3")
    A("s_and_b32 s31, s29, 7")
    A("s_lshl_b32 s31, s31, 7")
    A("s_lshr_b32 s32, s29, 3")
    A("s_and_b32 s33, s32, 1")
    A("s_lshr_b32 s34, s32, 1")
    A("s_mul_i32 s35, s34, 2048000")
    A("s_waitcnt lgkmcnt(0)")
    A("s_mov_b32 s16, s8")
    A("s_mov_b32 s17, s9")
    A("s_mov_b32 s18, 131072")
    A("s_mov_b32 s19, 0x20000")
    A("s_add_u32 s20, s10, s35")
    A("s_addc_u32 s21, s11, 0")
    A("s_mov_b32 s22, 2048000")
    A("s_mov_b32 s23, 0x20000")
    A("s_mov_b32 s24, s14")
    A("s_mov_b32 s25, s15")
    A(f"s_mov_b32 s26, {32*256*1024}")
    A("s_mov_b32 s27, 0x20000")
    A("v_lshrrev_b32 v2, 4, v0")
    A("v_and_b32 v3, 15, v0")
    A("v_lshlrev_b32 v4, 10, v2")
    A("v_lshl_add_u32 v4, v3, 4, v4")
    A("s_lshl_b32 s39, s29, 18")
    A("s_lshl_b32 s40, s28, 15")
    A("s_add_u32 s39, s39, s40")
    A(f"buffer_load_dwordx4 {vr(16)}, v4, s[24:27], s39 offen")
    A(f"buffer_load_dwordx4 {vr(20)}, v4, s[24:27], s39 offen offset:512")
    A(f"buffer_load_dwordx4 {vr(24)}, v4, s[24:27], s39 offen offset:256")
    A(f"buffer_load_dwordx4 {vr(28)}, v4, s[24:27], s39 offen offset:768")
    A("v_lshrrev_b32 v6, 5, v5")
    A("s_and_b32 s41, s30, 1")
    A("s_lshl_b32 s41, s41, 1")
    A("v_add_u32 v7, s41, v6")
    A("v_lshlrev_b32 v7, 2, v7")
    A("v_and_b32 v8, 31, v5")
    A("v_xor_b32 v8, v8, v7")
    A("v_lshlrev_b32 v8, 4, v8")
    A("v_lshl_add_u32 v8, v6, 9, v8")
    A("s_lshl_b32 s42, s30, 10")
    for ii in range(16):
        A(f"s_add_u32 m0, s42, {ii*8192}")
        A(f"s_add_u32 s45, s42, {ii*8192}")
        A("buffer_load_dwordx4 v8, s[16:19], s45 offen lds")
    A("s_mov_b32 s36, 0xffff0000")
    A("s_mov_b32 s37, 0xc038aa3b")
    A("s_mov_b32 s38, 0xbfb8aa3b")
    A("s_mov_b32 s43, 0x7fffffff")
    A(f"v_mul_u32_u24 v9, {ZP}, v2")
    A("v_lshl_add_u32 v9, v3, 4, v9")
    A(f"v_add_u32 v9, {ZT}, v9")
    for half in range(2):
        A(f"s_waitcnt vmcnt({16 + (2 if half == 0 else 0)})")
        fb, gb = 16 + 8 * half, 20 + 8 * half
        zb = 32 + 4 * half
        for d in range(4):
            for hl in range(2):
                t = 40 + 8 * hl
                if hl == 0:
                    A(f"v_lshlrev_b32 v{t}, 16, v{fb+d}")
                    A(f"v_lshlrev_b32 v{t+1}, 16, v{gb+d}")
                else:
                    A(f"v_and_b32 v{t}, s36, v{fb+d}")
                    A(f"v_and_b32 v{t+1}, s36, v{gb+d}")
            for hl in range(2):
                t = 40 + 8 * hl
                A(f"v_mul_f32 v{t+2}, s37, |v{t}|" if False else f"v_mul_f32_e64 v{t+2}, s37, |v{t}|")
                A(f"v_mul_f32 v{t+3}, s38, v{t+1}")
            for hl in range(2):
                t = 40 + 8 * hl
                A(f"v_exp_f32 v{t+2}, v{t+2}")
                A(f"v_exp_f32 v{t+3}, v{t+3}")
            for hl in range(2):
                t = 40 + 8 * hl
                A(f"v_add_f32 v{t+4}, 1.0, v{t+2}")
                A(f"v_add_f32 v{t+5}, 1.0, v{t+3}")
                A(f"v_sub_f32 v{t+2}, 1.0, v{t+2}")
            for hl in range(2):
                t = 40 + 8 * hl
                A(f"v_mul_f32 v{t+4}, v{t+4}, v{t+5}")
            for hl in range(2):
                t = 40 + 8 * hl
                A(f"v_rcp_f32 v{t+4}, v{t+4}")
            A("s_nop 0")
            for hl in range(2):
                t = 40 + 8 * hl
                A(f"v_mul_f32 v{t+2}, v{t+2}, v{t+4}")
            for hl in range(2):
                t = 40 + 8 * hl
                A(f"v_bfi_b32 v{t+2}, s43, v{t+2}, v{t}")
            A(f"v_cvt_pk_bf16_f32 v{zb+d}, v42, v50")
        A(f"ds_write_b128 v9, {vr(zb)} offset:{256*half}")
    A("s_waitcnt vmcnt(0) lgkmcnt(0)")
    A("s_barrier")
    A("v_and_b32 v6, 15, v5")
    A("v_lshrrev_b32 v7, 4, v5")
    A("v_lshrrev_b32 v8, 2, v6")
    A("v_and_b32 v9, 3, v6")
    A("s_lshl_b32 s41, s30, 2")
    A("v_add_u32 v10, s41, v9")
    A("v_lshlrev_b32 v11, 2, v8")
    A("v_xor_b32 v10, v10, v11")
    A("v_lshlrev_b32 v10, 4, v10")
    A("v_lshl_add_u32 v11, v7, 3, v8")
    A("v_lshl_add_u32 v10, v11, 9, v10")
    A(f"v_mul_u32_u24 v11, {ZP}, v6")
    A("v_lshl_add_u32 v11, v7, 4, v11")
    A(f"v_add_u32 v11, {ZT}, v11")
    ACC2 = 64
    for i in range(16): A(f"v_mov_b32 v{ACC2+i}, 0")
    tr = LdsTracker()
    def rd(kap):
        s = kap & 1
        ab, bb = 80 + 16 * s, 88 + 16 * s
        ops = []
        for hf in range(2):
            off = kap * 32 * 512 + 8 * hf
            areg = 10 if kap < 4 else 12
            off -= 0 if kap < 4 else 65536
            ops.append(("lds", f"ds_read_b64_tr_b16 {vr(ab+4*hf,2)}, v{areg} offset:{off}", rng(ab+4*hf, 2), []))
            ops.append(("lds", f"ds_read_b64_tr_b16 {vr(ab+4*hf+2,2)}, v{areg} offset:{off+2048}", rng(ab+4*hf+2, 2), []))
        for tau in range(2):
            ops.append(("lds", f"ds_read_b128 {vr(bb+4*tau)}, v11 offset:{tau*16*ZP + kap*64}", rng(bb+4*tau, 4), []))
        return ops
    A("v_add_u32 v12, 0x10000, v10")
    ops = rd(0)
    for kap in range(8):
        if kap < 7: ops += rd(kap + 1)
        s = kap & 1
        ab, bb = 80 + 16 * s, 88 + 16 * s
        for hf in range(2):
            for tau in range(2):
                acc = ACC2 + 4 * (2 * tau + hf)
                ops.append(("mfma", f"v_mfma_f32_16x16x32_bf16 {vr(acc)}, {vr(ab+4*hf)}, {vr(bb+4*tau)}, {vr(acc)}", [], rng(ab+4*hf, 4) + rng(bb+4*tau, 4)))
    emit_with_waits(A, ops, tr)
    A("s_nop 7")
    A("s_nop 7")
    A("v_lshlrev_b32 v8, 3, v6")
    A("s_add_u32 s41, s31, s28")
    A("v_add_u32 v8, s41, v8")
    A("v_lshlrev_b32 v8, 11, v8")
    A("s_lshl_b32 s41, s33, 9")
    A("s_lshl_b32 s42, s30, 6")
    A("s_add_u32 s41, s41, s42")
    A("v_add_u32 v8, s41, v8")
    A("v_lshl_add_u32 v8, v7, 4, v8")
    for tau in range(2):
        a = ACC2 + 8 * tau
        t = 16 + 4 * tau
        A(f"v_cvt_pk_bf16_f32 v{t}, v{a}, v{a+1}")
        A(f"v_cvt_pk_bf16_f32 v{t+1}, v{a+2}, v{a+3}")
        A(f"v_cvt_pk_bf16_f32 v{t+2}, v{a+4}, v{a+5}")
        A(f"v_cvt_pk_bf16_f32 v{t+3}, v{a+6}, v{a+7}")
        A(f"buffer_store_dwordx4 {vr(t)}, v8, s[20:23], 0 offen offset:{1024*tau}")
    A.label("L2_end")
    A("s_endpgm")
    return A.text(), ZT + 32 * ZP

def kd(name, nv, ns=102):
    return f""".amdhsa_kernel {name}
  .amdhsa_next_free_vgpr {nv}
  .amdhsa_next_free_sgpr {ns}
  .amdhsa_accum_offset {(nv + 3) // 4 * 4}
  .amdhsa_group_segment_fixed_size 0
  .amdhsa_kernarg_size 48
  .amdhsa_user_sgpr_count 2
  .amdhsa_user_sgpr_kernarg_segment_ptr 1
  .amdhsa_system_sgpr_workgroup_id_x 1
.end_amdhsa_kernel
"""

HEADER = """; Kernarg layout for this problem (48 bytes, ptrs only, base s[0:1]):
"""

def main():
    ap = argparse.ArgumentParser()
    ap.add_argument("-o", default="standalone__autoregressive_conv_wavenet__speech.s")
    ap.add_argument("--stamps", action="store_true")
    ap.add_argument("--e64", action="store_true")
    ap.add_argument("--prio", type=int, default=0)
    ap.add_argument("--cap", type=int, default=2)
    ap.add_argument("--align", action="store_true")
    ap.add_argument("--no-prefetch", dest="prefetch", action="store_false")
    ap.add_argument("--only-main", action="store_true")
    ap.add_argument("--dbglds", action="store_true")
    opt = ap.parse_args()
    m = gen_main(opt)
    s2, lds2 = gen_stage2(opt)
    out = HEADER
    out += f"; @launch kernel={MAIN} grid=(256,1,1) block=(512,1,1) lds={LDS_MAIN}\n"
    if not opt.only_main:
        out += f"; @launch kernel={ST2} grid=(256,1,1) block=(512,1,1) lds={lds2}\n"
    out += '.amdgcn_target "amdgcn-amd-amdhsa--gfx950"\n.text\n'
    out += m + s2
    out += '.section .rodata,"a"\n.p2align 6\n' + kd(MAIN, NV_MAIN) + ".p2align 6\n" + kd(ST2, 112)
    open(opt.o, "w").write(out)

if __name__ == "__main__":
    main()
```

```python
import sys, argparse

MAIN = "standalone__autoregressive_conv_wavenet__speech_kernel"

XROWG = 19
XARR = 152 * 64
XBUF = 32768
WRING = 65536
WSLOT = 8192
NSLOT = 8
HST = 131072
LDS_TOTAL = 163840
ZP = 528
WS_XIMG = 8 << 20
WS_BYTES = 16 << 20
STAMP_OFF = 16 << 20
WS_FLAGS = 17 << 20

class Asm:
    def __init__(self): self.lines = []
    def __call__(self, s): self.lines.append("    " + s)
    def label(self, s): self.lines.append(s + ":")
    def raw(self, s): self.lines.append(s)
    def text(self): return "\n".join(self.lines) + "\n"
class Null:
    def __call__(self, s): pass
    def label(self, s): pass
    def raw(self, s): pass

def vr(b, n=4): return f"v[{b}:{b+n-1}]"
def rng(b, n): return list(range(b, b + n))

V_XA0, V_XA1, V_XA2, V_WA = 1, 2, 3, 4
TMP = [8, 12]
WSET = {0: 16, 1: 28, 2: 232}
WIN = {"D1": 40, "D2": 72, "X0": 104}
ARR = {"D1": 0, "D2": 1, "X0": 2}
ACC = {"Q1": 136, "Q2": 168, "Q0": 200}
NV = 244

def wset(a):
    a %= 16
    return WSET[2] if a == 0 else WSET[a & 1]

class LdsTracker:
    def __init__(self): self.out = []
    def issue(self, regs): self.out.append(set(regs))
    def need(self, regs):
        regs = set(regs); p = -1
        for i, d in enumerate(self.out):
            if d & regs: p = i
        if p < 0: return None
        n = min(len(self.out) - p - 1, 15)
        self.out = self.out[len(self.out) - n:] if n > 0 else []
        return n
    def waitall(self): self.out = []

def x_read(arr, idx0, dst, nxt=False):
    q0, mp = idx0 >> 3, idx0 & 7
    areg = V_XA2 if nxt else (V_XA0 if q0 == 0 else V_XA1)
    assert (q0 == 2) if nxt else (q0 in (0, 1))
    off = ARR[arr] * XARR + (mp * XROWG + q0) * 64
    return ("lds", f"ds_read_b128 {vr(dst)}, v{areg} offset:{off}", rng(dst, 4), [])

def w_read(slot, tile, dst):
    off = (slot % NSLOT) * WSLOT + tile * 4096
    return [("lds", f"ds_read_b64_tr_b16 {vr(dst,2)}, v{V_WA} offset:{off}", rng(dst, 2), []),
            ("lds", f"ds_read_b64_tr_b16 {vr(dst+2,2)}, v{V_WA} offset:{off+512}", rng(dst + 2, 2), [])]

E64 = [False]
NOVALU = [False]
DOT2 = [False]
SWAP = [False]
def ws_valu(base):
    ops = []
    if NOVALU[0]: return ops
    if DOT2[0]:
        for d0 in (0, 2):
            seq = []
            for d in (d0, d0 + 1):
                o, e = base + d, base + 4 + d
                t = TMP[d & 1]
                seq.append([("valu", f"v_dot2_f32_bf16 v{t}, v{o}, s91, 0", [], [o]),
                            ("valu", f"v_dot2_f32_bf16 v{t+1}, v{o}, s92, 0", [], [o]),
                            ("valu", f"v_dot2_f32_bf16 v{t}, v{e}, s91, v{t}", [], [e]),
                            ("valu", f"v_dot2_f32_bf16 v{t+1}, v{e}, s92, v{t+1}", [], [e]),
                            ("valu", f"v_cvt_pk_bf16_f32 v{base+8+d}, v{t}, v{t+1}", [], [])])
            a_, b_ = seq
            ops += [a_[0], a_[1], a_[2], a_[3], b_[0], b_[1], b_[2], b_[3], a_[4], ("valu", "s_nop 0", [], []), b_[4]] if d0 == 2 else [a_[0], a_[1], a_[2], a_[3], b_[0], b_[1], b_[2], b_[3], a_[4]]
            if d0 == 0: pend = b_[4]
            else: ops.insert(len(ops) - 11 + 3, pend)
        return ops
    for d in range(4):
        o, e, s = base + d, base + 4 + d, base + 8 + d
        t = TMP[d & 1]
        x = "_e64" if E64[0] else ""
        ops += [("valu", f"v_lshlrev_b32{x} v{t}, 16, v{o}", [], [o]),
                ("valu", f"v_lshlrev_b32{x} v{t+1}, 16, v{e}", [], [e]),
                ("valu", f"v_and_b32{x} v{t+2}, s36, v{o}", [], [o]),
                ("valu", f"v_and_b32{x} v{t+3}, s36, v{e}", [], [e]),
                ("valu", f"v_add_f32{x} v{t}, v{t}, v{t+1}", [], []),
                ("valu", f"v_add_f32{x} v{t+2}, v{t+2}, v{t+3}", [], []),
                ("valu", f"v_cvt_pk_bf16_f32 v{s}, v{t}, v{t+2}", [], [])]
    return ops

def gen_period(a, opt):
    cur = wset(a)
    if a <= 14: steps = [("Q1", cur + 0, "D1"), ("Q2", cur + 4, "D2"), ("Q0", cur + 8, "X0")]
    else: steps = [("Q2", cur + 8, "D2"), ("Q0", cur + 8, "X0")]
    ng = 8 * len(steps)
    fill = [[] for _ in range(ng)]
    mf = []
    last = {"D1": 14, "D2": 15, "X0": 15}
    for si, (q, wreg, arr) in enumerate(steps):
        for k in range(8):
            m = 7 - k
            sl = (m - a) % 8
            b = WIN[arr] + 4 * sl
            acc = ACC[q] + 4 * m
            if SWAP[0]: mf.append(("mfma", f"v_mfma_f32_16x16x32_bf16 {vr(acc)}, {vr(b)}, {vr(wreg)}, {vr(acc)}", [], rng(wreg, 4) + rng(b, 4)))
            else: mf.append(("mfma", f"v_mfma_f32_16x16x32_bf16 {vr(acc)}, {vr(wreg)}, {vr(b)}, {vr(acc)}", [], rng(wreg, 4) + rng(b, 4)))
            g = 8 * si + k
            if a == last[arr]: fill[g].append(x_read(arr, 16 + sl, b, nxt=True))
            elif k == 0: fill[g].append(x_read(arr, 15 - a, b))
    def place(ops, gaps):
        for o, g in zip(ops, gaps): fill[g].append(o)
    if a <= 12:
        nb = wset(a + 2)
        place(w_read(a + 2, 0, nb + 0), opt.wo_gaps)
        place(w_read(a + 2, 1, nb + 4), opt.we_gaps)
    elif a == 14:
        nb = wset(0)
        place(w_read(16, 0, nb + 0), [0, 1])
        place(w_read(16, 1, nb + 4), [2, 3])
        place(w_read(15, 1, wset(15) + 8), [4, 5])
    elif a == 15:
        nb = wset(1)
        place(w_read(17, 0, nb + 0), [1, 3])
        place(w_read(17, 1, nb + 4), [9, 11])
    valu = []; g0 = 0
    if a <= 13: valu = ws_valu(wset(a + 1))
    elif a == 14: valu = ws_valu(wset(0)); g0 = 9
    if a == 0: valu = [("valu", f"v_xor_b32 v{V_XA2}, s37, v{V_XA2}", [], [])] + valu
    if a == 15:
        fill[12].append(("valu", f"v_xor_b32 v{V_XA0}, s37, v{V_XA0}", [], []))
        fill[13].append(("valu", f"v_xor_b32 v{V_XA1}, s37, v{V_XA1}", [], []))
    if valu:
        gaps = list(range(g0, ng)); n = len(valu)
        cap = {g: max(0, opt.cap - len(fill[g])) for g in gaps}
        if sum(cap.values()) < n:
            for g in gaps: cap[g] = max(cap[g], 1)
        assert sum(cap.values()) >= n
        tot = sum(cap.values()); i = 0; accq = 0.0
        for g in gaps:
            accq += cap[g] * n / tot
            take = min(int(accq + 1e-9) - i, cap[g])
            for _ in range(take):
                fill[g].append(valu[i]); i += 1
        while i < n:
            fill[ng - 1].append(valu[i]); i += 1
    out = []
    for g in range(ng):
        out.append(mf[g]); out += fill[g]
    return out

def emit_with_waits(A, ops, tr):
    for kind, text, dests, reads in ops:
        if reads:
            n = tr.need(reads)
            if n is not None: A(f"s_waitcnt lgkmcnt({n})")
        A(text)
        if kind == "lds": tr.issue(dests)

NST = 6
def dstamp(A, k, opt):
    if not opt.dstamps: return
    A("s_memtime s[86:87]")
    A("s_waitcnt lgkmcnt(0)")
    A(f"v_writelane_b32 v245, s86, {k}")
def stamp(A, idx, opt):
    if not opt.stamps: return
    A(f"s_memtime s[{60+4*idx}:{61+4*idx}]")
    A(f"s_memrealtime s[{62+4*idx}:{63+4*idx}]")

XO, XW = 110, 120
RAW = 16
PT = 88
PD1, PD2 = 100, 104
NPT = 5
BIG = 0x40000000

def pair_addr(A):
    A("v_lshrrev_b32 v11, 3, v5")
    A("v_and_b32 v12, 7, v5")
    A("s_lshl_b32 s44, s33, 9")
    A("v_mov_b32 v9, 0x40000000")
    A("v_lshl_add_u32 v8, v12, 4, s44")
    A("v_and_b32 v7, 3, v12")
    A("v_lshrrev_b32 v6, 2, v12")
    A("v_lshlrev_b32 v6, 15, v6")
    A(f"v_mul_u32_u24 v10, {XROWG*64}, v11")
    A("v_add_u32 v6, v6, v10")
    for t in range(NPT):
        A(f"s_add_u32 s41, s30, {4*t}")
        A("s_lshl_b32 s42, s41, 3")
        A("s_add_u32 s42, s42, s31")
        A("s_sub_u32 s42, s42, 16")
        A("v_add_u32 v14, s42, v11")
        A("v_lshl_add_u32 v15, v14, 11, v8")
        A("v_add_u32 v10, 0xfffffc00, v15")
        A("v_cmp_gt_i32 s[46:47], 0, v14")
        A("v_cmp_gt_i32 s[48:49], 1, v14")
        if t == NPT - 1:
            A("s_cmp_ge_u32 s41, 18")
            A("s_cselect_b64 s[56:57], -1, 0")
            A("s_or_b64 s[46:47], s[46:47], s[56:57]")
            A("s_or_b64 s[48:49], s[48:49], s[56:57]")
        A("s_lshr_b32 s42, s41, 1")
        A("s_and_b32 s42, s42, 2")
        A(f"v_cndmask_b32 v{XO+1+2*t}, v15, v9, s[46:47]")
        A(f"v_cndmask_b32 v{XO+2*t}, v10, v9, s[48:49]")
        A("v_xor_b32 v13, s42, v7")
        A("v_lshl_add_u32 v13, v13, 4, v6")
        A("s_lshl_b32 s41, s41, 6")
        A(f"v_add_u32 v{XW+t}, s41, v13")

def job_loads(A, raw, offs, n):
    for t in range(n):
        b = raw + 12 * t
        A(f"buffer_load_dwordx4 {vr(b)}, v{offs+2*t}, s[16:19], 0 offen")
        A(f"buffer_load_dwordx4 {vr(b+4)}, v{offs+1+2*t}, s[16:19], 0 offen")
        A(f"buffer_load_dwordx4 {vr(b+8)}, v{offs+1+2*t}, s[16:19], 0 offen offset:1024")

def job_valu(A, b, pd1, pd2, ds=range(4)):
    for d in ds:
        m_, x0, x1 = b + d, b + 4 + d, b + 8 + d
        T = PT + 6 * (d & 1)
        A(f"v_lshlrev_b32 v{T}, 16, v{x0}")
        A(f"v_and_b32 v{T+1}, s36, v{x0}")
        A(f"v_lshlrev_b32 v{T+2}, 16, v{x1}")
        A(f"v_and_b32 v{T+3}, s36, v{x1}")
        A(f"v_lshlrev_b32 v{T+4}, 16, v{m_}")
        A(f"v_and_b32 v{T+5}, s36, v{m_}")
        A(f"v_sub_f32 v{T+2}, v{T+2}, v{T}")
        A(f"v_sub_f32 v{T+3}, v{T+3}, v{T+1}")
        A(f"v_sub_f32 v{T+4}, v{T+4}, v{T}")
        A(f"v_sub_f32 v{T+5}, v{T+5}, v{T+1}")
        A(f"v_cvt_pk_bf16_f32 v{pd2+d}, v{T+2}, v{T+3}")
        A(f"v_cvt_pk_bf16_f32 v{pd1+d}, v{T+4}, v{T+5}")

def pair_compute(A):
    for t in range(NPT):
        if t == NPT - 1:
            A("s_cmp_ge_u32 s30, 2")
            A("s_cbranch_scc1 L_pj")
        A(f"s_waitcnt vmcnt({3 * (NPT - 1 - t)})")
        b = RAW + 12 * t
        pd1, pd2 = PD1 + 28 * (t & 1), PD2 + 28 * (t & 1)
        job_valu(A, b, pd1, pd2)
        A(f"ds_write_b128 v{XW+t}, {vr(pd1)} offset:{0*XARR}")
        A(f"ds_write_b128 v{XW+t}, {vr(pd2)} offset:{1*XARR}")
        A(f"ds_write_b128 v{XW+t}, {vr(b+4)} offset:{2*XARR}")
    A.label("L_pj")

RAW2, SO, SS = 16, 64, 72
def shared_addr(A):
    A("v_mov_b32 v83, 0x40000000")
    A("s_lshl_b32 s45, s33, 9")
    A("s_add_u32 s45, s45, 128")
    A("s_mul_i32 s46, s28, %d" % (XROWG * 64))
    A("s_lshl_b32 s44, s29, 18")
    A("s_add_u32 s46, s46, s44")
    A(f"s_add_u32 s46, s46, {WS_XIMG + 2*32768}")
    A("s_add_u32 s44, s31, s28")
    A("s_sub_u32 s44, s44, 16")
    A("s_movk_i32 s55, 911")
    A("v_and_b32 v10, 3, v5")
    for k in range(4):
        A(f"s_add_u32 s41, s40, {2*k}")
        A("s_lshl_b32 s41, s41, 6")
        A("v_add_u32 v11, s41, v5")
        A("v_mul_u32_u24 v12, s55, v11")
        A("v_lshrrev_b32 v12, 16, v12")
        A("v_mul_u32_u24 v13, 72, v12")
        A("v_sub_u32 v13, v11, v13")
        A("v_lshrrev_b32 v13, 2, v13")
        A("v_lshl_add_u32 v14, v13, 3, s44")
        A("v_lshlrev_b32 v15, 11, v14")
        A("v_lshl_add_u32 v15, v12, 6, v15")
        A("v_lshl_add_u32 v15, v10, 4, v15")
        A("v_add_u32 v15, s45, v15")
        A("v_add_u32 v82, 0xfffffc00, v15")
        A("v_cmp_gt_i32 s[48:49], 0, v14")
        A("v_cmp_gt_i32 s[50:51], 1, v14")
        A("v_cmp_le_u32 vcc, 0x1b0, v11")
        A("v_lshrrev_b32 v14, 1, v13")
        A("v_and_b32 v14, 2, v14")
        A("s_or_b64 s[48:49], s[48:49], vcc")
        A("s_or_b64 s[50:51], s[50:51], vcc")
        A("v_xor_b32 v14, v14, v10")
        A(f"v_cndmask_b32 v{SO+1+2*k}, v15, v83, s[48:49]")
        A(f"v_cndmask_b32 v{SO+2*k}, v82, v83, s[50:51]")
        A("v_lshlrev_b32 v14, 4, v14")
        A("v_lshl_add_u32 v14, v13, 6, v14")
        A("v_lshl_add_u32 v14, v12, 15, v14")
        A("v_add_u32 v14, s46, v14")
        A(f"v_cndmask_b32 v{SS+k}, v14, v83, vcc")

def wdma_addr(A):
    A("v_lshrrev_b32 v6, 3, v5")
    A("s_lshl_b32 s44, s40, 3")
    A("v_add_u32 v6, s44, v6")
    A("v_and_b32 v7, 7, v5")
    A("v_lshrrev_b32 v8, 1, v6")
    A("v_and_b32 v8, 1, v8")
    A("v_lshrrev_b32 v9, 2, v6")
    A("v_and_b32 v9, 2, v9")
    A("v_or_b32 v8, v9, v8")
    A("v_lshrrev_b32 v9, 1, v7")
    A("v_xor_b32 v8, v8, v9")
    A("v_lshlrev_b32 v8, 5, v8")
    A("v_and_b32 v9, 1, v7")
    A("v_lshl_add_u32 v8, v9, 4, v8")
    A("v_lshl_add_u32 v8, v6, 10, v8")
    A("s_lshl_b32 s44, s28, 7")
    A("v_add_u32 v1, s44, v8")
    A("s_lshl_b32 s42, s40, 10")
    A(f"s_add_u32 s42, s42, {WRING}")

def dma_text(sig, creg):
    out = []
    a = sig & 15
    for tile, tap in ((0, min(2 * a + 1, 30)), (1, 2 * a)):
        out.append(f"s_add_u32 m0, s42, {(sig % NSLOT) * WSLOT + tile * 4096}")
        if creg is None: out.append(f"s_mov_b32 s45, {tap * 262144}")
        else: out.append(f"s_add_u32 s45, {creg}, {tap * 262144}")
        out.append(f"buffer_load_dwordx4 v1, s[20:23], s45 offen lds")
    return out

def gen_main(opt):
    A = Asm()
    A.raw(f".globl {MAIN}\n.p2align 8\n.type {MAIN},@function\n{MAIN}:")
    A("s_cmp_ge_u32 s2, 256")
    A("s_cbranch_scc1 L_end")
    A("s_load_dwordx4 s[4:7], s[0:1], 0")
    A("s_load_dwordx4 s[8:11], s[0:1], 16")
    A("s_load_dwordx4 s[12:15], s[0:1], 32")
    stamp(A, 0, opt)
    dstamp(A, 0, opt)
    A("v_lshrrev_b32 v1, 6, v0")
    A("v_and_b32 v5, 63, v0")
    A("v_readfirstlane_b32 s30, v1")
    if opt.map == "n8":
        A("s_and_b32 s28, s2, 7")
        A("s_lshr_b32 s29, s2, 3")
    elif opt.map == "m4":
        A("s_and_b32 s29, s2, 7")
        A("s_lshl_b32 s29, s29, 2")
        A("s_lshr_b32 s28, s2, 3")
        A("s_lshr_b32 s35, s28, 3")
        A("s_add_u32 s29, s29, s35")
        A("s_and_b32 s28, s28, 7")
    else:
        A("s_lshr_b32 s35, s2, 3")
        A("s_and_b32 s28, s2, 1")
        A("s_lshl_b32 s28, s28, 2")
        A("s_and_b32 s29, s35, 3")
        A("s_add_u32 s28, s28, s29")
        A("s_lshr_b32 s29, s2, 1")
        A("s_and_b32 s29, s29, 3")
        A("s_lshl_b32 s29, s29, 3")
        A("s_lshr_b32 s35, s35, 2")
        A("s_add_u32 s29, s29, s35")
    A("s_and_b32 s31, s29, 7")
    A("s_lshl_b32 s31, s31, 7")
    A("s_lshr_b32 s32, s29, 3")
    A("s_and_b32 s33, s32, 1")
    A("s_lshr_b32 s34, s32, 1")
    A("s_mov_b32 s36, 0xffff0000")
    A("s_mov_b32 s91, 0x00003f80")
    A("s_mov_b32 s92, 0x3f800000")
    A(f"s_mov_b32 s37, {XBUF}")
    A("s_mul_i32 s35, s34, 2048000")
    A("s_and_b32 s40, s30, 3")
    A("s_cmp_ge_u32 s30, 4")
    A("s_cbranch_scc1 L_prod")

    pair_addr(A)
    dstamp(A, 1, opt)
    A("s_waitcnt lgkmcnt(0)")
    A("s_add_u32 s16, s4, s35")
    A("s_addc_u32 s17, s5, 0")
    A("s_mov_b32 s18, 2048000")
    A("s_mov_b32 s19, 0x20000")
    job_loads(A, RAW, XO, NPT)
    A("s_mov_b32 s20, s6")
    A("s_mov_b32 s21, s7")
    A(f"s_mov_b32 s22, {31*256*512*2}")
    A("s_mov_b32 s23, 0x20000")
    A("s_mov_b32 s24, s14")
    A("s_mov_b32 s25, s15")
    A(f"s_mov_b32 s26, {WS_BYTES}")
    A("s_mov_b32 s27, 0x20000")
    dstamp(A, 2, opt)
    for q in ("Q1", "Q2", "Q0"):
        for i in range(32): A(f"v_mov_b32 v{ACC[q]+i}, 0")
    dstamp(A, 3, opt)
    if opt.dstamps:
        A(f"s_waitcnt vmcnt({3*(NPT-1)})")
        dstamp(A, 4, opt)
    pair_compute(A)
    dstamp(A, 5, opt)
    A("v_and_b32 v6, 15, v5")
    A("v_lshrrev_b32 v7, 4, v5")
    for q0, reg in ((0, V_XA0), (1, V_XA1), (2, V_XA2)):
        A(f"v_add_u32 v8, {q0}, v6")
        A("v_lshrrev_b32 v8, 1, v8")
        A("v_and_b32 v8, 2, v8")
        A("v_xor_b32 v8, v8, v7")
        A("v_lshlrev_b32 v8, 4, v8")
        A(f"v_lshl_add_u32 v{reg}, v6, 6, v8")
    A("v_lshrrev_b32 v8, 2, v6")
    A("v_and_b32 v9, 3, v6")
    A("v_lshrrev_b32 v10, 1, v8")
    A("v_and_b32 v10, 1, v10")
    A("v_and_b32 v11, 1, v7")
    A("v_lshl_or_b32 v10, v11, 1, v10")
    A("v_xor_b32 v10, s30, v10")
    A("v_lshlrev_b32 v10, 5, v10")
    A("v_lshl_add_u32 v11, v7, 3, v8")
    A("v_lshl_add_u32 v10, v11, 7, v10")
    A("v_lshl_add_u32 v10, v9, 3, v10")
    A(f"v_add_u32 v{V_WA}, {WRING}, v10")
    A("s_waitcnt vmcnt(0) lgkmcnt(0)")
    dstamp(A, 6, opt)
    A("s_barrier")
    dstamp(A, 7, opt)
    stamp(A, 1, opt)
    tr = LdsTracker()
    pro = w_read(0, 0, wset(0)) + w_read(0, 1, wset(0) + 4)
    for jj in range(7, -1, -1): pro.append(x_read("D1", 16 + jj, WIN["D1"] + 4 * jj, nxt=True))
    pro += w_read(1, 0, wset(1)) + w_read(1, 1, wset(1) + 4)
    for arr in ("D2", "X0"):
        for jj in range(7, -1, -1): pro.append(x_read(arr, 16 + jj, WIN[arr] + 4 * jj, nxt=True))
    pro += ws_valu(wset(0))
    emit_with_waits(A, pro, tr)
    A("s_waitcnt lgkmcnt(0)")
    dstamp(A, 8, opt)
    tr.waitall()
    A("s_mov_b32 s38, 8")
    if opt.cstamps:
        A("s_memtime s[84:85]")
        A("s_waitcnt lgkmcnt(0)")
    def body(AA, tr):
        for a in range(16):
            if a == 15:
                AA("s_waitcnt lgkmcnt(0)"); tr.waitall()
            ops = gen_period(a, opt)
            if opt.bar_after:
                k = opt.bar_after
                mi = [i for i, o in enumerate(ops) if o[0] == "mfma"]
                head = [ops[i] for i in mi[:k]]
                moved = [o for i, o in enumerate(ops[:mi[k-1]+1]) if o[0] == "lds"]
                keepv = [(i, o) for i, o in enumerate(ops[:mi[k-1]+1]) if o[0] != "lds"]
                ops = [o for i, o in keepv] + [("bar", "s_barrier", [], [])] + moved + ops[mi[k-1]+1:]
            else:
                ops = [("bar", "s_barrier", [], [])] + ops
            emit_with_waits(AA, ops, tr)
    body(Null(), tr)
    if opt.align: A.raw(".p2align 6")
    A.label("L_cloop")
    body(A, tr)
    if opt.cstamps:
        A("s_mov_b32 m0, s38")
        A("s_nop 0")
        A("v_writelane_b32 v244, s84, m0")
        A("s_memtime s[84:85]")
    A("s_sub_u32 s38, s38, 1")
    A("s_cmp_lg_u32 s38, 0")
    A("s_cbranch_scc1 L_cloop")
    if opt.cstamps:
        A("s_waitcnt lgkmcnt(0)")
        A("v_writelane_b32 v244, s84, 0")
    stamp(A, 2, opt)
    A("v_and_b32 v6, 15, v5")
    A("v_lshrrev_b32 v7, 4, v5")
    A("s_lshl_b32 s39, s30, 2")
    A("v_add_u32 v8, s39, v7")
    A("v_and_b32 v9, 7, v6")
    A("v_lshlrev_b32 v9, 1, v9")
    A("v_xor_b32 v8, v8, v9")
    A("v_lshlrev_b32 v8, 3, v8")
    A("v_lshl_add_u32 v1, v6, 7, v8")
    A(f"v_add_u32 v1, {HST}, v1")
    A("s_nop 4")
    A("s_waitcnt lgkmcnt(0)")
    for m in range(8):
        for q, acc in ((0, "Q1"), (1, "Q2")):
            a0 = ACC["Q0"] + 4 * m; a1 = ACC[acc] + 4 * m
            t = 8 + 8 * ((2 * m + q) % 4)
            A(f"v_pk_add_f32 {vr(t,2)}, {vr(a0,2)}, {vr(a1,2)}")
            A(f"v_pk_add_f32 {vr(t+2,2)}, {vr(a0+2,2)}, {vr(a1+2,2)}")
            A(f"v_cvt_pk_bf16_f32 v{t+4}, v{t}, v{t+1}")
            A(f"v_cvt_pk_bf16_f32 v{t+5}, v{t+2}, v{t+3}")
            A(f"ds_write_b64 v1, {vr(t+4,2)} offset:{(2*m+q)*16*128}")
    A("s_waitcnt lgkmcnt(0)")
    A("s_branch L_store")

    srd_x = ["s_add_u32 s16, s4, s35", "s_addc_u32 s17, s5, 0", "s_mov_b32 s18, 2048000", "s_mov_b32 s19, 0x20000"]
    srd_w = ["s_mov_b32 s20, s6", "s_mov_b32 s21, s7", f"s_mov_b32 s22, {31*256*512*2}", "s_mov_b32 s23, 0x20000"]
    srd_s = ["s_mov_b32 s24, s14", "s_mov_b32 s25, s15", f"s_mov_b32 s26, {WS_BYTES}", "s_mov_b32 s27, 0x20000"]
    class Role:
        def __init__(self): self.vm = []; self.waits = {}; self.mode = "sim"; self.E = Null()
        def cnt(self, tag):
            l = [i for i, x in enumerate(self.vm) if x == tag]
            if not l: return 63
            return len(self.vm) - max(l) - 1
        def site(self, key, tag, extra=""):
            if self.mode == "sim": self.waits[key] = min(self.waits.get(key, 63), self.cnt(tag), 63)
            else: self.E(f"s_waitcnt vmcnt({self.waits[key]}){extra}")
    def wodma(R, i0):
        R.E(f"s_add_u32 m0, s56, {i0*1024}")
        R.E(f"s_add_u32 s45, s56, {i0*1024}")
        R.E(f"buffer_load_dwordx4 v8, s[52:55], s45 offen lds")
        R.vm.append("wo")
    def wo_setup(E):
        for l in ["s_mov_b32 s52, s8", "s_mov_b32 s53, s9", "s_mov_b32 s54, 131072", "s_mov_b32 s55, 0x20000",
                  "s_and_b32 s40, s30, 3", "s_lshl_b32 s56, s40, 10",
                  "v_lshrrev_b32 v12, 5, v5", "s_and_b32 s44, s40, 1", "s_lshl_b32 s44, s44, 1", "v_add_u32 v13, s44, v12",
                  "v_lshlrev_b32 v13, 2, v13", "v_and_b32 v8, 31, v5", "v_xor_b32 v8, v8, v13", "v_lshlrev_b32 v8, 4, v8",
                  "v_lshl_add_u32 v8, v12, 9, v8"]: E(l)
    def wo_sched(R, a):
        if a < 8: wodma(R, 4 * a)
        else:
            for k in range(2): wodma(R, 64 + 8 * (a - 8) + 4 * k)
        if a == 15:
            for k in range(8): wodma(R, 32 + 4 * k)

    A.label("L_prod")
    A("s_cmp_ge_u32 s30, 6")
    A("s_cbranch_scc1 L_aux")
    RW = Role()
    def wdma(R, sig, creg):
        a = sig & 15
        for tile, tap in ((0, min(2 * a + 1, 30)), (1, 2 * a)):
            for h in range(2):
                R.E(f"s_add_u32 m0, s42, {(sig % NSLOT) * WSLOT + tile * 4096 + h * 2048}")
                if creg is None: R.E(f"s_mov_b32 s45, {tap * 262144 + h * 16384}")
                else: R.E(f"s_add_u32 s45, {creg}, {tap * 262144 + h * 16384}")
                R.E(f"buffer_load_dwordx4 v1, s[20:23], s45 offen lds")
                R.vm.append(("w", sig))
    def w_prologue(R):
        E = R.E
        for sg in range(opt.w_early): wdma(R, sg, None)
        E("s_mov_b32 s50, 0"); E("s_mov_b32 s51, 32768")
        R.site(("p1",), ("w", 1))
        if R.mode == "emit": dstamp(A, 6, opt)
        E("s_barrier")
        if R.mode == "emit": dstamp(A, 7, opt)
        for sg in range(opt.w_early, 8): wdma(R, sg, None)
        R.site(("p2",), ("w", 2))
        if R.mode == "emit": dstamp(A, 9, opt)
    def w_body(R, kind, c):
        E = R.E
        for a in range(16):
            s = 16 * c + a
            if kind == "first" and R.mode == "emit": dstamp(A, 32 + a, opt)
            E("s_barrier")
            if kind == "first" and R.mode == "emit": dstamp(A, 16 + a, opt)
            sig = s + 8
            if sig < 128: wdma(R, sig, "s51" if a >= 8 else "s50")
            if kind == "last": wo_sched(R, a)
            if a == 15 and kind != "last":
                E("s_mov_b32 s50, s51"); E("s_add_u32 s51, s51, 32768")
            if s + 3 < 128: R.site(("w", kind, a), ("w", s + 3))
    def w_all(R, loop):
        w_prologue(R)
        w_body(R, "first", 0)
        if loop:
            A("s_mov_b32 s38, 6"); A.label("L_wloop")
            w_body(R, "mid", 1)
            A("s_sub_u32 s38, s38, 1"); A("s_cmp_lg_u32 s38, 0"); A("s_cbranch_scc1 L_wloop")
        else:
            for c in range(1, 7): w_body(R, "mid", c)
        wo_setup(R.E)
        w_body(R, "last", 7)
    wdma_addr(A)
    dstamp(A, 1, opt)
    A("s_waitcnt lgkmcnt(0)")
    for l in srd_w + srd_s + srd_x: A(l)
    w_all(RW, False)
    RW.vm = []; RW.mode = "emit"; RW.E = A
    w_all(RW, True)
    A("s_branch L_store_p")

    A.label("L_aux")
    RA = Role()
    A("s_and_b32 s40, s30, 1")
    shared_addr(A)
    A("v_and_b32 v11, 15, v5")
    A("s_lshl_b32 s44, s40, 4")
    A("v_add_u32 v11, s44, v11")
    A("v_lshlrev_b32 v11, 10, v11")
    A("s_lshl_b32 s44, s28, 7")
    A("v_add_u32 v11, s44, v11")
    A("s_mul_i32 s44, s29, 262144")
    A("v_add_u32 v82, s44, v11")
    A("s_mov_b32 s90, 32768")
    A("s_and_b32 s44, s29, 15")
    A("s_lshl_b32 s44, s44, 1")
    A("s_add_u32 s44, s44, s40")
    A("s_lshl_b32 s44, s44, 5")
    A("v_and_b32 v83, 31, v5")
    A("v_add_u32 v83, s44, v83")
    A("v_lshlrev_b32 v83, 7, v83")
    A("v_lshlrev_b32 v2, 4, v5")
    A("s_lshl_b32 s56, s40, 10")
    A("s_lshl_b32 s57, s29, 18")
    A("s_add_u32 s57, s57, s56")
    A(f"s_add_u32 s57, s57, {WS_XIMG + 2*32768}")
    A("s_mov_b32 s58, s56")
    A("v_mov_b32 v86, 0")
    A("s_lshl_b32 s59, s29, 3")
    A("s_add_u32 s59, s59, s28")
    A("s_lshl_b32 s59, s59, 7")
    A(f"s_add_u32 s59, s59, {WS_FLAGS}")
    A("v_mov_b32 v84, s59")
    A("v_and_b32 v85, 7, v5")
    A("s_lshl_b32 s59, s29, 10")
    A(f"s_add_u32 s59, s59, {WS_FLAGS}")
    A("v_lshl_add_u32 v85, v85, 7, s59")
    dstamp(A, 1, opt)
    A("s_waitcnt lgkmcnt(0)")
    for l in srd_x + srd_w + srd_s: A(l)
    def xdma(R, c1, k):
        R.E(f"s_add_u32 m0, s58, {k*2048}")
        R.E(f"s_add_u32 s45, s57, {k*2048}")
        R.E(f"buffer_load_dwordx4 v2, s[24:27], s45 offen {'' if opt.xplain else 'sc1 '}lds")
        R.vm.append(("x", c1))
    def spin(R, name, load, check, fail_branch):
        E = R.E
        E("s_mov_b32 s46, 0x100000")
        if R.mode == "emit": A.label(f"L_{name}spin")
        E("s_sleep 2"); E(load); E("s_waitcnt vmcnt(0)")
        for l in check[0]: E(l)
        E("s_sub_u32 s46, s46, 1"); E("s_cmp_eq_u32 s46, 0"); E(f"s_cbranch_scc1 L_{name}ok")
        for l in check[1]: E(l)
        E(f"{fail_branch} L_{name}spin")
        if R.mode == "emit": A.label(f"L_{name}ok")
    def xstores(R, t):
        E = R.E
        E(f"s_mov_b32 s45, {XARR}")
        E(f"s_mov_b32 s46, {2*XARR}")
        E(f"buffer_store_dwordx4 {vr(128 + 8*t)}, v{SS+t}, s[24:27], 0 offen sc1")
        E(f"buffer_store_dwordx4 {vr(132 + 8*t)}, v{SS+t}, s[24:27], s45 offen sc1")
        E(f"buffer_store_dwordx4 {vr(RAW2 + 12*t + 4)}, v{SS+t}, s[24:27], s46 offen sc1")
        R.vm.extend(["xs"] * 3)
    def a_prologue(R):
        E = R.E
        for t in range(4):
            b_ = RAW2 + 12 * t
            E(f"buffer_load_dwordx4 {vr(b_)}, v{SO+2*t}, s[16:19], 0 offen")
            E(f"buffer_load_dwordx4 {vr(b_+4)}, v{SO+1+2*t}, s[16:19], 0 offen")
            E(f"buffer_load_dwordx4 {vr(b_+8)}, v{SO+1+2*t}, s[16:19], 0 offen offset:1024")
            R.vm.extend([("x2", t)] * 3)
        if R.mode == "emit":
            for l in ["s_cmp_lg_u32 s2, 0", "s_cbranch_scc1 L_nononce", "s_cmp_lg_u32 s30, 6", "s_cbranch_scc1 L_nononce",
                      "s_memrealtime s[46:47]", "s_waitcnt lgkmcnt(0)", "s_or_b32 s46, s46, 1", "v_mov_b32 v7, s46",
                      "s_mov_b64 exec, 1", "global_store_dword v86, v7, s[12:13] sc1", "s_mov_b64 exec, -1"]: A(l)
            A.label("L_nononce")
            dstamp(A, 3, opt)
        if R.mode == "emit": dstamp(A, 6, opt)
        E("s_barrier")
        if R.mode == "emit": dstamp(A, 7, opt)
        for t in range(opt.nwin):
            R.site(("x2", t), ("x2", t))
            if R.mode == "emit": job_valu(A, RAW2 + 12 * t, 128 + 8 * t, 132 + 8 * t)
        if R.mode == "emit": dstamp(A, 9, opt)
    def a_body(R, kind, c):
        E = R.E
        for a in range(16):
            if kind == "first" and R.mode == "emit": dstamp(A, 32 + a, opt)
            E("s_barrier")
            if kind == "first" and R.mode == "emit": dstamp(A, 16 + a, opt)
            if opt.prefetch and kind != "last" and a == opt.pf_a:
                E("buffer_load_dword v119, v82, s[20:23], s90 offen")
                E("s_add_u32 s90, s90, 32768")
                R.vm.append("pf")
            if opt.prefetch and kind == "first" and a == 12:
                E("global_load_dword v118, v83, s[8:9]")
                R.vm.append("pf")
            if kind == "first":
                rem = [(t, d) for t in range(opt.nwin, 4) for d in range(4)]
                for (t, d) in rem[2*a:2*a+2]:
                    if d == 0: R.site(("x2", t), ("x2", t))
                    if R.mode == "emit": job_valu(A, RAW2 + 12 * t, 128 + 8 * t, 132 + 8 * t, [d])
                st_at = {0: opt.st0, 1: opt.st0 + 2, 2: opt.st0 + 4, 3: opt.st0 + 6}
                for t in range(4):
                    if a == st_at[t]: xstores(R, t)
                if a == opt.sig_a - 2:
                    E("global_load_dword v87, v86, s[12:13] sc1")
                    R.vm.append("nonce")
                if a == opt.sig_a - 1:
                    R.site(("nonce",), "nonce")
                    E("v_readfirstlane_b32 s47, v87")
                    E("s_cmp_lg_u32 s47, 0")
                    E("s_cbranch_scc1 L_nok")
                    spin(R, "n", "global_load_dword v87, v86, s[12:13] sc1", (["v_readfirstlane_b32 s47, v87"], ["s_cmp_eq_u32 s47, 0"]), "s_cbranch_scc1")
                    R.site(("sig",), "xs")
                if a == opt.sig_a:
                    E("s_cmp_lg_u32 s30, 6")
                    E("s_cbranch_scc1 L_nosig")
                    E("v_mov_b32 v11, s47")
                    E("s_mov_b64 exec, 1")
                    E("global_store_dword v84, v11, s[14:15] sc1")
                    E("s_mov_b64 exec, -1")
                    if R.mode == "emit": A.label("L_nosig")
                if a == opt.poll_a - 2:
                    E("global_load_dword v87, v85, s[14:15] sc1")
                    R.vm.append("poll")
                if a == opt.poll_a - 1:
                    R.site(("poll",), "poll")
                    E("v_cmp_eq_u32 vcc, s47, v87")
                    E("s_nop 1")
                    E("s_cmp_eq_u64 vcc, -1")
                    E("s_cbranch_scc1 L_xok")
                    spin(R, "x", "global_load_dword v87, v85, s[14:15] sc1", (["v_cmp_eq_u32 vcc, s47, v87"], ["s_cmp_eq_u64 vcc, -1"]), "s_cbranch_scc0")
            elif kind == "mid":
                if 1 <= a <= 8:
                    for k in range(2):
                        kk = 2 * (a - 1) + k
                        if kk < 15: xdma(R, c + 1, kk)
                if a == 13: R.site(("xl",), ("x", c + 1))
                if a == 15:
                    E("s_add_u32 s57, s57, 32768")
                    E(f"s_xor_b32 s58, s58, {XBUF}")
            elif kind == "last":
                wo_sched(R, a)
    def a_all(R, loop):
        a_prologue(R)
        a_body(R, "first", 0)
        if loop:
            A("s_mov_b32 s38, 6"); A.label("L_aloop")
            a_body(R, "mid", 1)
            A("s_sub_u32 s38, s38, 1"); A("s_cmp_lg_u32 s38, 0"); A("s_cbranch_scc1 L_aloop")
        else:
            for c in range(1, 7): a_body(R, "mid", c)
        wo_setup(R.E)
        a_body(R, "last", 7)
    a_all(RA, False)
    RA.vm = []; RA.mode = "emit"; RA.E = A
    a_all(RA, True)

    A.label("L_store_p")
    A("s_waitcnt vmcnt(0)")
    A.label("L_store")
    A("s_barrier")
    A("v_and_b32 v1, 7, v0")
    A("v_lshrrev_b32 v2, 3, v0")
    A("v_and_b32 v3, 7, v2")
    A("v_xor_b32 v3, v3, v1")
    A("v_lshlrev_b32 v3, 4, v3")
    A("v_lshl_add_u32 v3, v2, 7, v3")
    A(f"v_add_u32 v3, {HST}, v3")
    for i in range(4): A(f"ds_read_b128 {vr(8+4*i)}, v3 offset:{i*64*128}")
    A("v_lshrrev_b32 v4, 5, v2")
    A("v_lshlrev_b32 v4, 15, v4")
    A("v_and_b32 v2, 31, v2")
    A("v_lshl_add_u32 v4, v2, 7, v4")
    A("v_lshl_add_u32 v4, v1, 4, v4")
    A("s_lshl_b32 s39, s29, 18")
    A("s_lshl_b32 s40, s28, 12")
    A("s_add_u32 s39, s39, s40")
    for i in range(4):
        A(f"s_waitcnt lgkmcnt({3-i})")
        A(f"buffer_store_dwordx4 {vr(8+4*i)}, v4, s[24:27], s39 offen sc1")
        if i < 3: A("s_add_u32 s39, s39, 65536")
    A("v_and_b32 v6, 15, v5")
    A("v_lshrrev_b32 v7, 4, v5")
    A("v_lshrrev_b32 v8, 2, v6")
    A("v_and_b32 v13, 3, v6")
    A("s_lshl_b32 s41, s30, 2")
    A("v_add_u32 v10, s41, v13")
    A("v_lshlrev_b32 v11, 2, v8")
    A("v_xor_b32 v10, v10, v11")
    A("v_lshlrev_b32 v10, 4, v10")
    A("v_lshl_add_u32 v11, v7, 3, v8")
    A("v_lshl_add_u32 v10, v11, 9, v10")
    A("v_add_u32 v12, 0x10000, v10")
    AF = 128
    for kap in range(8):
        for hf in range(2):
            off = kap * 32 * 512 + 8 * hf
            areg = 10 if kap < 4 else 12
            off -= 0 if kap < 4 else 65536
            d = AF + 8 * kap + 4 * hf
            A(f"ds_read_b64_tr_b16 {vr(d,2)}, v{areg} offset:{off}")
            A(f"ds_read_b64_tr_b16 {vr(d+2,2)}, v{areg} offset:{off+2048}")
    A("s_add_u32 s20, s10, s35")
    A("s_addc_u32 s21, s11, 0")
    A("s_mov_b32 s22, 2048000")
    A("s_mov_b32 s23, 0x20000")
    A("v_lshrrev_b32 v2, 4, v0")
    A("v_and_b32 v3, 15, v0")
    A("v_lshrrev_b32 v4, 3, v3")
    A("v_lshlrev_b32 v4, 12, v4")
    A("v_lshl_add_u32 v4, v2, 7, v4")
    A("v_and_b32 v14, 7, v3")
    A("v_lshl_add_u32 v4, v14, 4, v4")
    A("s_lshl_b32 s39, s29, 18")
    A("s_lshl_b32 s40, s28, 15")
    A("s_add_u32 s39, s39, s40")
    A("s_add_u32 s40, s39, 8192")
    A("s_add_u32 s41, s39, 16384")
    A("s_add_u32 s42, s39, 24576")
    A("s_mov_b32 s48, 0xc038aa3b")
    A("s_mov_b32 s49, 0xc038aa3b")
    A("s_mov_b32 s50, 0xbfb8aa3b")
    A("s_mov_b32 s51, 0xbfb8aa3b")
    A("s_mov_b32 s52, 1.0")
    A("s_mov_b32 s53, 1.0")
    A("s_mov_b32 s43, 0x42700000")
    A(f"v_mul_u32_u24 v9, {ZP}, v2")
    A("v_lshl_add_u32 v9, v3, 4, v9")
    A(f"v_add_u32 v9, {HST}, v9")
    A(f"v_mul_u32_u24 v11, {ZP}, v6")
    A("v_lshl_add_u32 v11, v7, 4, v11")
    A(f"v_add_u32 v11, {HST}, v11")
    A("v_lshlrev_b32 v8, 3, v6")
    A("s_add_u32 s44, s31, s28")
    A("v_add_u32 v8, s44, v8")
    A("v_lshlrev_b32 v8, 11, v8")
    A("s_lshl_b32 s44, s33, 9")
    A("s_lshl_b32 s45, s30, 6")
    A("s_add_u32 s44, s44, s45")
    A("v_add_u32 v8, s44, v8")
    A("v_lshl_add_u32 v8, v7, 4, v8")
    A("s_waitcnt vmcnt(0) lgkmcnt(0)")
    A("s_barrier")
    stamp(A, 3, opt)
    A("s_cmp_lg_u32 s30, 6")
    A("s_cbranch_scc1 L_hwait")
    A("v_add_u32 v84, 0x10000, v84")
    A("v_add_u32 v85, 0x10000, v85")
    A("v_mov_b32 v15, s47")
    A("s_mov_b64 exec, 1")
    A("global_store_dword v84, v15, s[14:15] sc1")
    A("s_mov_b64 exec, -1")
    A("s_mov_b32 s46, 0x100000")
    A.label("L_hspin")
    A("global_load_dword v87, v85, s[14:15] sc1")
    A("s_waitcnt vmcnt(0)")
    A("v_cmp_eq_u32 vcc, s47, v87")
    A("s_sub_u32 s46, s46, 1")
    A("s_cmp_eq_u32 s46, 0")
    A("s_cbranch_scc1 L_hwait")
    A("s_cmp_eq_u64 vcc, -1")
    A("s_cbranch_scc0 L_hspin")
    A.label("L_hwait")
    A("s_barrier")
    stamp(A, 4, opt)
    A(f"buffer_load_dwordx4 {vr(16)}, v4, s[24:27], s39 offen sc1")
    A(f"buffer_load_dwordx4 {vr(20)}, v4, s[24:27], s41 offen sc1")
    A(f"buffer_load_dwordx4 {vr(24)}, v4, s[24:27], s40 offen sc1")
    A(f"buffer_load_dwordx4 {vr(28)}, v4, s[24:27], s42 offen sc1")
    A("v_mov_b32 v14, 0xc2700000")
    for half in range(2):
        A(f"s_waitcnt vmcnt({2 if half == 0 else 0})")
        fb, gb = 16 + 8 * half, 20 + 8 * half
        zb = 32 + 4 * half
        for d0 in range(0, 4, 2):
            TT = [(40, d0), (52, d0 + 1)]
            for t, d in TT:
                A(f"v_lshlrev_b32 v{t}, 16, v{fb+d}"); A(f"v_and_b32 v{t+1}, s36, v{fb+d}")
                A(f"v_lshlrev_b32 v{t+2}, 16, v{gb+d}"); A(f"v_and_b32 v{t+3}, s36, v{gb+d}")
            for t, d in TT:
                A(f"v_pk_mul_f32 {vr(t,2)}, {vr(t,2)}, s[48:49]")
                A(f"v_pk_mul_f32 {vr(t+2,2)}, {vr(t+2,2)}, s[50:51]")
            for t, d in TT:
                A(f"v_med3_f32 v{t}, v{t}, s43, v14"); A(f"v_med3_f32 v{t+1}, v{t+1}, s43, v14")
            for t, d in TT:
                A(f"v_exp_f32 v{t+2}, v{t+2}"); A(f"v_exp_f32 v{t+3}, v{t+3}")
            for t, d in TT:
                A(f"v_exp_f32 v{t}, v{t}"); A(f"v_exp_f32 v{t+1}, v{t+1}")
            for t, d in TT:
                A(f"v_pk_add_f32 {vr(t+2,2)}, {vr(t+2,2)}, s[52:53]")
            for t, d in TT:
                A(f"v_pk_add_f32 {vr(t+4,2)}, {vr(t,2)}, s[52:53]")
                A(f"v_pk_add_f32 {vr(t,2)}, {vr(t,2)}, s[52:53] neg_lo:[1,0] neg_hi:[1,0]")
            for t, d in TT:
                A(f"v_pk_mul_f32 {vr(t+4,2)}, {vr(t+4,2)}, {vr(t+2,2)}")
            for t, d in TT:
                A(f"v_rcp_f32 v{t+4}, v{t+4}"); A(f"v_rcp_f32 v{t+5}, v{t+5}")
            A("s_nop 0")
            for t, d in TT:
                A(f"v_pk_mul_f32 {vr(t,2)}, {vr(t,2)}, {vr(t+4,2)}")
            for t, d in TT:
                A(f"v_cvt_pk_bf16_f32 v{zb+d}, v{t}, v{t+1}")
        A(f"ds_write_b128 v9, {vr(zb)} offset:{256*half}")
    A("s_waitcnt lgkmcnt(0)")
    A("s_barrier")
    tr = LdsTracker()
    ACC2 = 64
    BF = 192
    ops = []
    for kap in range(8):
        for tau in range(2):
            d = BF + 8 * (kap % 4) + 4 * tau
            if kap < 4: ops.append(("lds", f"ds_read_b128 {vr(d)}, v11 offset:{tau*16*ZP + kap*64}", rng(d, 4), []))
    for kap in range(8):
        for hf in range(2):
            for tau in range(2):
                acc = ACC2 + 4 * (2 * tau + hf)
                af = AF + 8 * kap + 4 * hf
                bf = BF + 8 * (kap % 4) + 4 * tau
                c = vr(acc) if kap > 0 else "0"
                ops.append(("mfma", f"v_mfma_f32_16x16x32_bf16 {vr(acc)}, {vr(af)}, {vr(bf)}, {c}", [], rng(bf, 4)))
        if kap < 4:
            for tau in range(2):
                d = BF + 8 * (kap % 4) + 4 * tau
                ops.append(("lds", f"ds_read_b128 {vr(d)}, v11 offset:{tau*16*ZP + (kap+4)*64}", rng(d, 4), []))
    emit_with_waits(A, ops, tr)
    A("s_nop 7")
    A("s_nop 1")
    for tau in range(2):
        a_ = ACC2 + 8 * tau
        t = 16 + 4 * tau
        A(f"v_cvt_pk_bf16_f32 v{t}, v{a_}, v{a_+1}")
        A(f"v_cvt_pk_bf16_f32 v{t+1}, v{a_+2}, v{a_+3}")
        A(f"v_cvt_pk_bf16_f32 v{t+2}, v{a_+4}, v{a_+5}")
        A(f"v_cvt_pk_bf16_f32 v{t+3}, v{a_+6}, v{a_+7}")
        A(f"buffer_store_dwordx4 {vr(t)}, v8, s[20:23], 0 offen offset:{1024*tau} {opt.outflags}")
    if opt.stamps:
        A("s_waitcnt vmcnt(0)")
        stamp(A, 5, opt)
        A("s_waitcnt lgkmcnt(0)")
        if opt.dstamps:
            A("s_and_b32 s50, s30, 1")
            A("s_cmp_lg_u32 s50, 0")
            A("s_cbranch_scc1 L_nods")
            A("s_lshl_b32 s50, s2, 10")
            A("s_lshr_b32 s51, s30, 1")
            A("s_lshl_b32 s51, s51, 8")
            A("s_add_u32 s50, s50, s51")
            A(f"s_add_u32 s50, s50, {STAMP_OFF + 131072}")
            A("v_lshl_add_u32 v1, v5, 2, s50")
            A("global_store_dword v1, v245, s[14:15]")
            A.label("L_nods")
        if opt.cstamps:
            A("v_cmp_gt_u32 vcc, 16, v0")
            A("s_and_saveexec_b64 s[48:49], vcc")
            A("s_cbranch_execz L_nocs")
            A("s_lshl_b32 s50, s2, 6")
            A(f"s_add_u32 s50, s50, {STAMP_OFF + 65536}")
            A("v_lshl_add_u32 v1, v0, 2, s50")
            A("global_store_dword v1, v244, s[14:15]")
            A.label("L_nocs")
            A("s_mov_b64 exec, s[48:49]")
        A("v_cmp_eq_u32 vcc, 0, v0")
        A("s_and_saveexec_b64 s[48:49], vcc")
        A("s_cbranch_execz L_end")
        A("s_lshl_b32 s50, s2, 6")
        A(f"s_add_u32 s50, s50, {STAMP_OFF}")
        A("v_mov_b32 v1, s50")
        order = [60, 61, 80, 81, 62, 63, 82, 83, 64, 65, 68, 69, 72, 73, 76, 77]
        for i in range(0, 16, 4):
            for k in range(4): A(f"v_mov_b32 v{4+k}, s{order[i+k]}")
            A(f"global_store_dwordx4 v1, v[4:7], s[14:15] offset:{i*4}")
            A("s_nop 1")
    A.label("L_end")
    A("s_endpgm")
    return A.text()

def kd(name, nv, ns=102):
    return f""".amdhsa_kernel {name}
  .amdhsa_next_free_vgpr {nv}
  .amdhsa_next_free_sgpr {ns}
  .amdhsa_accum_offset {(nv + 3) // 4 * 4}
  .amdhsa_group_segment_fixed_size 0
  .amdhsa_kernarg_size 48
  .amdhsa_user_sgpr_count 2
  .amdhsa_user_sgpr_kernarg_segment_ptr 1
  .amdhsa_system_sgpr_workgroup_id_x 1
.end_amdhsa_kernel
"""

HEADER = """; Kernarg layout for this problem (48 bytes, ptrs only, base s[0:1]):
"""

def main():
    ap = argparse.ArgumentParser()
    ap.add_argument("-o", default="standalone__autoregressive_conv_wavenet__speech.s")
    ap.add_argument("--stamps", action="store_true")
    ap.add_argument("--cap", type=int, default=2)
    ap.add_argument("--outflags", default="")
    ap.add_argument("--cstamps", action="store_true")
    ap.add_argument("--dstamps", action="store_true")
    ap.add_argument("--xplain", action="store_true")
    ap.add_argument("--align", action="store_true")
    ap.add_argument("--no-prefetch", dest="prefetch", action="store_false")
    ap.add_argument("--pf_a", type=int, default=3)
    ap.add_argument("--st0", type=int, default=0)
    ap.add_argument("--nwin", type=int, default=3)
    ap.add_argument("--w_early", type=int, default=4)
    ap.add_argument("--map", default="n4m8")
    ap.add_argument("--sig_a", type=int, default=11)
    ap.add_argument("--poll_a", type=int, default=16)
    ap.add_argument("--wo_gaps", type=lambda s: [int(x) for x in s.split(",")], default=[9, 10])
    ap.add_argument("--we_gaps", type=lambda s: [int(x) for x in s.split(",")], default=[17, 18])
    ap.add_argument("--bar_after", type=int, default=0)
    ap.add_argument("--e64", action="store_true")
    ap.add_argument("--novalu", action="store_true")
    ap.add_argument("--dot2", action="store_true")
    ap.add_argument("--swap", action="store_true")
    opt = ap.parse_args()
    E64[0] = opt.e64; NOVALU[0] = opt.novalu; DOT2[0] = opt.dot2; SWAP[0] = opt.swap
    m = gen_main(opt)
    out = HEADER
    out += f"; @launch grid=(256,1,1) block=(512,1,1) lds={LDS_TOTAL}\n"
    out += '.amdgcn_target "amdgcn-amd-amdhsa--gfx950"\n.text\n'
    out += m
    out += '.section .rodata,"a"\n.p2align 6\n' + kd(MAIN, NV + (2 if (opt.cstamps or opt.dstamps) else 0))
    open(opt.o, "w").write(out)

if __name__ == "__main__":
    main()
```

```python
import sys, argparse

MAIN = "standalone__autoregressive_conv_wavenet__speech_kernel"

XROWG = 19
XARR = 152 * 64
XBUF = 32768
WRING = 65536
WSLOT = 8192
NSLOT = 8
HST = 131072
LDS_TOTAL = 163840
ZP = 528
WS_XIMG = 8 << 20
WS_BYTES = 16 << 20
STAMP_OFF = 16 << 20
WS_FLAGS = 17 << 20

class Asm:
    def __init__(self): self.lines = []
    def __call__(self, s): self.lines.append("    " + s)
    def label(self, s): self.lines.append(s + ":")
    def raw(self, s): self.lines.append(s)
    def text(self): return "\n".join(self.lines) + "\n"
class Null:
    def __call__(self, s): pass
    def label(self, s): pass
    def raw(self, s): pass

def vr(b, n=4): return f"v[{b}:{b+n-1}]"
def rng(b, n): return list(range(b, b + n))

V_XA0, V_XA1, V_XA2, V_WA = 1, 2, 3, 4
TMP = [8, 12]
WSET = {0: 16, 1: 28, 2: 232}
WIN = {"D1": 40, "D2": 72, "X0": 104}
ARR = {"D1": 0, "D2": 1, "X0": 2}
ACC = {"Q1": 136, "Q2": 168, "Q0": 200}
NV = 244

def wset(a):
    a %= 16
    return WSET[2] if a == 0 else WSET[a & 1]

class LdsTracker:
    def __init__(self): self.out = []
    def issue(self, regs): self.out.append(set(regs))
    def need(self, regs):
        regs = set(regs); p = -1
        for i, d in enumerate(self.out):
            if d & regs: p = i
        if p < 0: return None
        n = min(len(self.out) - p - 1, 15)
        self.out = self.out[len(self.out) - n:] if n > 0 else []
        return n
    def waitall(self): self.out = []

def x_read(arr, idx0, dst, nxt=False):
    q0, mp = idx0 >> 3, idx0 & 7
    areg = V_XA2 if nxt else (V_XA0 if q0 == 0 else V_XA1)
    assert (q0 == 2) if nxt else (q0 in (0, 1))
    off = ARR[arr] * XARR + (mp * XROWG + q0) * 64
    return ("lds", f"ds_read_b128 {vr(dst)}, v{areg} offset:{off}", rng(dst, 4), [])

def w_read(slot, tile, dst):
    off = (slot % NSLOT) * WSLOT + tile * 4096
    return [("lds", f"ds_read_b64_tr_b16 {vr(dst,2)}, v{V_WA} offset:{off}", rng(dst, 2), []),
            ("lds", f"ds_read_b64_tr_b16 {vr(dst+2,2)}, v{V_WA} offset:{off+512}", rng(dst + 2, 2), [])]

E64 = [False]
NOVALU = [False]
DOT2 = [False]
SWAP = [False]
def ws_valu(base):
    ops = []
    if NOVALU[0]: return ops
    if DOT2[0]:
        for d0 in (0, 2):
            seq = []
            for d in (d0, d0 + 1):
                o, e = base + d, base + 4 + d
                t = TMP[d & 1]
                seq.append([("valu", f"v_dot2_f32_bf16 v{t}, v{o}, s91, 0", [], [o]),
                            ("valu", f"v_dot2_f32_bf16 v{t+1}, v{o}, s92, 0", [], [o]),
                            ("valu", f"v_dot2_f32_bf16 v{t}, v{e}, s91, v{t}", [], [e]),
                            ("valu", f"v_dot2_f32_bf16 v{t+1}, v{e}, s92, v{t+1}", [], [e]),
                            ("valu", f"v_cvt_pk_bf16_f32 v{base+8+d}, v{t}, v{t+1}", [], [])])
            a_, b_ = seq
            ops += [a_[0], a_[1], a_[2], a_[3], b_[0], b_[1], b_[2], b_[3], a_[4], ("valu", "s_nop 0", [], []), b_[4]] if d0 == 2 else [a_[0], a_[1], a_[2], a_[3], b_[0], b_[1], b_[2], b_[3], a_[4]]
            if d0 == 0: pend = b_[4]
            else: ops.insert(len(ops) - 11 + 3, pend)
        return ops
    for d in range(4):
        o, e, s = base + d, base + 4 + d, base + 8 + d
        t = TMP[d & 1]
        x = "_e64" if E64[0] else ""
        ops += [("valu", f"v_lshlrev_b32{x} v{t}, 16, v{o}", [], [o]),
                ("valu", f"v_lshlrev_b32{x} v{t+1}, 16, v{e}", [], [e]),
                ("valu", f"v_and_b32{x} v{t+2}, s36, v{o}", [], [o]),
                ("valu", f"v_and_b32{x} v{t+3}, s36, v{e}", [], [e]),
                ("valu", f"v_add_f32{x} v{t}, v{t}, v{t+1}", [], []),
                ("valu", f"v_add_f32{x} v{t+2}, v{t+2}, v{t+3}", [], []),
                ("valu", f"v_cvt_pk_bf16_f32 v{s}, v{t}, v{t+2}", [], [])]
    return ops

def gen_period(a, opt):
    cur = wset(a)
    if a <= 14: steps = [("Q1", cur + 0, "D1"), ("Q2", cur + 4, "D2"), ("Q0", cur + 8, "X0")]
    else: steps = [("Q2", cur + 8, "D2"), ("Q0", cur + 8, "X0")]
    ng = 8 * len(steps)
    fill = [[] for _ in range(ng)]
    mf = []
    last = {"D1": 14, "D2": 15, "X0": 15}
    for si, (q, wreg, arr) in enumerate(steps):
        for k in range(8):
            m = 7 - k
            sl = (m - a) % 8
            b = WIN[arr] + 4 * sl
            acc = ACC[q] + 4 * m
            if SWAP[0]: mf.append(("mfma", f"v_mfma_f32_16x16x32_bf16 {vr(acc)}, {vr(b)}, {vr(wreg)}, {vr(acc)}", [], rng(wreg, 4) + rng(b, 4)))
            else: mf.append(("mfma", f"v_mfma_f32_16x16x32_bf16 {vr(acc)}, {vr(wreg)}, {vr(b)}, {vr(acc)}", [], rng(wreg, 4) + rng(b, 4)))
            g = 8 * si + k
            if a == last[arr]: fill[g].append(x_read(arr, 16 + sl, b, nxt=True))
            elif k == 0: fill[g].append(x_read(arr, 15 - a, b))
    def place(ops, gaps):
        for o, g in zip(ops, gaps): fill[g].append(o)
    if a <= 12:
        nb = wset(a + 2)
        place(w_read(a + 2, 0, nb + 0), opt.wo_gaps)
        place(w_read(a + 2, 1, nb + 4), opt.we_gaps)
    elif a == 14:
        nb = wset(0)
        place(w_read(16, 0, nb + 0), [0, 1])
        place(w_read(16, 1, nb + 4), [2, 3])
        place(w_read(15, 1, wset(15) + 8), [4, 5])
    elif a == 15:
        nb = wset(1)
        place(w_read(17, 0, nb + 0), [1, 3])
        place(w_read(17, 1, nb + 4), [9, 11])
    valu = []; g0 = 0
    if a <= 13: valu = ws_valu(wset(a + 1))
    elif a == 14: valu = ws_valu(wset(0)); g0 = 9
    if a == 0: valu = [("valu", f"v_xor_b32 v{V_XA2}, s37, v{V_XA2}", [], [])] + valu
    if a == 15:
        fill[12].append(("valu", f"v_xor_b32 v{V_XA0}, s37, v{V_XA0}", [], []))
        fill[13].append(("valu", f"v_xor_b32 v{V_XA1}, s37, v{V_XA1}", [], []))
    if valu:
        gaps = list(range(g0, ng)); n = len(valu)
        cap = {g: max(0, opt.cap - len(fill[g])) for g in gaps}
        if sum(cap.values()) < n:
            for g in gaps: cap[g] = max(cap[g], 1)
        assert sum(cap.values()) >= n
        tot = sum(cap.values()); i = 0; accq = 0.0
        for g in gaps:
            accq += cap[g] * n / tot
            take = min(int(accq + 1e-9) - i, cap[g])
            for _ in range(take):
                fill[g].append(valu[i]); i += 1
        while i < n:
            fill[ng - 1].append(valu[i]); i += 1
    out = []
    for g in range(ng):
        out.append(mf[g]); out += fill[g]
    return out

def emit_with_waits(A, ops, tr):
    for kind, text, dests, reads in ops:
        if reads:
            n = tr.need(reads)
            if n is not None: A(f"s_waitcnt lgkmcnt({n})")
        A(text)
        if kind == "lds": tr.issue(dests)

NST = 6
def dstamp(A, k, opt):
    if not opt.dstamps: return
    A("s_memtime s[86:87]")
    A("s_waitcnt lgkmcnt(0)")
    A(f"v_writelane_b32 v245, s86, {k}")
def stamp(A, idx, opt):
    if not opt.stamps: return
    A(f"s_memtime s[{60+4*idx}:{61+4*idx}]")
    A(f"s_memrealtime s[{62+4*idx}:{63+4*idx}]")

XO, XW = 110, 120
RAW = 16
PT = 88
PD1, PD2 = 100, 104
NPT = 5
BIG = 0x40000000

def pair_addr(A):
    A("v_lshrrev_b32 v11, 3, v5")
    A("v_and_b32 v12, 7, v5")
    A("s_lshl_b32 s44, s33, 9")
    A("v_mov_b32 v9, 0x40000000")
    A("v_lshl_add_u32 v8, v12, 4, s44")
    A("v_and_b32 v7, 3, v12")
    A("v_lshrrev_b32 v6, 2, v12")
    A("v_lshlrev_b32 v6, 15, v6")
    A(f"v_mul_u32_u24 v10, {XROWG*64}, v11")
    A("v_add_u32 v6, v6, v10")
    for t in range(NPT):
        A(f"s_add_u32 s41, s30, {4*t}")
        A("s_lshl_b32 s42, s41, 3")
        A("s_add_u32 s42, s42, s31")
        A("s_sub_u32 s42, s42, 16")
        A("v_add_u32 v14, s42, v11")
        A("v_lshl_add_u32 v15, v14, 11, v8")
        A("v_add_u32 v10, 0xfffffc00, v15")
        A("v_cmp_gt_i32 s[46:47], 0, v14")
        A("v_cmp_gt_i32 s[48:49], 1, v14")
        if t == NPT - 1:
            A("s_cmp_ge_u32 s41, 18")
            A("s_cselect_b64 s[56:57], -1, 0")
            A("s_or_b64 s[46:47], s[46:47], s[56:57]")
            A("s_or_b64 s[48:49], s[48:49], s[56:57]")
        A("s_lshr_b32 s42, s41, 1")
        A("s_and_b32 s42, s42, 2")
        A(f"v_cndmask_b32 v{XO+1+2*t}, v15, v9, s[46:47]")
        A(f"v_cndmask_b32 v{XO+2*t}, v10, v9, s[48:49]")
        A("v_xor_b32 v13, s42, v7")
        A("v_lshl_add_u32 v13, v13, 4, v6")
        A("s_lshl_b32 s41, s41, 6")
        A(f"v_add_u32 v{XW+t}, s41, v13")

def job_loads(A, raw, offs, n):
    for t in range(n):
        b = raw + 12 * t
        A(f"buffer_load_dwordx4 {vr(b)}, v{offs+2*t}, s[16:19], 0 offen")
        A(f"buffer_load_dwordx4 {vr(b+4)}, v{offs+1+2*t}, s[16:19], 0 offen")
        A(f"buffer_load_dwordx4 {vr(b+8)}, v{offs+1+2*t}, s[16:19], 0 offen offset:1024")

def job_valu(A, b, pd1, pd2, ds=range(4)):
    for d in ds:
        m_, x0, x1 = b + d, b + 4 + d, b + 8 + d
        T = PT + 6 * (d & 1)
        A(f"v_lshlrev_b32 v{T}, 16, v{x0}")
        A(f"v_and_b32 v{T+1}, s36, v{x0}")
        A(f"v_lshlrev_b32 v{T+2}, 16, v{x1}")
        A(f"v_and_b32 v{T+3}, s36, v{x1}")
        A(f"v_lshlrev_b32 v{T+4}, 16, v{m_}")
        A(f"v_and_b32 v{T+5}, s36, v{m_}")
        A(f"v_sub_f32 v{T+2}, v{T+2}, v{T}")
        A(f"v_sub_f32 v{T+3}, v{T+3}, v{T+1}")
        A(f"v_sub_f32 v{T+4}, v{T+4}, v{T}")
        A(f"v_sub_f32 v{T+5}, v{T+5}, v{T+1}")
        A(f"v_cvt_pk_bf16_f32 v{pd2+d}, v{T+2}, v{T+3}")
        A(f"v_cvt_pk_bf16_f32 v{pd1+d}, v{T+4}, v{T+5}")

def pair_compute(A):
    for t in range(NPT):
        if t == NPT - 1:
            A("s_cmp_ge_u32 s30, 2")
            A("s_cbranch_scc1 L_pj")
        A(f"s_waitcnt vmcnt({3 * (NPT - 1 - t)})")
        b = RAW + 12 * t
        pd1, pd2 = PD1 + 28 * (t & 1), PD2 + 28 * (t & 1)
        job_valu(A, b, pd1, pd2)
        A(f"ds_write_b128 v{XW+t}, {vr(pd1)} offset:{0*XARR}")
        A(f"ds_write_b128 v{XW+t}, {vr(pd2)} offset:{1*XARR}")
        A(f"ds_write_b128 v{XW+t}, {vr(b+4)} offset:{2*XARR}")
    A.label("L_pj")

RAW2, SO, SS = 16, 64, 72
def shared_addr(A):
    A("v_mov_b32 v83, 0x40000000")
    A("s_lshl_b32 s45, s33, 9")
    A("s_add_u32 s45, s45, 128")
    A("s_mul_i32 s46, s28, %d" % (XROWG * 64))
    A("s_lshl_b32 s44, s29, 18")
    A("s_add_u32 s46, s46, s44")
    A(f"s_add_u32 s46, s46, {WS_XIMG + 2*32768}")
    A("s_add_u32 s44, s31, s28")
    A("s_sub_u32 s44, s44, 16")
    A("s_movk_i32 s55, 911")
    A("v_and_b32 v10, 3, v5")
    for k in range(4):
        A(f"s_add_u32 s41, s40, {2*k}")
        A("s_lshl_b32 s41, s41, 6")
        A("v_add_u32 v11, s41, v5")
        A("v_mul_u32_u24 v12, s55, v11")
        A("v_lshrrev_b32 v12, 16, v12")
        A("v_mul_u32_u24 v13, 72, v12")
        A("v_sub_u32 v13, v11, v13")
        A("v_lshrrev_b32 v13, 2, v13")
        A("v_lshl_add_u32 v14, v13, 3, s44")
        A("v_lshlrev_b32 v15, 11, v14")
        A("v_lshl_add_u32 v15, v12, 6, v15")
        A("v_lshl_add_u32 v15, v10, 4, v15")
        A("v_add_u32 v15, s45, v15")
        A("v_add_u32 v82, 0xfffffc00, v15")
        A("v_cmp_gt_i32 s[48:49], 0, v14")
        A("v_cmp_gt_i32 s[50:51], 1, v14")
        A("v_cmp_le_u32 vcc, 0x1b0, v11")
        A("v_lshrrev_b32 v14, 1, v13")
        A("v_and_b32 v14, 2, v14")
        A("s_or_b64 s[48:49], s[48:49], vcc")
        A("s_or_b64 s[50:51], s[50:51], vcc")
        A("v_xor_b32 v14, v14, v10")
        A(f"v_cndmask_b32 v{SO+1+2*k}, v15, v83, s[48:49]")
        A(f"v_cndmask_b32 v{SO+2*k}, v82, v83, s[50:51]")
        A("v_lshlrev_b32 v14, 4, v14")
        A("v_lshl_add_u32 v14, v13, 6, v14")
        A("v_lshl_add_u32 v14, v12, 15, v14")
        A("v_add_u32 v14, s46, v14")
        A(f"v_cndmask_b32 v{SS+k}, v14, v83, vcc")

def wdma_addr(A):
    A("v_lshrrev_b32 v6, 3, v5")
    A("s_lshl_b32 s44, s40, 3")
    A("v_add_u32 v6, s44, v6")
    A("v_and_b32 v7, 7, v5")
    A("v_lshrrev_b32 v8, 1, v6")
    A("v_and_b32 v8, 1, v8")
    A("v_lshrrev_b32 v9, 2, v6")
    A("v_and_b32 v9, 2, v9")
    A("v_or_b32 v8, v9, v8")
    A("v_lshrrev_b32 v9, 1, v7")
    A("v_xor_b32 v8, v8, v9")
    A("v_lshlrev_b32 v8, 5, v8")
    A("v_and_b32 v9, 1, v7")
    A("v_lshl_add_u32 v8, v9, 4, v8")
    A("v_lshl_add_u32 v8, v6, 10, v8")
    A("s_lshl_b32 s44, s28, 7")
    A("v_add_u32 v1, s44, v8")
    A("s_lshl_b32 s42, s40, 10")
    A(f"s_add_u32 s42, s42, {WRING}")

def dma_text(sig, creg):
    out = []
    a = sig & 15
    for tile, tap in ((0, min(2 * a + 1, 30)), (1, 2 * a)):
        out.append(f"s_add_u32 m0, s42, {(sig % NSLOT) * WSLOT + tile * 4096}")
        if creg is None: out.append(f"s_mov_b32 s45, {tap * 262144}")
        else: out.append(f"s_add_u32 s45, {creg}, {tap * 262144}")
        out.append(f"buffer_load_dwordx4 v1, s[20:23], s45 offen lds")
    return out

def gen_main(opt):
    A = Asm()
    A.raw(f".globl {MAIN}\n.p2align 8\n.type {MAIN},@function\n{MAIN}:")
    A("s_cmp_ge_u32 s2, 256")
    A("s_cbranch_scc1 L_end")
    A("s_load_dwordx4 s[4:7], s[0:1], 0")
    A("s_load_dwordx4 s[8:11], s[0:1], 16")
    A("s_load_dwordx4 s[12:15], s[0:1], 32")
    stamp(A, 0, opt)
    dstamp(A, 0, opt)
    A("v_lshrrev_b32 v1, 6, v0")
    A("v_and_b32 v5, 63, v0")
    A("v_readfirstlane_b32 s30, v1")
    if opt.map == "n8":
        A("s_and_b32 s28, s2, 7")
        A("s_lshr_b32 s29, s2, 3")
    elif opt.map == "m4":
        A("s_and_b32 s29, s2, 7")
        A("s_lshl_b32 s29, s29, 2")
        A("s_lshr_b32 s28, s2, 3")
        A("s_lshr_b32 s35, s28, 3")
        A("s_add_u32 s29, s29, s35")
        A("s_and_b32 s28, s28, 7")
    else:
        A("s_lshr_b32 s35, s2, 3")
        A("s_and_b32 s28, s2, 1")
        A("s_lshl_b32 s28, s28, 2")
        A("s_and_b32 s29, s35, 3")
        A("s_add_u32 s28, s28, s29")
        A("s_lshr_b32 s29, s2, 1")
        A("s_and_b32 s29, s29, 3")
        A("s_lshl_b32 s29, s29, 3")
        A("s_lshr_b32 s35, s35, 2")
        A("s_add_u32 s29, s29, s35")
    A("s_and_b32 s31, s29, 7")
    A("s_lshl_b32 s31, s31, 7")
    A("s_lshr_b32 s32, s29, 3")
    A("s_and_b32 s33, s32, 1")
    A("s_lshr_b32 s34, s32, 1")
    A("s_mov_b32 s36, 0xffff0000")
    A("s_mov_b32 s91, 0x00003f80")
    A("s_mov_b32 s92, 0x3f800000")
    A(f"s_mov_b32 s37, {XBUF}")
    A("s_mul_i32 s35, s34, 2048000")
    A("s_and_b32 s40, s30, 3")
    A("s_cmp_ge_u32 s30, 4")
    A("s_cbranch_scc1 L_prod")

    pair_addr(A)
    dstamp(A, 1, opt)
    A("s_waitcnt lgkmcnt(0)")
    A("s_add_u32 s16, s4, s35")
    A("s_addc_u32 s17, s5, 0")
    A("s_mov_b32 s18, 2048000")
    A("s_mov_b32 s19, 0x20000")
    job_loads(A, RAW, XO, NPT)
    A("s_mov_b32 s20, s6")
    A("s_mov_b32 s21, s7")
    A(f"s_mov_b32 s22, {31*256*512*2}")
    A("s_mov_b32 s23, 0x20000")
    A("s_mov_b32 s24, s14")
    A("s_mov_b32 s25, s15")
    A(f"s_mov_b32 s26, {WS_BYTES}")
    A("s_mov_b32 s27, 0x20000")
    dstamp(A, 2, opt)
    for q in ("Q1", "Q2", "Q0"):
        for i in range(32): A(f"v_mov_b32 v{ACC[q]+i}, 0")
    dstamp(A, 3, opt)
    if opt.dstamps:
        A(f"s_waitcnt vmcnt({3*(NPT-1)})")
        dstamp(A, 4, opt)
    pair_compute(A)
    dstamp(A, 5, opt)
    A("v_and_b32 v6, 15, v5")
    A("v_lshrrev_b32 v7, 4, v5")
    for q0, reg in ((0, V_XA0), (1, V_XA1), (2, V_XA2)):
        A(f"v_add_u32 v8, {q0}, v6")
        A("v_lshrrev_b32 v8, 1, v8")
        A("v_and_b32 v8, 2, v8")
        A("v_xor_b32 v8, v8, v7")
        A("v_lshlrev_b32 v8, 4, v8")
        A(f"v_lshl_add_u32 v{reg}, v6, 6, v8")
    A("v_lshrrev_b32 v8, 2, v6")
    A("v_and_b32 v9, 3, v6")
    A("v_lshrrev_b32 v10, 1, v8")
    A("v_and_b32 v10, 1, v10")
    A("v_and_b32 v11, 1, v7")
    A("v_lshl_or_b32 v10, v11, 1, v10")
    A("v_xor_b32 v10, s30, v10")
    A("v_lshlrev_b32 v10, 5, v10")
    A("v_lshl_add_u32 v11, v7, 3, v8")
    A("v_lshl_add_u32 v10, v11, 7, v10")
    A("v_lshl_add_u32 v10, v9, 3, v10")
    A(f"v_add_u32 v{V_WA}, {WRING}, v10")
    A("s_waitcnt vmcnt(0) lgkmcnt(0)")
    dstamp(A, 6, opt)
    A("s_barrier")
    dstamp(A, 7, opt)
    stamp(A, 1, opt)
    tr = LdsTracker()
    pro = w_read(0, 0, wset(0)) + w_read(0, 1, wset(0) + 4)
    for jj in range(7, -1, -1): pro.append(x_read("D1", 16 + jj, WIN["D1"] + 4 * jj, nxt=True))
    pro += w_read(1, 0, wset(1)) + w_read(1, 1, wset(1) + 4)
    for arr in ("D2", "X0"):
        for jj in range(7, -1, -1): pro.append(x_read(arr, 16 + jj, WIN[arr] + 4 * jj, nxt=True))
    pro += ws_valu(wset(0))
    emit_with_waits(A, pro, tr)
    A("s_waitcnt lgkmcnt(0)")
    dstamp(A, 8, opt)
    tr.waitall()
    A("s_mov_b32 s38, 8")
    if opt.cstamps:
        A("s_memtime s[84:85]")
        A("s_waitcnt lgkmcnt(0)")
    def body(AA, tr):
        for a in range(16):
            if a == 15:
                AA("s_waitcnt lgkmcnt(0)"); tr.waitall()
            ops = gen_period(a, opt)
            if opt.bar_after:
                k = opt.bar_after
                mi = [i for i, o in enumerate(ops) if o[0] == "mfma"]
                head = [ops[i] for i in mi[:k]]
                moved = [o for i, o in enumerate(ops[:mi[k-1]+1]) if o[0] == "lds"]
                keepv = [(i, o) for i, o in enumerate(ops[:mi[k-1]+1]) if o[0] != "lds"]
                ops = [o for i, o in keepv] + [("bar", "s_barrier", [], [])] + moved + ops[mi[k-1]+1:]
            else:
                ops = [("bar", "s_barrier", [], [])] + ops
            emit_with_waits(AA, ops, tr)
    body(Null(), tr)
    if opt.align: A.raw(".p2align 6")
    A.label("L_cloop")
    body(A, tr)
    if opt.cstamps:
        A("s_mov_b32 m0, s38")
        A("s_nop 0")
        A("v_writelane_b32 v244, s84, m0")
        A("s_memtime s[84:85]")
    A("s_sub_u32 s38, s38, 1")
    A("s_cmp_lg_u32 s38, 0")
    A("s_cbranch_scc1 L_cloop")
    if opt.cstamps:
        A("s_waitcnt lgkmcnt(0)")
        A("v_writelane_b32 v244, s84, 0")
    stamp(A, 2, opt)
    A("v_and_b32 v6, 15, v5")
    A("v_lshrrev_b32 v7, 4, v5")
    A("s_lshl_b32 s39, s30, 2")
    A("v_add_u32 v8, s39, v7")
    A("v_and_b32 v9, 7, v6")
    A("v_lshlrev_b32 v9, 1, v9")
    A("v_xor_b32 v8, v8, v9")
    A("v_lshlrev_b32 v8, 3, v8")
    A("v_lshl_add_u32 v1, v6, 7, v8")
    A(f"v_add_u32 v1, {HST}, v1")
    A("s_nop 4")
    A("s_waitcnt lgkmcnt(0)")
    for m in range(8):
        for q, acc in ((0, "Q1"), (1, "Q2")):
            a0 = ACC["Q0"] + 4 * m; a1 = ACC[acc] + 4 * m
            t = 8 + 8 * ((2 * m + q) % 4)
            A(f"v_pk_add_f32 {vr(t,2)}, {vr(a0,2)}, {vr(a1,2)}")
            A(f"v_pk_add_f32 {vr(t+2,2)}, {vr(a0+2,2)}, {vr(a1+2,2)}")
            A(f"v_cvt_pk_bf16_f32 v{t+4}, v{t}, v{t+1}")
            A(f"v_cvt_pk_bf16_f32 v{t+5}, v{t+2}, v{t+3}")
            A(f"ds_write_b64 v1, {vr(t+4,2)} offset:{(2*m+q)*16*128}")
    A("s_waitcnt lgkmcnt(0)")
    A("s_branch L_store")

    srd_x = ["s_add_u32 s16, s4, s35", "s_addc_u32 s17, s5, 0", "s_mov_b32 s18, 2048000", "s_mov_b32 s19, 0x20000"]
    srd_w = ["s_mov_b32 s20, s6", "s_mov_b32 s21, s7", f"s_mov_b32 s22, {31*256*512*2}", "s_mov_b32 s23, 0x20000"]
    srd_s = ["s_mov_b32 s24, s14", "s_mov_b32 s25, s15", f"s_mov_b32 s26, {WS_BYTES}", "s_mov_b32 s27, 0x20000"]
    class Role:
        def __init__(self): self.vm = []; self.waits = {}; self.mode = "sim"; self.E = Null()
        def cnt(self, tag):
            l = [i for i, x in enumerate(self.vm) if x == tag]
            if not l: return 63
            return len(self.vm) - max(l) - 1
        def site(self, key, tag, extra=""):
            if self.mode == "sim": self.waits[key] = min(self.waits.get(key, 63), self.cnt(tag), 63)
            else: self.E(f"s_waitcnt vmcnt({self.waits[key]}){extra}")
    def wodma(R, i0):
        R.E(f"s_add_u32 m0, s56, {i0*1024}")
        R.E(f"s_add_u32 s45, s56, {i0*1024}")
        R.E(f"buffer_load_dwordx4 v8, s[52:55], s45 offen lds")
        R.vm.append("wo")
    def wo_setup(E):
        for l in ["s_mov_b32 s52, s8", "s_mov_b32 s53, s9", "s_mov_b32 s54, 131072", "s_mov_b32 s55, 0x20000",
                  "s_and_b32 s40, s30, 3", "s_lshl_b32 s56, s40, 10",
                  "v_lshrrev_b32 v12, 5, v5", "s_and_b32 s44, s40, 1", "s_lshl_b32 s44, s44, 1", "v_add_u32 v13, s44, v12",
                  "v_lshlrev_b32 v13, 2, v13", "v_and_b32 v8, 31, v5", "v_xor_b32 v8, v8, v13", "v_lshlrev_b32 v8, 4, v8",
                  "v_lshl_add_u32 v8, v12, 9, v8"]: E(l)
    def wo_sched(R, a):
        if a < 8: wodma(R, 4 * a)
        else:
            for k in range(2): wodma(R, 64 + 8 * (a - 8) + 4 * k)
        if a == 15:
            for k in range(8): wodma(R, 32 + 4 * k)

    A.label("L_prod")
    A("s_cmp_ge_u32 s30, 6")
    A("s_cbranch_scc1 L_aux")
    RW = Role()
    def wdma(R, sig, creg):
        a = sig & 15
        for tile, tap in ((0, min(2 * a + 1, 30)), (1, 2 * a)):
            for h in range(2):
                R.E(f"s_add_u32 m0, s42, {(sig % NSLOT) * WSLOT + tile * 4096 + h * 2048}")
                if creg is None: R.E(f"s_mov_b32 s45, {tap * 262144 + h * 16384}")
                else: R.E(f"s_add_u32 s45, {creg}, {tap * 262144 + h * 16384}")
                R.E(f"buffer_load_dwordx4 v1, s[20:23], s45 offen lds")
                R.vm.append(("w", sig))
    def w_prologue(R):
        E = R.E
        for sg in range(opt.w_early): wdma(R, sg, None)
        E("s_mov_b32 s50, 0"); E("s_mov_b32 s51, 32768")
        R.site(("p1",), ("w", 1))
        if R.mode == "emit": dstamp(A, 6, opt)
        E("s_barrier")
        if R.mode == "emit": dstamp(A, 7, opt)
        for sg in range(opt.w_early, 8): wdma(R, sg, None)
        R.site(("p2",), ("w", 2))
        if R.mode == "emit": dstamp(A, 9, opt)
    def w_body(R, kind, c):
        E = R.E
        for a in range(16):
            s = 16 * c + a
            if kind == "first" and R.mode == "emit": dstamp(A, 32 + a, opt)
            E("s_barrier")
            if kind == "first" and R.mode == "emit": dstamp(A, 16 + a, opt)
            sig = s + 8
            if sig < 128: wdma(R, sig, "s51" if a >= 8 else "s50")
            if kind == "last": wo_sched(R, a)
            if a == 15 and kind != "last":
                E("s_mov_b32 s50, s51"); E("s_add_u32 s51, s51, 32768")
            if s + 3 < 128: R.site(("w", kind, a), ("w", s + 3))
    def w_all(R, loop):
        w_prologue(R)
        w_body(R, "first", 0)
        if loop:
            A("s_mov_b32 s38, 6"); A.label("L_wloop")
            w_body(R, "mid", 1)
            A("s_sub_u32 s38, s38, 1"); A("s_cmp_lg_u32 s38, 0"); A("s_cbranch_scc1 L_wloop")
        else:
            for c in range(1, 7): w_body(R, "mid", c)
        wo_setup(R.E)
        w_body(R, "last", 7)
    wdma_addr(A)
    dstamp(A, 1, opt)
    A("s_waitcnt lgkmcnt(0)")
    for l in srd_w + srd_s + srd_x: A(l)
    w_all(RW, False)
    RW.vm = []; RW.mode = "emit"; RW.E = A
    w_all(RW, True)
    A("s_branch L_store_p")

    A.label("L_aux")
    RA = Role()
    A("s_and_b32 s40, s30, 1")
    shared_addr(A)
    A("v_and_b32 v11, 15, v5")
    A("s_lshl_b32 s44, s40, 4")
    A("v_add_u32 v11, s44, v11")
    A("v_lshlrev_b32 v11, 10, v11")
    A("s_lshl_b32 s44, s28, 7")
    A("v_add_u32 v11, s44, v11")
    A("s_mul_i32 s44, s29, 262144")
    A("v_add_u32 v82, s44, v11")
    A("s_mov_b32 s90, 32768")
    A("s_and_b32 s44, s29, 15")
    A("s_lshl_b32 s44, s44, 1")
    A("s_add_u32 s44, s44, s40")
    A("s_lshl_b32 s44, s44, 5")
    A("v_and_b32 v83, 31, v5")
    A("v_add_u32 v83, s44, v83")
    A("v_lshlrev_b32 v83, 7, v83")
    A("v_lshlrev_b32 v2, 4, v5")
    A("s_lshl_b32 s56, s40, 10")
    A("s_lshl_b32 s57, s29, 18")
    A("s_add_u32 s57, s57, s56")
    A(f"s_add_u32 s57, s57, {WS_XIMG + 2*32768}")
    A("s_mov_b32 s58, s56")
    A("v_mov_b32 v86, 0")
    A("s_lshl_b32 s59, s29, 3")
    A("s_add_u32 s59, s59, s28")
    A("s_lshl_b32 s59, s59, 7")
    A(f"s_add_u32 s59, s59, {WS_FLAGS}")
    A("v_mov_b32 v84, s59")
    A("v_and_b32 v85, 7, v5")
    A("s_lshl_b32 s59, s29, 10")
    A(f"s_add_u32 s59, s59, {WS_FLAGS}")
    A("v_lshl_add_u32 v85, v85, 7, s59")
    dstamp(A, 1, opt)
    A("s_waitcnt lgkmcnt(0)")
    for l in srd_x + srd_w + srd_s: A(l)
    def xdma(R, c1, k):
        R.E(f"s_add_u32 m0, s58, {k*2048}")
        R.E(f"s_add_u32 s45, s57, {k*2048}")
        R.E(f"buffer_load_dwordx4 v2, s[24:27], s45 offen {'' if opt.xplain else 'sc1 '}lds")
        R.vm.append(("x", c1))
    def spin(R, name, load, check, fail_branch):
        E = R.E
        E("s_mov_b32 s46, 0x100000")
        if R.mode == "emit": A.label(f"L_{name}spin")
        E("s_sleep 2"); E(load); E("s_waitcnt vmcnt(0)")
        for l in check[0]: E(l)
        E("s_sub_u32 s46, s46, 1"); E("s_cmp_eq_u32 s46, 0"); E(f"s_cbranch_scc1 L_{name}ok")
        for l in check[1]: E(l)
        E(f"{fail_branch} L_{name}spin")
        if R.mode == "emit": A.label(f"L_{name}ok")
    def xstores(R, t):
        E = R.E
        E(f"s_mov_b32 s45, {XARR}")
        E(f"s_mov_b32 s46, {2*XARR}")
        E(f"buffer_store_dwordx4 {vr(128 + 8*t)}, v{SS+t}, s[24:27], 0 offen sc1")
        E(f"buffer_store_dwordx4 {vr(132 + 8*t)}, v{SS+t}, s[24:27], s45 offen sc1")
        E(f"buffer_store_dwordx4 {vr(RAW2 + 12*t + 4)}, v{SS+t}, s[24:27], s46 offen sc1")
        R.vm.extend(["xs"] * 3)
    def a_prologue(R):
        E = R.E
        for t in range(4):
            b_ = RAW2 + 12 * t
            E(f"buffer_load_dwordx4 {vr(b_)}, v{SO+2*t}, s[16:19], 0 offen")
            E(f"buffer_load_dwordx4 {vr(b_+4)}, v{SO+1+2*t}, s[16:19], 0 offen")
            E(f"buffer_load_dwordx4 {vr(b_+8)}, v{SO+1+2*t}, s[16:19], 0 offen offset:1024")
            R.vm.extend([("x2", t)] * 3)
        if R.mode == "emit":
            for l in ["s_cmp_lg_u32 s2, 0", "s_cbranch_scc1 L_nononce", "s_cmp_lg_u32 s30, 6", "s_cbranch_scc1 L_nononce",
                      "s_memrealtime s[46:47]", "s_waitcnt lgkmcnt(0)", "s_or_b32 s46, s46, 1", "v_mov_b32 v7, s46",
                      "s_mov_b64 exec, 1", "global_store_dword v86, v7, s[12:13] sc1", "s_mov_b64 exec, -1"]: A(l)
            A.label("L_nononce")
            dstamp(A, 3, opt)
        if R.mode == "emit": dstamp(A, 6, opt)
        E("s_barrier")
        if R.mode == "emit": dstamp(A, 7, opt)
        for t in range(opt.nwin):
            R.site(("x2", t), ("x2", t))
            if R.mode == "emit": job_valu(A, RAW2 + 12 * t, 128 + 8 * t, 132 + 8 * t)
        if R.mode == "emit": dstamp(A, 9, opt)
    def a_body(R, kind, c):
        E = R.E
        for a in range(16):
            if kind == "first" and R.mode == "emit": dstamp(A, 32 + a, opt)
            E("s_barrier")
            if kind == "first" and R.mode == "emit": dstamp(A, 16 + a, opt)
            if opt.prefetch and kind != "last" and a == opt.pf_a:
                E("buffer_load_dword v119, v82, s[20:23], s90 offen")
                E("s_add_u32 s90, s90, 32768")
                R.vm.append("pf")
            if opt.prefetch and kind == "first" and a == 12:
                E("global_load_dword v118, v83, s[8:9]")
                R.vm.append("pf")
            if kind == "first":
                rem = [(t, d) for t in range(opt.nwin, 4) for d in range(4)]
                for (t, d) in rem[2*a:2*a+2]:
                    if d == 0: R.site(("x2", t), ("x2", t))
                    if R.mode == "emit": job_valu(A, RAW2 + 12 * t, 128 + 8 * t, 132 + 8 * t, [d])
                st_at = {0: opt.st0, 1: opt.st0 + 2, 2: opt.st0 + 4, 3: opt.st0 + 6}
                for t in range(4):
                    if a == st_at[t]: xstores(R, t)
                if a == opt.sig_a - 2:
                    E("global_load_dword v87, v86, s[12:13] sc1")
                    R.vm.append("nonce")
                if a == opt.sig_a - 1:
                    R.site(("nonce",), "nonce")
                    E("v_readfirstlane_b32 s47, v87")
                    E("s_cmp_lg_u32 s47, 0")
                    E("s_cbranch_scc1 L_nok")
                    spin(R, "n", "global_load_dword v87, v86, s[12:13] sc1", (["v_readfirstlane_b32 s47, v87"], ["s_cmp_eq_u32 s47, 0"]), "s_cbranch_scc1")
                    R.site(("sig",), "xs")
                if a == opt.sig_a:
                    E("s_cmp_lg_u32 s30, 6")
                    E("s_cbranch_scc1 L_nosig")
                    E("v_mov_b32 v11, s47")
                    E("s_mov_b64 exec, 1")
                    E("global_store_dword v84, v11, s[14:15] sc1")
                    E("s_mov_b64 exec, -1")
                    if R.mode == "emit": A.label("L_nosig")
                if a == opt.poll_a - 2:
                    E("global_load_dword v87, v85, s[14:15] sc1")
                    R.vm.append("poll")
                if a == opt.poll_a - 1:
                    R.site(("poll",), "poll")
                    E("v_cmp_eq_u32 vcc, s47, v87")
                    E("s_nop 1")
                    E("s_cmp_eq_u64 vcc, -1")
                    E("s_cbranch_scc1 L_xok")
                    spin(R, "x", "global_load_dword v87, v85, s[14:15] sc1", (["v_cmp_eq_u32 vcc, s47, v87"], ["s_cmp_eq_u64 vcc, -1"]), "s_cbranch_scc0")
            elif kind == "mid":
                if 1 <= a <= 8:
                    for k in range(2):
                        kk = 2 * (a - 1) + k
                        if kk < 15: xdma(R, c + 1, kk)
                if a == 13: R.site(("xl",), ("x", c + 1))
                if a == 15:
                    E("s_add_u32 s57, s57, 32768")
                    E(f"s_xor_b32 s58, s58, {XBUF}")
            elif kind == "last":
                wo_sched(R, a)
    def a_all(R, loop):
        a_prologue(R)
        a_body(R, "first", 0)
        if loop:
            A("s_mov_b32 s38, 6"); A.label("L_aloop")
            a_body(R, "mid", 1)
            A("s_sub_u32 s38, s38, 1"); A("s_cmp_lg_u32 s38, 0"); A("s_cbranch_scc1 L_aloop")
        else:
            for c in range(1, 7): a_body(R, "mid", c)
        wo_setup(R.E)
        a_body(R, "last", 7)
    a_all(RA, False)
    RA.vm = []; RA.mode = "emit"; RA.E = A
    a_all(RA, True)

    A.label("L_store_p")
    A("s_waitcnt vmcnt(0)")
    A.label("L_store")
    A("s_barrier")
    A("v_and_b32 v1, 7, v0")
    A("v_lshrrev_b32 v2, 3, v0")
    A("v_and_b32 v3, 7, v2")
    A("v_xor_b32 v3, v3, v1")
    A("v_lshlrev_b32 v3, 4, v3")
    A("v_lshl_add_u32 v3, v2, 7, v3")
    A(f"v_add_u32 v3, {HST}, v3")
    for i in range(4): A(f"ds_read_b128 {vr(8+4*i)}, v3 offset:{i*64*128}")
    A("v_lshrrev_b32 v4, 5, v2")
    A("v_lshlrev_b32 v4, 15, v4")
    A("v_and_b32 v2, 31, v2")
    A("v_lshl_add_u32 v4, v2, 7, v4")
    A("v_lshl_add_u32 v4, v1, 4, v4")
    A("s_lshl_b32 s39, s29, 18")
    A("s_lshl_b32 s40, s28, 12")
    A("s_add_u32 s39, s39, s40")
    for i in range(4):
        A(f"s_waitcnt lgkmcnt({3-i})")
        A(f"buffer_store_dwordx4 {vr(8+4*i)}, v4, s[24:27], s39 offen sc1")
        if i < 3: A("s_add_u32 s39, s39, 65536")
    A("v_and_b32 v6, 15, v5")
    A("v_lshrrev_b32 v7, 4, v5")
    A("v_lshrrev_b32 v8, 2, v6")
    A("v_and_b32 v13, 3, v6")
    A("s_lshl_b32 s41, s30, 2")
    A("v_add_u32 v10, s41, v13")
    A("v_lshlrev_b32 v11, 2, v8")
    A("v_xor_b32 v10, v10, v11")
    A("v_lshlrev_b32 v10, 4, v10")
    A("v_lshl_add_u32 v11, v7, 3, v8")
    A("v_lshl_add_u32 v10, v11, 9, v10")
    A("v_add_u32 v12, 0x10000, v10")
    AF = 128
    for kap in range(8):
        for hf in range(2):
            off = kap * 32 * 512 + 8 * hf
            areg = 10 if kap < 4 else 12
            off -= 0 if kap < 4 else 65536
            d = AF + 8 * kap + 4 * hf
            A(f"ds_read_b64_tr_b16 {vr(d,2)}, v{areg} offset:{off}")
            A(f"ds_read_b64_tr_b16 {vr(d+2,2)}, v{areg} offset:{off+2048}")
    A("s_add_u32 s20, s10, s35")
    A("s_addc_u32 s21, s11, 0")
    A("s_mov_b32 s22, 2048000")
    A("s_mov_b32 s23, 0x20000")
    A("v_lshrrev_b32 v2, 4, v0")
    A("v_and_b32 v3, 15, v0")
    A("v_lshrrev_b32 v4, 3, v3")
    A("v_lshlrev_b32 v4, 12, v4")
    A("v_lshl_add_u32 v4, v2, 7, v4")
    A("v_and_b32 v14, 7, v3")
    A("v_lshl_add_u32 v4, v14, 4, v4")
    A("s_lshl_b32 s39, s29, 18")
    A("s_lshl_b32 s40, s28, 15")
    A("s_add_u32 s39, s39, s40")
    A("s_add_u32 s40, s39, 8192")
    A("s_add_u32 s41, s39, 16384")
    A("s_add_u32 s42, s39, 24576")
    A("s_mov_b32 s48, 0xc038aa3b")
    A("s_mov_b32 s49, 0xc038aa3b")
    A("s_mov_b32 s50, 0xbfb8aa3b")
    A("s_mov_b32 s51, 0xbfb8aa3b")
    A("s_mov_b32 s52, 1.0")
    A("s_mov_b32 s53, 1.0")
    A("s_mov_b32 s43, 0x42700000")
    A(f"v_mul_u32_u24 v9, {ZP}, v2")
    A("v_lshl_add_u32 v9, v3, 4, v9")
    A(f"v_add_u32 v9, {HST}, v9")
    A(f"v_mul_u32_u24 v11, {ZP}, v6")
    A("v_lshl_add_u32 v11, v7, 4, v11")
    A(f"v_add_u32 v11, {HST}, v11")
    A("v_lshlrev_b32 v8, 3, v6")
    A("s_add_u32 s44, s31, s28")
    A("v_add_u32 v8, s44, v8")
    A("v_lshlrev_b32 v8, 11, v8")
    A("s_lshl_b32 s44, s33, 9")
    A("s_lshl_b32 s45, s30, 6")
    A("s_add_u32 s44, s44, s45")
    A("v_add_u32 v8, s44, v8")
    A("v_lshl_add_u32 v8, v7, 4, v8")
    A("s_waitcnt vmcnt(0) lgkmcnt(0)")
    A("s_barrier")
    stamp(A, 3, opt)
    A("s_cmp_lg_u32 s30, 6")
    A("s_cbranch_scc1 L_hwait")
    A("v_add_u32 v84, 0x10000, v84")
    A("v_add_u32 v85, 0x10000, v85")
    A("v_mov_b32 v15, s47")
    A("s_mov_b64 exec, 1")
    A("global_store_dword v84, v15, s[14:15] sc1")
    A("s_mov_b64 exec, -1")
    A("s_mov_b32 s46, 0x100000")
    A.label("L_hspin")
    A("global_load_dword v87, v85, s[14:15] sc1")
    A("s_waitcnt vmcnt(0)")
    A("v_cmp_eq_u32 vcc, s47, v87")
    A("s_sub_u32 s46, s46, 1")
    A("s_cmp_eq_u32 s46, 0")
    A("s_cbranch_scc1 L_hwait")
    A("s_cmp_eq_u64 vcc, -1")
    A("s_cbranch_scc0 L_hspin")
    A.label("L_hwait")
    A("s_barrier")
    stamp(A, 4, opt)
    A(f"buffer_load_dwordx4 {vr(16)}, v4, s[24:27], s39 offen sc1")
    A(f"buffer_load_dwordx4 {vr(20)}, v4, s[24:27], s41 offen sc1")
    A(f"buffer_load_dwordx4 {vr(24)}, v4, s[24:27], s40 offen sc1")
    A(f"buffer_load_dwordx4 {vr(28)}, v4, s[24:27], s42 offen sc1")
    A("v_mov_b32 v14, 0xc2700000")
    for half in range(2):
        A(f"s_waitcnt vmcnt({2 if half == 0 else 0})")
        fb, gb = 16 + 8 * half, 20 + 8 * half
        zb = 32 + 4 * half
        for d0 in range(0, 4, 2):
            TT = [(40, d0), (52, d0 + 1)]
            for t, d in TT:
                A(f"v_lshlrev_b32 v{t}, 16, v{fb+d}"); A(f"v_and_b32 v{t+1}, s36, v{fb+d}")
                A(f"v_lshlrev_b32 v{t+2}, 16, v{gb+d}"); A(f"v_and_b32 v{t+3}, s36, v{gb+d}")
            for t, d in TT:
                A(f"v_pk_mul_f32 {vr(t,2)}, {vr(t,2)}, s[48:49]")
                A(f"v_pk_mul_f32 {vr(t+2,2)}, {vr(t+2,2)}, s[50:51]")
            for t, d in TT:
                A(f"v_med3_f32 v{t}, v{t}, s43, v14"); A(f"v_med3_f32 v{t+1}, v{t+1}, s43, v14")
            for t, d in TT:
                A(f"v_exp_f32 v{t+2}, v{t+2}"); A(f"v_exp_f32 v{t+3}, v{t+3}")
            for t, d in TT:
                A(f"v_exp_f32 v{t}, v{t}"); A(f"v_exp_f32 v{t+1}, v{t+1}")
            for t, d in TT:
                A(f"v_pk_add_f32 {vr(t+2,2)}, {vr(t+2,2)}, s[52:53]")
            for t, d in TT:
                A(f"v_pk_add_f32 {vr(t+4,2)}, {vr(t,2)}, s[52:53]")
                A(f"v_pk_add_f32 {vr(t,2)}, {vr(t,2)}, s[52:53] neg_lo:[1,0] neg_hi:[1,0]")
            for t, d in TT:
                A(f"v_pk_mul_f32 {vr(t+4,2)}, {vr(t+4,2)}, {vr(t+2,2)}")
            for t, d in TT:
                A(f"v_rcp_f32 v{t+4}, v{t+4}"); A(f"v_rcp_f32 v{t+5}, v{t+5}")
            A("s_nop 0")
            for t, d in TT:
                A(f"v_pk_mul_f32 {vr(t,2)}, {vr(t,2)}, {vr(t+4,2)}")
            for t, d in TT:
                A(f"v_cvt_pk_bf16_f32 v{zb+d}, v{t}, v{t+1}")
        A(f"ds_write_b128 v9, {vr(zb)} offset:{256*half}")
    A("s_waitcnt lgkmcnt(0)")
    A("s_barrier")
    tr = LdsTracker()
    ACC2 = 64
    BF = 192
    ops = []
    for kap in range(8):
        for tau in range(2):
            d = BF + 8 * (kap % 4) + 4 * tau
            if kap < 4: ops.append(("lds", f"ds_read_b128 {vr(d)}, v11 offset:{tau*16*ZP + kap*64}", rng(d, 4), []))
    for kap in range(8):
        for hf in range(2):
            for tau in range(2):
                acc = ACC2 + 4 * (2 * tau + hf)
                af = AF + 8 * kap + 4 * hf
                bf = BF + 8 * (kap % 4) + 4 * tau
                c = vr(acc) if kap > 0 else "0"
                ops.append(("mfma", f"v_mfma_f32_16x16x32_bf16 {vr(acc)}, {vr(af)}, {vr(bf)}, {c}", [], rng(bf, 4)))
        if kap < 4:
            for tau in range(2):
                d = BF + 8 * (kap % 4) + 4 * tau
                ops.append(("lds", f"ds_read_b128 {vr(d)}, v11 offset:{tau*16*ZP + (kap+4)*64}", rng(d, 4), []))
    emit_with_waits(A, ops, tr)
    A("s_nop 7")
    A("s_nop 1")
    for tau in range(2):
        a_ = ACC2 + 8 * tau
        t = 16 + 4 * tau
        A(f"v_cvt_pk_bf16_f32 v{t}, v{a_}, v{a_+1}")
        A(f"v_cvt_pk_bf16_f32 v{t+1}, v{a_+2}, v{a_+3}")
        A(f"v_cvt_pk_bf16_f32 v{t+2}, v{a_+4}, v{a_+5}")
        A(f"v_cvt_pk_bf16_f32 v{t+3}, v{a_+6}, v{a_+7}")
        A(f"buffer_store_dwordx4 {vr(t)}, v8, s[20:23], 0 offen offset:{1024*tau} {opt.outflags}")
    if opt.stamps and not opt.dbgat:
        A("s_waitcnt vmcnt(0)")
        stamp(A, 5, opt)
        A("s_waitcnt lgkmcnt(0)")
        if opt.dstamps:
            A("s_and_b32 s50, s30, 1")
            A("s_cmp_lg_u32 s50, 0")
            A("s_cbranch_scc1 L_nods")
            A("s_lshl_b32 s50, s2, 10")
            A("s_lshr_b32 s51, s30, 1")
            A("s_lshl_b32 s51, s51, 8")
            A("s_add_u32 s50, s50, s51")
            A(f"s_add_u32 s50, s50, {STAMP_OFF + 131072}")
            A("v_lshl_add_u32 v1, v5, 2, s50")
            A("global_store_dword v1, v245, s[14:15]")
            A.label("L_nods")
        if opt.cstamps:
            A("v_cmp_gt_u32 vcc, 16, v0")
            A("s_and_saveexec_b64 s[48:49], vcc")
            A("s_cbranch_execz L_nocs")
            A("s_lshl_b32 s50, s2, 6")
            A(f"s_add_u32 s50, s50, {STAMP_OFF + 65536}")
            A("v_lshl_add_u32 v1, v0, 2, s50")
            A("global_store_dword v1, v244, s[14:15]")
            A.label("L_nocs")
            A("s_mov_b64 exec, s[48:49]")
        A("v_cmp_eq_u32 vcc, 0, v0")
        A("s_and_saveexec_b64 s[48:49], vcc")
        A("s_cbranch_execz L_end")
        A("s_lshl_b32 s50, s2, 6")
        A(f"s_add_u32 s50, s50, {STAMP_OFF}")
        A("v_mov_b32 v1, s50")
        order = [60, 61, 80, 81, 62, 63, 82, 83, 64, 65, 68, 69, 72, 73, 76, 77]
        for i in range(0, 16, 4):
            for k in range(4): A(f"v_mov_b32 v{4+k}, s{order[i+k]}")
            A(f"global_store_dwordx4 v1, v[4:7], s[14:15] offset:{i*4}")
            A("s_nop 1")
    if opt.dbgat:
        A("s_waitcnt vmcnt(0)")
        stamp(A, 5, opt)
        A("s_waitcnt lgkmcnt(0)")
        A("v_cmp_eq_u32 vcc, 0, v0")
        A("s_and_saveexec_b64 s[48:49], vcc")
        A("s_cbranch_execz L_end")
        A("v_mov_b32 v1, 0")
        def amax(word, expr):
            for l in expr: A(l)
            A("v_mov_b32 v2, s50")
            A(f"global_atomic_umax v1, v2, s[12:13] offset:{4*word}")
        amax(4, ["s_mov_b32 s50, s82"])
        amax(5, ["s_not_b32 s50, s62"])
        amax(6, ["s_sub_u32 s50, s80, s60"])
        amax(7, ["s_sub_u32 s50, s64, s60"])
        amax(8, ["s_sub_u32 s50, s68, s60"])
        amax(9, ["s_sub_u32 s50, s72, s60"])
        amax(10, ["s_sub_u32 s50, s76, s60"])
        amax(11, ["s_sub_u32 s50, s82, s62"])
        A("s_waitcnt vmcnt(0)")
    A.label("L_end")
    A("s_endpgm")
    return A.text()

def kd(name, nv, ns=102):
    return f""".amdhsa_kernel {name}
  .amdhsa_next_free_vgpr {nv}
  .amdhsa_next_free_sgpr {ns}
  .amdhsa_accum_offset {(nv + 3) // 4 * 4}
  .amdhsa_group_segment_fixed_size 0
  .amdhsa_kernarg_size 48
  .amdhsa_user_sgpr_count 2
  .amdhsa_user_sgpr_kernarg_segment_ptr 1
  .amdhsa_system_sgpr_workgroup_id_x 1
.end_amdhsa_kernel
"""

HEADER = """; Kernarg layout for this problem (48 bytes, ptrs only, base s[0:1]):
"""

def main():
    ap = argparse.ArgumentParser()
    ap.add_argument("-o", default="standalone__autoregressive_conv_wavenet__speech.s")
    ap.add_argument("--stamps", action="store_true")
    ap.add_argument("--cap", type=int, default=2)
    ap.add_argument("--outflags", default="")
    ap.add_argument("--cstamps", action="store_true")
    ap.add_argument("--dstamps", action="store_true")
    ap.add_argument("--xplain", action="store_true")
    ap.add_argument("--align", action="store_true")
    ap.add_argument("--no-prefetch", dest="prefetch", action="store_false")
    ap.add_argument("--pf_a", type=int, default=3)
    ap.add_argument("--st0", type=int, default=0)
    ap.add_argument("--nwin", type=int, default=3)
    ap.add_argument("--w_early", type=int, default=4)
    ap.add_argument("--map", default="n4m8")
    ap.add_argument("--sig_a", type=int, default=11)
    ap.add_argument("--poll_a", type=int, default=16)
    ap.add_argument("--wo_gaps", type=lambda s: [int(x) for x in s.split(",")], default=[9, 10])
    ap.add_argument("--we_gaps", type=lambda s: [int(x) for x in s.split(",")], default=[17, 18])
    ap.add_argument("--bar_after", type=int, default=0)
    ap.add_argument("--e64", action="store_true")
    ap.add_argument("--novalu", action="store_true")
    ap.add_argument("--dbgat", action="store_true")
    ap.add_argument("--dot2", action="store_true")
    ap.add_argument("--swap", action="store_true")
    opt = ap.parse_args()
    E64[0] = opt.e64; NOVALU[0] = opt.novalu; DOT2[0] = opt.dot2; SWAP[0] = opt.swap
    m = gen_main(opt)
    out = HEADER
    out += f"; @launch grid=(256,1,1) block=(512,1,1) lds={LDS_TOTAL}\n"
    out += '.amdgcn_target "amdgcn-amd-amdhsa--gfx950"\n.text\n'
    out += m
    out += '.section .rodata,"a"\n.p2align 6\n' + kd(MAIN, NV + (2 if (opt.cstamps or opt.dstamps) else 0))
    open(opt.o, "w").write(out)

if __name__ == "__main__":
    main()
```

```python
import sys, argparse

MAIN = "standalone__autoregressive_conv_wavenet__speech_kernel"

XROWG = 19
XARR = 152 * 64
XBUF = 32768
WRING = 65536
WSLOT = 8192
NSLOT = 8
HST = 131072
LDS_TOTAL = 163840
ZP = 528
WS_XIMG = 8 << 20
WS_BYTES = 16 << 20
STAMP_OFF = 16 << 20
WS_FLAGS = 17 << 20

class Asm:
    def __init__(self): self.lines = []
    def __call__(self, s): self.lines.append("    " + s)
    def label(self, s): self.lines.append(s + ":")
    def raw(self, s): self.lines.append(s)
    def text(self): return "\n".join(self.lines) + "\n"
class Null:
    def __call__(self, s): pass
    def label(self, s): pass
    def raw(self, s): pass

def vr(b, n=4): return f"v[{b}:{b+n-1}]"
def rng(b, n): return list(range(b, b + n))

V_XA0, V_XA1, V_XA2, V_WA = 1, 2, 3, 4
TMP = [8, 12]
WSET = {0: 16, 1: 28, 2: 232}
WIN = {"D1": 40, "D2": 72, "X0": 104}
ARR = {"D1": 0, "D2": 1, "X0": 2}
ACC = {"Q1": 136, "Q2": 168, "Q0": 200}
NV = 244

def wset(a):
    a %= 16
    return WSET[2] if a == 0 else WSET[a & 1]

class LdsTracker:
    def __init__(self): self.out = []
    def issue(self, regs): self.out.append(set(regs))
    def need(self, regs):
        regs = set(regs); p = -1
        for i, d in enumerate(self.out):
            if d & regs: p = i
        if p < 0: return None
        n = min(len(self.out) - p - 1, 15)
        self.out = self.out[len(self.out) - n:] if n > 0 else []
        return n
    def waitall(self): self.out = []

def x_read(arr, idx0, dst, nxt=False):
    q0, mp = idx0 >> 3, idx0 & 7
    areg = V_XA2 if nxt else (V_XA0 if q0 == 0 else V_XA1)
    assert (q0 == 2) if nxt else (q0 in (0, 1))
    off = ARR[arr] * XARR + (mp * XROWG + q0) * 64
    return ("lds", f"ds_read_b128 {vr(dst)}, v{areg} offset:{off}", rng(dst, 4), [])

def w_read(slot, tile, dst):
    off = (slot % NSLOT) * WSLOT + tile * 4096
    return [("lds", f"ds_read_b64_tr_b16 {vr(dst,2)}, v{V_WA} offset:{off}", rng(dst, 2), []),
            ("lds", f"ds_read_b64_tr_b16 {vr(dst+2,2)}, v{V_WA} offset:{off+512}", rng(dst + 2, 2), [])]

E64 = [False]
NOVALU = [False]
DOT2 = [False]
SWAP = [False]
def ws_valu(base):
    ops = []
    if NOVALU[0]: return ops
    if DOT2[0]:
        for d0 in (0, 2):
            seq = []
            for d in (d0, d0 + 1):
                o, e = base + d, base + 4 + d
                t = TMP[d & 1]
                seq.append([("valu", f"v_dot2_f32_bf16 v{t}, v{o}, s91, 0", [], [o]),
                            ("valu", f"v_dot2_f32_bf16 v{t+1}, v{o}, s92, 0", [], [o]),
                            ("valu", f"v_dot2_f32_bf16 v{t}, v{e}, s91, v{t}", [], [e]),
                            ("valu", f"v_dot2_f32_bf16 v{t+1}, v{e}, s92, v{t+1}", [], [e]),
                            ("valu", f"v_cvt_pk_bf16_f32 v{base+8+d}, v{t}, v{t+1}", [], [])])
            a_, b_ = seq
            ops += [a_[0], a_[1], a_[2], a_[3], b_[0], b_[1], b_[2], b_[3], a_[4], ("valu", "s_nop 0", [], []), b_[4]] if d0 == 2 else [a_[0], a_[1], a_[2], a_[3], b_[0], b_[1], b_[2], b_[3], a_[4]]
            if d0 == 0: pend = b_[4]
            else: ops.insert(len(ops) - 11 + 3, pend)
        return ops
    for d in range(4):
        o, e, s = base + d, base + 4 + d, base + 8 + d
        t = TMP[d & 1]
        x = "_e64" if E64[0] else ""
        ops += [("valu", f"v_lshlrev_b32{x} v{t}, 16, v{o}", [], [o]),
                ("valu", f"v_lshlrev_b32{x} v{t+1}, 16, v{e}", [], [e]),
                ("valu", f"v_and_b32{x} v{t+2}, s36, v{o}", [], [o]),
                ("valu", f"v_and_b32{x} v{t+3}, s36, v{e}", [], [e]),
                ("valu", f"v_add_f32{x} v{t}, v{t}, v{t+1}", [], []),
                ("valu", f"v_add_f32{x} v{t+2}, v{t+2}, v{t+3}", [], []),
                ("valu", f"v_cvt_pk_bf16_f32 v{s}, v{t}, v{t+2}", [], [])]
    return ops

def gen_period(a, opt):
    cur = wset(a)
    if a <= 14: steps = [("Q1", cur + 0, "D1"), ("Q2", cur + 4, "D2"), ("Q0", cur + 8, "X0")]
    else: steps = [("Q2", cur + 8, "D2"), ("Q0", cur + 8, "X0")]
    ng = 8 * len(steps)
    fill = [[] for _ in range(ng)]
    mf = []
    last = {"D1": 14, "D2": 15, "X0": 15}
    for si, (q, wreg, arr) in enumerate(steps):
        for k in range(8):
            m = 7 - k
            sl = (m - a) % 8
            b = WIN[arr] + 4 * sl
            acc = ACC[q] + 4 * m
            if SWAP[0]: mf.append(("mfma", f"v_mfma_f32_16x16x32_bf16 {vr(acc)}, {vr(b)}, {vr(wreg)}, {vr(acc)}", [], rng(wreg, 4) + rng(b, 4)))
            else: mf.append(("mfma", f"v_mfma_f32_16x16x32_bf16 {vr(acc)}, {vr(wreg)}, {vr(b)}, {vr(acc)}", [], rng(wreg, 4) + rng(b, 4)))
            g = 8 * si + k
            if a == last[arr]: fill[g].append(x_read(arr, 16 + sl, b, nxt=True))
            elif k == 0: fill[g].append(x_read(arr, 15 - a, b))
    def place(ops, gaps):
        for o, g in zip(ops, gaps): fill[g].append(o)
    if a <= 12:
        nb = wset(a + 2)
        place(w_read(a + 2, 0, nb + 0), opt.wo_gaps)
        place(w_read(a + 2, 1, nb + 4), opt.we_gaps)
    elif a == 14:
        nb = wset(0)
        place(w_read(16, 0, nb + 0), [0, 1])
        place(w_read(16, 1, nb + 4), [2, 3])
        place(w_read(15, 1, wset(15) + 8), [4, 5])
    elif a == 15:
        nb = wset(1)
        place(w_read(17, 0, nb + 0), [1, 3])
        place(w_read(17, 1, nb + 4), [9, 11])
    valu = []; g0 = 0
    if a <= 13: valu = ws_valu(wset(a + 1))
    elif a == 14: valu = ws_valu(wset(0)); g0 = 9
    if a == 0: valu = [("valu", f"v_xor_b32 v{V_XA2}, s37, v{V_XA2}", [], [])] + valu
    if a == 15:
        fill[12].append(("valu", f"v_xor_b32 v{V_XA0}, s37, v{V_XA0}", [], []))
        fill[13].append(("valu", f"v_xor_b32 v{V_XA1}, s37, v{V_XA1}", [], []))
    if valu:
        gaps = list(range(g0, ng)); n = len(valu)
        cap = {g: max(0, opt.cap - len(fill[g])) for g in gaps}
        if sum(cap.values()) < n:
            for g in gaps: cap[g] = max(cap[g], 1)
        assert sum(cap.values()) >= n
        tot = sum(cap.values()); i = 0; accq = 0.0
        for g in gaps:
            accq += cap[g] * n / tot
            take = min(int(accq + 1e-9) - i, cap[g])
            for _ in range(take):
                fill[g].append(valu[i]); i += 1
        while i < n:
            fill[ng - 1].append(valu[i]); i += 1
    out = []
    for g in range(ng):
        out.append(mf[g]); out += fill[g]
    return out

def emit_with_waits(A, ops, tr):
    for kind, text, dests, reads in ops:
        if reads:
            n = tr.need(reads)
            if n is not None: A(f"s_waitcnt lgkmcnt({n})")
        A(text)
        if kind == "lds": tr.issue(dests)

NST = 6
def dstamp(A, k, opt):
    if not opt.dstamps: return
    A("s_memtime s[86:87]")
    A("s_waitcnt lgkmcnt(0)")
    A(f"v_writelane_b32 v245, s86, {k}")
def stamp(A, idx, opt):
    if not opt.stamps: return
    A(f"s_memtime s[{60+4*idx}:{61+4*idx}]")
    A(f"s_memrealtime s[{62+4*idx}:{63+4*idx}]")

XO, XW = 110, 120
RAW = 16
PT = 88
PD1, PD2 = 100, 104
NPT = 5
BIG = 0x40000000

def pair_addr(A):
    A("v_lshrrev_b32 v11, 3, v5")
    A("v_and_b32 v12, 7, v5")
    A("s_lshl_b32 s44, s33, 9")
    A("v_mov_b32 v9, 0x40000000")
    A("v_lshl_add_u32 v8, v12, 4, s44")
    A("v_and_b32 v7, 3, v12")
    A("v_lshrrev_b32 v6, 2, v12")
    A("v_lshlrev_b32 v6, 15, v6")
    A(f"v_mul_u32_u24 v10, {XROWG*64}, v11")
    A("v_add_u32 v6, v6, v10")
    for t in range(NPT):
        A(f"s_add_u32 s41, s30, {4*t}")
        A("s_lshl_b32 s42, s41, 3")
        A("s_add_u32 s42, s42, s31")
        A("s_sub_u32 s42, s42, 16")
        A("v_add_u32 v14, s42, v11")
        A("v_lshl_add_u32 v15, v14, 11, v8")
        A("v_add_u32 v10, 0xfffffc00, v15")
        A("v_cmp_gt_i32 s[46:47], 0, v14")
        A("v_cmp_gt_i32 s[48:49], 1, v14")
        if t == NPT - 1:
            A("s_cmp_ge_u32 s41, 18")
            A("s_cselect_b64 s[56:57], -1, 0")
            A("s_or_b64 s[46:47], s[46:47], s[56:57]")
            A("s_or_b64 s[48:49], s[48:49], s[56:57]")
        A("s_lshr_b32 s42, s41, 1")
        A("s_and_b32 s42, s42, 2")
        A(f"v_cndmask_b32 v{XO+1+2*t}, v15, v9, s[46:47]")
        A(f"v_cndmask_b32 v{XO+2*t}, v10, v9, s[48:49]")
        A("v_xor_b32 v13, s42, v7")
        A("v_lshl_add_u32 v13, v13, 4, v6")
        A("s_lshl_b32 s41, s41, 6")
        A(f"v_add_u32 v{XW+t}, s41, v13")

def job_loads(A, raw, offs, n):
    for t in range(n):
        b = raw + 12 * t
        A(f"buffer_load_dwordx4 {vr(b)}, v{offs+2*t}, s[16:19], 0 offen")
        A(f"buffer_load_dwordx4 {vr(b+4)}, v{offs+1+2*t}, s[16:19], 0 offen")
        A(f"buffer_load_dwordx4 {vr(b+8)}, v{offs+1+2*t}, s[16:19], 0 offen offset:1024")

def job_valu(A, b, pd1, pd2, ds=range(4)):
    for d in ds:
        m_, x0, x1 = b + d, b + 4 + d, b + 8 + d
        T = PT + 6 * (d & 1)
        A(f"v_lshlrev_b32 v{T}, 16, v{x0}")
        A(f"v_and_b32 v{T+1}, s36, v{x0}")
        A(f"v_lshlrev_b32 v{T+2}, 16, v{x1}")
        A(f"v_and_b32 v{T+3}, s36, v{x1}")
        A(f"v_lshlrev_b32 v{T+4}, 16, v{m_}")
        A(f"v_and_b32 v{T+5}, s36, v{m_}")
        A(f"v_sub_f32 v{T+2}, v{T+2}, v{T}")
        A(f"v_sub_f32 v{T+3}, v{T+3}, v{T+1}")
        A(f"v_sub_f32 v{T+4}, v{T+4}, v{T}")
        A(f"v_sub_f32 v{T+5}, v{T+5}, v{T+1}")
        A(f"v_cvt_pk_bf16_f32 v{pd2+d}, v{T+2}, v{T+3}")
        A(f"v_cvt_pk_bf16_f32 v{pd1+d}, v{T+4}, v{T+5}")

def pair_compute(A):
    for t in range(NPT):
        if t == NPT - 1:
            A("s_cmp_ge_u32 s30, 2")
            A("s_cbranch_scc1 L_pj")
        A(f"s_waitcnt vmcnt({3 * (NPT - 1 - t)})")
        b = RAW + 12 * t
        pd1, pd2 = PD1 + 28 * (t & 1), PD2 + 28 * (t & 1)
        job_valu(A, b, pd1, pd2)
        A(f"ds_write_b128 v{XW+t}, {vr(pd1)} offset:{0*XARR}")
        A(f"ds_write_b128 v{XW+t}, {vr(pd2)} offset:{1*XARR}")
        A(f"ds_write_b128 v{XW+t}, {vr(b+4)} offset:{2*XARR}")
    A.label("L_pj")

RAW2, SO, SS = 16, 64, 72
def shared_addr(A):
    A("v_mov_b32 v83, 0x40000000")
    A("s_lshl_b32 s45, s33, 9")
    A("s_add_u32 s45, s45, 128")
    A("s_mul_i32 s46, s28, %d" % (XROWG * 64))
    A("s_lshl_b32 s44, s29, 18")
    A("s_add_u32 s46, s46, s44")
    A(f"s_add_u32 s46, s46, {WS_XIMG + 2*32768}")
    A("s_add_u32 s44, s31, s28")
    A("s_sub_u32 s44, s44, 16")
    A("s_movk_i32 s55, 911")
    A("v_and_b32 v10, 3, v5")
    for k in range(4):
        A(f"s_add_u32 s41, s40, {2*k}")
        A("s_lshl_b32 s41, s41, 6")
        A("v_add_u32 v11, s41, v5")
        A("v_mul_u32_u24 v12, s55, v11")
        A("v_lshrrev_b32 v12, 16, v12")
        A("v_mul_u32_u24 v13, 72, v12")
        A("v_sub_u32 v13, v11, v13")
        A("v_lshrrev_b32 v13, 2, v13")
        A("v_lshl_add_u32 v14, v13, 3, s44")
        A("v_lshlrev_b32 v15, 11, v14")
        A("v_lshl_add_u32 v15, v12, 6, v15")
        A("v_lshl_add_u32 v15, v10, 4, v15")
        A("v_add_u32 v15, s45, v15")
        A("v_add_u32 v82, 0xfffffc00, v15")
        A("v_cmp_gt_i32 s[48:49], 0, v14")
        A("v_cmp_gt_i32 s[50:51], 1, v14")
        A("v_cmp_le_u32 vcc, 0x1b0, v11")
        A("v_lshrrev_b32 v14, 1, v13")
        A("v_and_b32 v14, 2, v14")
        A("s_or_b64 s[48:49], s[48:49], vcc")
        A("s_or_b64 s[50:51], s[50:51], vcc")
        A("v_xor_b32 v14, v14, v10")
        A(f"v_cndmask_b32 v{SO+1+2*k}, v15, v83, s[48:49]")
        A(f"v_cndmask_b32 v{SO+2*k}, v82, v83, s[50:51]")
        A("v_lshlrev_b32 v14, 4, v14")
        A("v_lshl_add_u32 v14, v13, 6, v14")
        A("v_lshl_add_u32 v14, v12, 15, v14")
        A("v_add_u32 v14, s46, v14")
        A(f"v_cndmask_b32 v{SS+k}, v14, v83, vcc")

def wdma_addr(A):
    A("v_lshrrev_b32 v6, 3, v5")
    A("s_lshl_b32 s44, s40, 3")
    A("v_add_u32 v6, s44, v6")
    A("v_and_b32 v7, 7, v5")
    A("v_lshrrev_b32 v8, 1, v6")
    A("v_and_b32 v8, 1, v8")
    A("v_lshrrev_b32 v9, 2, v6")
    A("v_and_b32 v9, 2, v9")
    A("v_or_b32 v8, v9, v8")
    A("v_lshrrev_b32 v9, 1, v7")
    A("v_xor_b32 v8, v8, v9")
    A("v_lshlrev_b32 v8, 5, v8")
    A("v_and_b32 v9, 1, v7")
    A("v_lshl_add_u32 v8, v9, 4, v8")
    A("v_lshl_add_u32 v8, v6, 10, v8")
    A("s_lshl_b32 s44, s28, 7")
    A("v_add_u32 v1, s44, v8")
    A("s_lshl_b32 s42, s40, 10")
    A(f"s_add_u32 s42, s42, {WRING}")

def dma_text(sig, creg):
    out = []
    a = sig & 15
    for tile, tap in ((0, min(2 * a + 1, 30)), (1, 2 * a)):
        out.append(f"s_add_u32 m0, s42, {(sig % NSLOT) * WSLOT + tile * 4096}")
        if creg is None: out.append(f"s_mov_b32 s45, {tap * 262144}")
        else: out.append(f"s_add_u32 s45, {creg}, {tap * 262144}")
        out.append(f"buffer_load_dwordx4 v1, s[20:23], s45 offen lds")
    return out

def gen_main(opt):
    A = Asm()
    A.raw(f".globl {MAIN}\n.p2align 8\n.type {MAIN},@function\n{MAIN}:")
    A("s_cmp_ge_u32 s2, 256")
    A("s_cbranch_scc1 L_end")
    A("s_load_dwordx4 s[4:7], s[0:1], 0")
    A("s_load_dwordx4 s[8:11], s[0:1], 16")
    A("s_load_dwordx4 s[12:15], s[0:1], 32")
    stamp(A, 0, opt)
    dstamp(A, 0, opt)
    A("v_lshrrev_b32 v1, 6, v0")
    A("v_and_b32 v5, 63, v0")
    A("v_readfirstlane_b32 s30, v1")
    if opt.map == "n8":
        A("s_and_b32 s28, s2, 7")
        A("s_lshr_b32 s29, s2, 3")
    elif opt.map == "m4":
        A("s_and_b32 s29, s2, 7")
        A("s_lshl_b32 s29, s29, 2")
        A("s_lshr_b32 s28, s2, 3")
        A("s_lshr_b32 s35, s28, 3")
        A("s_add_u32 s29, s29, s35")
        A("s_and_b32 s28, s28, 7")
    else:
        A("s_lshr_b32 s35, s2, 3")
        A("s_and_b32 s28, s2, 1")
        A("s_lshl_b32 s28, s28, 2")
        A("s_and_b32 s29, s35, 3")
        A("s_add_u32 s28, s28, s29")
        A("s_lshr_b32 s29, s2, 1")
        A("s_and_b32 s29, s29, 3")
        A("s_lshl_b32 s29, s29, 3")
        A("s_lshr_b32 s35, s35, 2")
        A("s_add_u32 s29, s29, s35")
    A("s_and_b32 s31, s29, 7")
    A("s_lshl_b32 s31, s31, 7")
    A("s_lshr_b32 s32, s29, 3")
    A("s_and_b32 s33, s32, 1")
    A("s_lshr_b32 s34, s32, 1")
    A("s_mov_b32 s36, 0xffff0000")
    A("s_mov_b32 s91, 0x00003f80")
    A("s_mov_b32 s92, 0x3f800000")
    A(f"s_mov_b32 s37, {XBUF}")
    A("s_mul_i32 s35, s34, 2048000")
    A("s_and_b32 s40, s30, 3")
    A("s_cmp_ge_u32 s30, 4")
    A("s_cbranch_scc1 L_prod")

    pair_addr(A)
    dstamp(A, 1, opt)
    A("s_waitcnt lgkmcnt(0)")
    A("s_add_u32 s16, s4, s35")
    A("s_addc_u32 s17, s5, 0")
    A("s_mov_b32 s18, 2048000")
    A("s_mov_b32 s19, 0x20000")
    job_loads(A, RAW, XO, NPT)
    A("s_mov_b32 s20, s6")
    A("s_mov_b32 s21, s7")
    A(f"s_mov_b32 s22, {31*256*512*2}")
    A("s_mov_b32 s23, 0x20000")
    A("s_mov_b32 s24, s14")
    A("s_mov_b32 s25, s15")
    A(f"s_mov_b32 s26, {WS_BYTES}")
    A("s_mov_b32 s27, 0x20000")
    dstamp(A, 2, opt)
    for q in ("Q1", "Q2", "Q0"):
        for i in range(32): A(f"v_mov_b32 v{ACC[q]+i}, 0")
    dstamp(A, 3, opt)
    if opt.dstamps:
        A(f"s_waitcnt vmcnt({3*(NPT-1)})")
        dstamp(A, 4, opt)
    pair_compute(A)
    dstamp(A, 5, opt)
    A("v_and_b32 v6, 15, v5")
    A("v_lshrrev_b32 v7, 4, v5")
    for q0, reg in ((0, V_XA0), (1, V_XA1), (2, V_XA2)):
        A(f"v_add_u32 v8, {q0}, v6")
        A("v_lshrrev_b32 v8, 1, v8")
        A("v_and_b32 v8, 2, v8")
        A("v_xor_b32 v8, v8, v7")
        A("v_lshlrev_b32 v8, 4, v8")
        A(f"v_lshl_add_u32 v{reg}, v6, 6, v8")
    A("v_lshrrev_b32 v8, 2, v6")
    A("v_and_b32 v9, 3, v6")
    A("v_lshrrev_b32 v10, 1, v8")
    A("v_and_b32 v10, 1, v10")
    A("v_and_b32 v11, 1, v7")
    A("v_lshl_or_b32 v10, v11, 1, v10")
    A("v_xor_b32 v10, s30, v10")
    A("v_lshlrev_b32 v10, 5, v10")
    A("v_lshl_add_u32 v11, v7, 3, v8")
    A("v_lshl_add_u32 v10, v11, 7, v10")
    A("v_lshl_add_u32 v10, v9, 3, v10")
    A(f"v_add_u32 v{V_WA}, {WRING}, v10")
    A("s_waitcnt vmcnt(0) lgkmcnt(0)")
    dstamp(A, 6, opt)
    A("s_barrier")
    dstamp(A, 7, opt)
    stamp(A, 1, opt)
    tr = LdsTracker()
    pro = w_read(0, 0, wset(0)) + w_read(0, 1, wset(0) + 4)
    for jj in range(7, -1, -1): pro.append(x_read("D1", 16 + jj, WIN["D1"] + 4 * jj, nxt=True))
    pro += w_read(1, 0, wset(1)) + w_read(1, 1, wset(1) + 4)
    for arr in ("D2", "X0"):
        for jj in range(7, -1, -1): pro.append(x_read(arr, 16 + jj, WIN[arr] + 4 * jj, nxt=True))
    pro += ws_valu(wset(0))
    emit_with_waits(A, pro, tr)
    A("s_waitcnt lgkmcnt(0)")
    dstamp(A, 8, opt)
    tr.waitall()
    A("s_mov_b32 s38, 8")
    if opt.cstamps:
        A("s_memtime s[84:85]")
        A("s_waitcnt lgkmcnt(0)")
    def body(AA, tr):
        for a in range(16):
            if a == 15:
                AA("s_waitcnt lgkmcnt(0)"); tr.waitall()
            ops = gen_period(a, opt)
            if opt.bar_after:
                k = opt.bar_after
                mi = [i for i, o in enumerate(ops) if o[0] == "mfma"]
                head = [ops[i] for i in mi[:k]]
                moved = [o for i, o in enumerate(ops[:mi[k-1]+1]) if o[0] == "lds"]
                keepv = [(i, o) for i, o in enumerate(ops[:mi[k-1]+1]) if o[0] != "lds"]
                ops = [o for i, o in keepv] + [("bar", "s_barrier", [], [])] + moved + ops[mi[k-1]+1:]
            else:
                ops = [("bar", "s_barrier", [], [])] + ops
            emit_with_waits(AA, ops, tr)
    body(Null(), tr)
    if opt.align: A.raw(".p2align 6")
    A.label("L_cloop")
    body(A, tr)
    if opt.cstamps:
        A("s_mov_b32 m0, s38")
        A("s_nop 0")
        A("v_writelane_b32 v244, s84, m0")
        A("s_memtime s[84:85]")
    A("s_sub_u32 s38, s38, 1")
    A("s_cmp_lg_u32 s38, 0")
    A("s_cbranch_scc1 L_cloop")
    if opt.cstamps:
        A("s_waitcnt lgkmcnt(0)")
        A("v_writelane_b32 v244, s84, 0")
    stamp(A, 2, opt)
    A("v_and_b32 v6, 15, v5")
    A("v_lshrrev_b32 v7, 4, v5")
    A("s_lshl_b32 s39, s30, 2")
    A("v_add_u32 v8, s39, v7")
    A("v_and_b32 v9, 7, v6")
    A("v_lshlrev_b32 v9, 1, v9")
    A("v_xor_b32 v8, v8, v9")
    A("v_lshlrev_b32 v8, 3, v8")
    A("v_lshl_add_u32 v1, v6, 7, v8")
    A(f"v_add_u32 v1, {HST}, v1")
    A("s_nop 4")
    A("s_waitcnt lgkmcnt(0)")
    for m in range(8):
        for q, acc in ((0, "Q1"), (1, "Q2")):
            a0 = ACC["Q0"] + 4 * m; a1 = ACC[acc] + 4 * m
            t = 8 + 8 * ((2 * m + q) % 4)
            A(f"v_pk_add_f32 {vr(t,2)}, {vr(a0,2)}, {vr(a1,2)}")
            A(f"v_pk_add_f32 {vr(t+2,2)}, {vr(a0+2,2)}, {vr(a1+2,2)}")
            A(f"v_cvt_pk_bf16_f32 v{t+4}, v{t}, v{t+1}")
            A(f"v_cvt_pk_bf16_f32 v{t+5}, v{t+2}, v{t+3}")
            A(f"ds_write_b64 v1, {vr(t+4,2)} offset:{(2*m+q)*16*128}")
    A("s_waitcnt lgkmcnt(0)")
    A("s_branch L_store")

    srd_x = ["s_add_u32 s16, s4, s35", "s_addc_u32 s17, s5, 0", "s_mov_b32 s18, 2048000", "s_mov_b32 s19, 0x20000"]
    srd_w = ["s_mov_b32 s20, s6", "s_mov_b32 s21, s7", f"s_mov_b32 s22, {31*256*512*2}", "s_mov_b32 s23, 0x20000"]
    srd_s = ["s_mov_b32 s24, s14", "s_mov_b32 s25, s15", f"s_mov_b32 s26, {WS_BYTES}", "s_mov_b32 s27, 0x20000"]
    class Role:
        def __init__(self): self.vm = []; self.waits = {}; self.mode = "sim"; self.E = Null()
        def cnt(self, tag):
            l = [i for i, x in enumerate(self.vm) if x == tag]
            if not l: return 63
            return len(self.vm) - max(l) - 1
        def site(self, key, tag, extra=""):
            if self.mode == "sim": self.waits[key] = min(self.waits.get(key, 63), self.cnt(tag), 63)
            else: self.E(f"s_waitcnt vmcnt({self.waits[key]}){extra}")
    def wodma(R, i0):
        R.E(f"s_add_u32 m0, s56, {i0*1024}")
        R.E(f"s_add_u32 s45, s56, {i0*1024}")
        R.E(f"buffer_load_dwordx4 v8, s[52:55], s45 offen lds")
        R.vm.append("wo")
    def wo_setup(E):
        for l in ["s_mov_b32 s52, s8", "s_mov_b32 s53, s9", "s_mov_b32 s54, 131072", "s_mov_b32 s55, 0x20000",
                  "s_and_b32 s40, s30, 3", "s_lshl_b32 s56, s40, 10",
                  "v_lshrrev_b32 v12, 5, v5", "s_and_b32 s44, s40, 1", "s_lshl_b32 s44, s44, 1", "v_add_u32 v13, s44, v12",
                  "v_lshlrev_b32 v13, 2, v13", "v_and_b32 v8, 31, v5", "v_xor_b32 v8, v8, v13", "v_lshlrev_b32 v8, 4, v8",
                  "v_lshl_add_u32 v8, v12, 9, v8"]: E(l)
    def wo_sched(R, a):
        if opt.split: return
        if a < 8: wodma(R, 4 * a)
        else:
            for k in range(2): wodma(R, 64 + 8 * (a - 8) + 4 * k)
        if a == 15:
            for k in range(8): wodma(R, 32 + 4 * k)

    A.label("L_prod")
    A("s_cmp_ge_u32 s30, 6")
    A("s_cbranch_scc1 L_aux")
    RW = Role()
    def wdma(R, sig, creg):
        a = sig & 15
        for tile, tap in ((0, min(2 * a + 1, 30)), (1, 2 * a)):
            for h in range(2):
                R.E(f"s_add_u32 m0, s42, {(sig % NSLOT) * WSLOT + tile * 4096 + h * 2048}")
                if creg is None: R.E(f"s_mov_b32 s45, {tap * 262144 + h * 16384}")
                else: R.E(f"s_add_u32 s45, {creg}, {tap * 262144 + h * 16384}")
                R.E(f"buffer_load_dwordx4 v1, s[20:23], s45 offen lds")
                R.vm.append(("w", sig))
    def w_prologue(R):
        E = R.E
        for sg in range(opt.w_early): wdma(R, sg, None)
        E("s_mov_b32 s50, 0"); E("s_mov_b32 s51, 32768")
        R.site(("p1",), ("w", 1))
        if R.mode == "emit": dstamp(A, 6, opt)
        E("s_barrier")
        if R.mode == "emit": dstamp(A, 7, opt)
        for sg in range(opt.w_early, 8): wdma(R, sg, None)
        R.site(("p2",), ("w", 2))
        if R.mode == "emit": dstamp(A, 9, opt)
    def w_body(R, kind, c):
        E = R.E
        for a in range(16):
            s = 16 * c + a
            if kind == "first" and R.mode == "emit": dstamp(A, 32 + a, opt)
            E("s_barrier")
            if kind == "first" and R.mode == "emit": dstamp(A, 16 + a, opt)
            sig = s + 8
            if sig < 128: wdma(R, sig, "s51" if a >= 8 else "s50")
            if kind == "last": wo_sched(R, a)
            if a == 15 and kind != "last":
                E("s_mov_b32 s50, s51"); E("s_add_u32 s51, s51, 32768")
            if s + 3 < 128: R.site(("w", kind, a), ("w", s + 3))
    def w_all(R, loop):
        w_prologue(R)
        w_body(R, "first", 0)
        if loop:
            A("s_mov_b32 s38, 6"); A.label("L_wloop")
            w_body(R, "mid", 1)
            A("s_sub_u32 s38, s38, 1"); A("s_cmp_lg_u32 s38, 0"); A("s_cbranch_scc1 L_wloop")
        else:
            for c in range(1, 7): w_body(R, "mid", c)
        wo_setup(R.E)
        w_body(R, "last", 7)
    wdma_addr(A)
    dstamp(A, 1, opt)
    A("s_waitcnt lgkmcnt(0)")
    for l in srd_w + srd_s + srd_x: A(l)
    w_all(RW, False)
    RW.vm = []; RW.mode = "emit"; RW.E = A
    w_all(RW, True)
    A("s_branch L_store_p")

    A.label("L_aux")
    RA = Role()
    A("s_and_b32 s40, s30, 1")
    shared_addr(A)
    A("v_and_b32 v11, 15, v5")
    A("s_lshl_b32 s44, s40, 4")
    A("v_add_u32 v11, s44, v11")
    A("v_lshlrev_b32 v11, 10, v11")
    A("s_lshl_b32 s44, s28, 7")
    A("v_add_u32 v11, s44, v11")
    A("s_mul_i32 s44, s29, 262144")
    A("v_add_u32 v82, s44, v11")
    A("s_mov_b32 s90, 32768")
    A("s_and_b32 s44, s29, 15")
    A("s_lshl_b32 s44, s44, 1")
    A("s_add_u32 s44, s44, s40")
    A("s_lshl_b32 s44, s44, 5")
    A("v_and_b32 v83, 31, v5")
    A("v_add_u32 v83, s44, v83")
    A("v_lshlrev_b32 v83, 7, v83")
    A("v_lshlrev_b32 v2, 4, v5")
    A("s_lshl_b32 s56, s40, 10")
    A("s_lshl_b32 s57, s29, 18")
    A("s_add_u32 s57, s57, s56")
    A(f"s_add_u32 s57, s57, {WS_XIMG + 2*32768}")
    A("s_mov_b32 s58, s56")
    A("v_mov_b32 v86, 0")
    A("s_lshl_b32 s59, s29, 3")
    A("s_add_u32 s59, s59, s28")
    A("s_lshl_b32 s59, s59, 7")
    A(f"s_add_u32 s59, s59, {WS_FLAGS}")
    A("v_mov_b32 v84, s59")
    A("v_and_b32 v85, 7, v5")
    A("s_lshl_b32 s59, s29, 10")
    A(f"s_add_u32 s59, s59, {WS_FLAGS}")
    A("v_lshl_add_u32 v85, v85, 7, s59")
    dstamp(A, 1, opt)
    A("s_waitcnt lgkmcnt(0)")
    for l in srd_x + srd_w + srd_s: A(l)
    def xdma(R, c1, k):
        R.E(f"s_add_u32 m0, s58, {k*2048}")
        R.E(f"s_add_u32 s45, s57, {k*2048}")
        R.E(f"buffer_load_dwordx4 v2, s[24:27], s45 offen {'' if opt.xplain else 'sc1 '}lds")
        R.vm.append(("x", c1))
    def spin(R, name, load, check, fail_branch):
        E = R.E
        E("s_mov_b32 s46, 0x100000")
        if R.mode == "emit": A.label(f"L_{name}spin")
        E("s_sleep 2"); E(load); E("s_waitcnt vmcnt(0)")
        for l in check[0]: E(l)
        E("s_sub_u32 s46, s46, 1"); E("s_cmp_eq_u32 s46, 0"); E(f"s_cbranch_scc1 L_{name}ok")
        for l in check[1]: E(l)
        E(f"{fail_branch} L_{name}spin")
        if R.mode == "emit": A.label(f"L_{name}ok")
    def xstores(R, t):
        E = R.E
        E(f"s_mov_b32 s45, {XARR}")
        E(f"s_mov_b32 s46, {2*XARR}")
        E(f"buffer_store_dwordx4 {vr(128 + 8*t)}, v{SS+t}, s[24:27], 0 offen sc1")
        E(f"buffer_store_dwordx4 {vr(132 + 8*t)}, v{SS+t}, s[24:27], s45 offen sc1")
        E(f"buffer_store_dwordx4 {vr(RAW2 + 12*t + 4)}, v{SS+t}, s[24:27], s46 offen sc1")
        R.vm.extend(["xs"] * 3)
    def a_prologue(R):
        E = R.E
        for t in range(4):
            b_ = RAW2 + 12 * t
            E(f"buffer_load_dwordx4 {vr(b_)}, v{SO+2*t}, s[16:19], 0 offen")
            E(f"buffer_load_dwordx4 {vr(b_+4)}, v{SO+1+2*t}, s[16:19], 0 offen")
            E(f"buffer_load_dwordx4 {vr(b_+8)}, v{SO+1+2*t}, s[16:19], 0 offen offset:1024")
            R.vm.extend([("x2", t)] * 3)
        if R.mode == "emit":
            for l in ["s_cmp_lg_u32 s2, 0", "s_cbranch_scc1 L_nononce", "s_cmp_lg_u32 s30, 6", "s_cbranch_scc1 L_nononce",
                      "s_memrealtime s[46:47]", "s_waitcnt lgkmcnt(0)", "s_or_b32 s46, s46, 1", "v_mov_b32 v7, s46",
                      "s_mov_b64 exec, 1", "global_store_dword v86, v7, s[12:13] sc1", "s_mov_b64 exec, -1"]: A(l)
            A.label("L_nononce")
            dstamp(A, 3, opt)
        if R.mode == "emit": dstamp(A, 6, opt)
        E("s_barrier")
        if R.mode == "emit": dstamp(A, 7, opt)
        for t in range(opt.nwin):
            R.site(("x2", t), ("x2", t))
            if R.mode == "emit": job_valu(A, RAW2 + 12 * t, 128 + 8 * t, 132 + 8 * t)
        if R.mode == "emit": dstamp(A, 9, opt)
    def a_body(R, kind, c):
        E = R.E
        for a in range(16):
            if kind == "first" and R.mode == "emit": dstamp(A, 32 + a, opt)
            E("s_barrier")
            if kind == "first" and R.mode == "emit": dstamp(A, 16 + a, opt)
            if opt.prefetch and kind != "last" and a == opt.pf_a:
                E("buffer_load_dword v119, v82, s[20:23], s90 offen")
                E("s_add_u32 s90, s90, 32768")
                R.vm.append("pf")
            if opt.prefetch and kind == "first" and a == 12:
                E("global_load_dword v118, v83, s[8:9]")
                R.vm.append("pf")
            if kind == "first":
                rem = [(t, d) for t in range(opt.nwin, 4) for d in range(4)]
                for (t, d) in rem[2*a:2*a+2]:
                    if d == 0: R.site(("x2", t), ("x2", t))
                    if R.mode == "emit": job_valu(A, RAW2 + 12 * t, 128 + 8 * t, 132 + 8 * t, [d])
                st_at = {0: opt.st0, 1: opt.st0 + 2, 2: opt.st0 + 4, 3: opt.st0 + 6}
                for t in range(4):
                    if a == st_at[t]: xstores(R, t)
                if a == opt.sig_a - 2:
                    E("global_load_dword v87, v86, s[12:13] sc1")
                    R.vm.append("nonce")
                if a == opt.sig_a - 1:
                    R.site(("nonce",), "nonce")
                    E("v_readfirstlane_b32 s47, v87")
                    E("s_cmp_lg_u32 s47, 0")
                    E("s_cbranch_scc1 L_nok")
                    spin(R, "n", "global_load_dword v87, v86, s[12:13] sc1", (["v_readfirstlane_b32 s47, v87"], ["s_cmp_eq_u32 s47, 0"]), "s_cbranch_scc1")
                    R.site(("sig",), "xs")
                if a == opt.sig_a:
                    E("s_cmp_lg_u32 s30, 6")
                    E("s_cbranch_scc1 L_nosig")
                    E("v_mov_b32 v11, s47")
                    E("s_mov_b64 exec, 1")
                    E("global_store_dword v84, v11, s[14:15] sc1")
                    E("s_mov_b64 exec, -1")
                    if R.mode == "emit": A.label("L_nosig")
                if a == opt.poll_a - 2:
                    E("global_load_dword v87, v85, s[14:15] sc1")
                    R.vm.append("poll")
                if a == opt.poll_a - 1:
                    R.site(("poll",), "poll")
                    E("v_cmp_eq_u32 vcc, s47, v87")
                    E("s_nop 1")
                    E("s_cmp_eq_u64 vcc, -1")
                    E("s_cbranch_scc1 L_xok")
                    spin(R, "x", "global_load_dword v87, v85, s[14:15] sc1", (["v_cmp_eq_u32 vcc, s47, v87"], ["s_cmp_eq_u64 vcc, -1"]), "s_cbranch_scc0")
            elif kind == "mid":
                if 1 <= a <= 8:
                    for k in range(2):
                        kk = 2 * (a - 1) + k
                        if kk < 15: xdma(R, c + 1, kk)
                if a == 13: R.site(("xl",), ("x", c + 1))
                if a == 15:
                    E("s_add_u32 s57, s57, 32768")
                    E(f"s_xor_b32 s58, s58, {XBUF}")
            elif kind == "last":
                wo_sched(R, a)
    def a_all(R, loop):
        a_prologue(R)
        a_body(R, "first", 0)
        if loop:
            A("s_mov_b32 s38, 6"); A.label("L_aloop")
            a_body(R, "mid", 1)
            A("s_sub_u32 s38, s38, 1"); A("s_cmp_lg_u32 s38, 0"); A("s_cbranch_scc1 L_aloop")
        else:
            for c in range(1, 7): a_body(R, "mid", c)
        wo_setup(R.E)
        a_body(R, "last", 7)
    a_all(RA, False)
    RA.vm = []; RA.mode = "emit"; RA.E = A
    a_all(RA, True)

    A.label("L_store_p")
    A("s_waitcnt vmcnt(0)")
    A.label("L_store")
    A("s_barrier")
    A("v_and_b32 v1, 7, v0")
    A("v_lshrrev_b32 v2, 3, v0")
    A("v_and_b32 v3, 7, v2")
    A("v_xor_b32 v3, v3, v1")
    A("v_lshlrev_b32 v3, 4, v3")
    A("v_lshl_add_u32 v3, v2, 7, v3")
    A(f"v_add_u32 v3, {HST}, v3")
    for i in range(4): A(f"ds_read_b128 {vr(8+4*i)}, v3 offset:{i*64*128}")
    A("v_lshrrev_b32 v4, 5, v2")
    A("v_lshlrev_b32 v4, 15, v4")
    A("v_and_b32 v2, 31, v2")
    A("v_lshl_add_u32 v4, v2, 7, v4")
    A("v_lshl_add_u32 v4, v1, 4, v4")
    A("s_lshl_b32 s39, s29, 18")
    A("s_lshl_b32 s40, s28, 12")
    A("s_add_u32 s39, s39, s40")
    for i in range(4):
        A(f"s_waitcnt lgkmcnt({3-i})")
        A(f"buffer_store_dwordx4 {vr(8+4*i)}, v4, s[24:27], s39 offen {opt.hflags}")
        if i < 3: A("s_add_u32 s39, s39, 65536")
    if opt.split:
        A.label("L_end")
        A("s_endpgm")
        return A.text() + gen_stage2(opt)
    A("v_and_b32 v6, 15, v5")
    A("v_lshrrev_b32 v7, 4, v5")
    A("v_lshrrev_b32 v8, 2, v6")
    A("v_and_b32 v13, 3, v6")
    A("s_lshl_b32 s41, s30, 2")
    A("v_add_u32 v10, s41, v13")
    A("v_lshlrev_b32 v11, 2, v8")
    A("v_xor_b32 v10, v10, v11")
    A("v_lshlrev_b32 v10, 4, v10")
    A("v_lshl_add_u32 v11, v7, 3, v8")
    A("v_lshl_add_u32 v10, v11, 9, v10")
    A("v_add_u32 v12, 0x10000, v10")
    AF = 128
    for kap in range(8):
        for hf in range(2):
            off = kap * 32 * 512 + 8 * hf
            areg = 10 if kap < 4 else 12
            off -= 0 if kap < 4 else 65536
            d = AF + 8 * kap + 4 * hf
            A(f"ds_read_b64_tr_b16 {vr(d,2)}, v{areg} offset:{off}")
            A(f"ds_read_b64_tr_b16 {vr(d+2,2)}, v{areg} offset:{off+2048}")
    A("s_add_u32 s20, s10, s35")
    A("s_addc_u32 s21, s11, 0")
    A("s_mov_b32 s22, 2048000")
    A("s_mov_b32 s23, 0x20000")
    A("v_lshrrev_b32 v2, 4, v0")
    A("v_and_b32 v3, 15, v0")
    A("v_lshrrev_b32 v4, 3, v3")
    A("v_lshlrev_b32 v4, 12, v4")
    A("v_lshl_add_u32 v4, v2, 7, v4")
    A("v_and_b32 v14, 7, v3")
    A("v_lshl_add_u32 v4, v14, 4, v4")
    A("s_lshl_b32 s39, s29, 18")
    A("s_lshl_b32 s40, s28, 15")
    A("s_add_u32 s39, s39, s40")
    A("s_add_u32 s40, s39, 8192")
    A("s_add_u32 s41, s39, 16384")
    A("s_add_u32 s42, s39, 24576")
    A("s_mov_b32 s48, 0xc038aa3b")
    A("s_mov_b32 s49, 0xc038aa3b")
    A("s_mov_b32 s50, 0xbfb8aa3b")
    A("s_mov_b32 s51, 0xbfb8aa3b")
    A("s_mov_b32 s52, 1.0")
    A("s_mov_b32 s53, 1.0")
    A("s_mov_b32 s43, 0x42700000")
    A(f"v_mul_u32_u24 v9, {ZP}, v2")
    A("v_lshl_add_u32 v9, v3, 4, v9")
    A(f"v_add_u32 v9, {HST}, v9")
    A(f"v_mul_u32_u24 v11, {ZP}, v6")
    A("v_lshl_add_u32 v11, v7, 4, v11")
    A(f"v_add_u32 v11, {HST}, v11")
    A("v_lshlrev_b32 v8, 3, v6")
    A("s_add_u32 s44, s31, s28")
    A("v_add_u32 v8, s44, v8")
    A("v_lshlrev_b32 v8, 11, v8")
    A("s_lshl_b32 s44, s33, 9")
    A("s_lshl_b32 s45, s30, 6")
    A("s_add_u32 s44, s44, s45")
    A("v_add_u32 v8, s44, v8")
    A("v_lshl_add_u32 v8, v7, 4, v8")
    A("s_waitcnt vmcnt(0) lgkmcnt(0)")
    A("s_barrier")
    stamp(A, 3, opt)
    A("s_cmp_lg_u32 s30, 6")
    A("s_cbranch_scc1 L_hwait")
    A("v_add_u32 v84, 0x10000, v84")
    A("v_add_u32 v85, 0x10000, v85")
    A("v_mov_b32 v15, s47")
    A("s_mov_b64 exec, 1")
    A("global_store_dword v84, v15, s[14:15] sc1")
    A("s_mov_b64 exec, -1")
    A("s_mov_b32 s46, 0x100000")
    A.label("L_hspin")
    A("global_load_dword v87, v85, s[14:15] sc1")
    A("s_waitcnt vmcnt(0)")
    A("v_cmp_eq_u32 vcc, s47, v87")
    A("s_sub_u32 s46, s46, 1")
    A("s_cmp_eq_u32 s46, 0")
    A("s_cbranch_scc1 L_hwait")
    A("s_cmp_eq_u64 vcc, -1")
    A("s_cbranch_scc0 L_hspin")
    A.label("L_hwait")
    A("s_barrier")
    stamp(A, 4, opt)
    A(f"buffer_load_dwordx4 {vr(16)}, v4, s[24:27], s39 offen sc1")
    A(f"buffer_load_dwordx4 {vr(20)}, v4, s[24:27], s41 offen sc1")
    A(f"buffer_load_dwordx4 {vr(24)}, v4, s[24:27], s40 offen sc1")
    A(f"buffer_load_dwordx4 {vr(28)}, v4, s[24:27], s42 offen sc1")
    A("v_mov_b32 v14, 0xc2700000")
    for half in range(2):
        A(f"s_waitcnt vmcnt({2 if half == 0 else 0})")
        fb, gb = 16 + 8 * half, 20 + 8 * half
        zb = 32 + 4 * half
        for d0 in range(0, 4, 2):
            TT = [(40, d0), (52, d0 + 1)]
            for t, d in TT:
                A(f"v_lshlrev_b32 v{t}, 16, v{fb+d}"); A(f"v_and_b32 v{t+1}, s36, v{fb+d}")
                A(f"v_lshlrev_b32 v{t+2}, 16, v{gb+d}"); A(f"v_and_b32 v{t+3}, s36, v{gb+d}")
            for t, d in TT:
                A(f"v_pk_mul_f32 {vr(t,2)}, {vr(t,2)}, s[48:49]")
                A(f"v_pk_mul_f32 {vr(t+2,2)}, {vr(t+2,2)}, s[50:51]")
            for t, d in TT:
                A(f"v_med3_f32 v{t}, v{t}, s43, v14"); A(f"v_med3_f32 v{t+1}, v{t+1}, s43, v14")
            for t, d in TT:
                A(f"v_exp_f32 v{t+2}, v{t+2}"); A(f"v_exp_f32 v{t+3}, v{t+3}")
            for t, d in TT:
                A(f"v_exp_f32 v{t}, v{t}"); A(f"v_exp_f32 v{t+1}, v{t+1}")
            for t, d in TT:
                A(f"v_pk_add_f32 {vr(t+2,2)}, {vr(t+2,2)}, s[52:53]")
            for t, d in TT:
                A(f"v_pk_add_f32 {vr(t+4,2)}, {vr(t,2)}, s[52:53]")
                A(f"v_pk_add_f32 {vr(t,2)}, {vr(t,2)}, s[52:53] neg_lo:[1,0] neg_hi:[1,0]")
            for t, d in TT:
                A(f"v_pk_mul_f32 {vr(t+4,2)}, {vr(t+4,2)}, {vr(t+2,2)}")
            for t, d in TT:
                A(f"v_rcp_f32 v{t+4}, v{t+4}"); A(f"v_rcp_f32 v{t+5}, v{t+5}")
            A("s_nop 0")
            for t, d in TT:
                A(f"v_pk_mul_f32 {vr(t,2)}, {vr(t,2)}, {vr(t+4,2)}")
            for t, d in TT:
                A(f"v_cvt_pk_bf16_f32 v{zb+d}, v{t}, v{t+1}")
        A(f"ds_write_b128 v9, {vr(zb)} offset:{256*half}")
    A("s_waitcnt lgkmcnt(0)")
    A("s_barrier")
    tr = LdsTracker()
    ACC2 = 64
    BF = 192
    ops = []
    for kap in range(8):
        for tau in range(2):
            d = BF + 8 * (kap % 4) + 4 * tau
            if kap < 4: ops.append(("lds", f"ds_read_b128 {vr(d)}, v11 offset:{tau*16*ZP + kap*64}", rng(d, 4), []))
    for kap in range(8):
        for hf in range(2):
            for tau in range(2):
                acc = ACC2 + 4 * (2 * tau + hf)
                af = AF + 8 * kap + 4 * hf
                bf = BF + 8 * (kap % 4) + 4 * tau
                c = vr(acc) if kap > 0 else "0"
                ops.append(("mfma", f"v_mfma_f32_16x16x32_bf16 {vr(acc)}, {vr(af)}, {vr(bf)}, {c}", [], rng(bf, 4)))
        if kap < 4:
            for tau in range(2):
                d = BF + 8 * (kap % 4) + 4 * tau
                ops.append(("lds", f"ds_read_b128 {vr(d)}, v11 offset:{tau*16*ZP + (kap+4)*64}", rng(d, 4), []))
    emit_with_waits(A, ops, tr)
    A("s_nop 7")
    A("s_nop 1")
    for tau in range(2):
        a_ = ACC2 + 8 * tau
        t = 16 + 4 * tau
        A(f"v_cvt_pk_bf16_f32 v{t}, v{a_}, v{a_+1}")
        A(f"v_cvt_pk_bf16_f32 v{t+1}, v{a_+2}, v{a_+3}")
        A(f"v_cvt_pk_bf16_f32 v{t+2}, v{a_+4}, v{a_+5}")
        A(f"v_cvt_pk_bf16_f32 v{t+3}, v{a_+6}, v{a_+7}")
        A(f"buffer_store_dwordx4 {vr(t)}, v8, s[20:23], 0 offen offset:{1024*tau} {opt.outflags}")
    if opt.stamps and not opt.dbgat:
        A("s_waitcnt vmcnt(0)")
        stamp(A, 5, opt)
        A("s_waitcnt lgkmcnt(0)")
        if opt.dstamps:
            A("s_and_b32 s50, s30, 1")
            A("s_cmp_lg_u32 s50, 0")
            A("s_cbranch_scc1 L_nods")
            A("s_lshl_b32 s50, s2, 10")
            A("s_lshr_b32 s51, s30, 1")
            A("s_lshl_b32 s51, s51, 8")
            A("s_add_u32 s50, s50, s51")
            A(f"s_add_u32 s50, s50, {STAMP_OFF + 131072}")
            A("v_lshl_add_u32 v1, v5, 2, s50")
            A("global_store_dword v1, v245, s[14:15]")
            A.label("L_nods")
        if opt.cstamps:
            A("v_cmp_gt_u32 vcc, 16, v0")
            A("s_and_saveexec_b64 s[48:49], vcc")
            A("s_cbranch_execz L_nocs")
            A("s_lshl_b32 s50, s2, 6")
            A(f"s_add_u32 s50, s50, {STAMP_OFF + 65536}")
            A("v_lshl_add_u32 v1, v0, 2, s50")
            A("global_store_dword v1, v244, s[14:15]")
            A.label("L_nocs")
            A("s_mov_b64 exec, s[48:49]")
        A("v_cmp_eq_u32 vcc, 0, v0")
        A("s_and_saveexec_b64 s[48:49], vcc")
        A("s_cbranch_execz L_end")
        A("s_lshl_b32 s50, s2, 6")
        A(f"s_add_u32 s50, s50, {STAMP_OFF}")
        A("v_mov_b32 v1, s50")
        order = [60, 61, 80, 81, 62, 63, 82, 83, 64, 65, 68, 69, 72, 73, 76, 77]
        for i in range(0, 16, 4):
            for k in range(4): A(f"v_mov_b32 v{4+k}, s{order[i+k]}")
            A(f"global_store_dwordx4 v1, v[4:7], s[14:15] offset:{i*4}")
            A("s_nop 1")
    if opt.dbgat:
        A("s_waitcnt vmcnt(0)")
        stamp(A, 5, opt)
        A("s_waitcnt lgkmcnt(0)")
        A("v_cmp_eq_u32 vcc, 0, v0")
        A("s_and_saveexec_b64 s[48:49], vcc")
        A("s_cbranch_execz L_end")
        A("v_mov_b32 v1, 0")
        def amax(word, expr):
            for l in expr: A(l)
            A("v_mov_b32 v2, s50")
            A(f"global_atomic_umax v1, v2, s[12:13] offset:{4*word}")
        amax(4, ["s_mov_b32 s50, s82"])
        amax(5, ["s_not_b32 s50, s62"])
        amax(6, ["s_sub_u32 s50, s80, s60"])
        amax(7, ["s_sub_u32 s50, s64, s60"])
        amax(8, ["s_sub_u32 s50, s68, s60"])
        amax(9, ["s_sub_u32 s50, s72, s60"])
        amax(10, ["s_sub_u32 s50, s76, s60"])
        amax(11, ["s_sub_u32 s50, s82, s62"])
        A("s_waitcnt vmcnt(0)")
    A.label("L_end")
    A("s_endpgm")
    return A.text()


ST2 = "wavenet_stage2_kernel"
def map_ids(A, opt):
    if opt.map == "n8":
        A("s_and_b32 s28, s2, 7"); A("s_lshr_b32 s29, s2, 3")
    elif opt.map == "m4":
        for l in ["s_and_b32 s29, s2, 7", "s_lshl_b32 s29, s29, 2", "s_lshr_b32 s28, s2, 3", "s_lshr_b32 s35, s28, 3",
                  "s_add_u32 s29, s29, s35", "s_and_b32 s28, s28, 7"]: A(l)
    else:
        for l in ["s_lshr_b32 s35, s2, 3", "s_and_b32 s28, s2, 1", "s_lshl_b32 s28, s28, 2", "s_and_b32 s29, s35, 3",
                  "s_add_u32 s28, s28, s29", "s_lshr_b32 s29, s2, 1", "s_and_b32 s29, s29, 3", "s_lshl_b32 s29, s29, 3",
                  "s_lshr_b32 s35, s35, 2", "s_add_u32 s29, s29, s35"]: A(l)

def gating(A):
    A("v_mov_b32 v14, 0xc2700000")
    for half in range(2):
        fb, gb = 16 + 8 * half, 20 + 8 * half
        zb = 32 + 4 * half
        yield half
        for d0 in range(0, 4, 2):
            TT = [(40, d0), (52, d0 + 1)]
            for t, d in TT:
                A(f"v_lshlrev_b32 v{t}, 16, v{fb+d}"); A(f"v_and_b32 v{t+1}, s36, v{fb+d}")
                A(f"v_lshlrev_b32 v{t+2}, 16, v{gb+d}"); A(f"v_and_b32 v{t+3}, s36, v{gb+d}")
            for t, d in TT:
                A(f"v_pk_mul_f32 {vr(t,2)}, {vr(t,2)}, s[48:49]")
                A(f"v_pk_mul_f32 {vr(t+2,2)}, {vr(t+2,2)}, s[50:51]")
            for t, d in TT:
                A(f"v_med3_f32 v{t}, v{t}, s43, v14"); A(f"v_med3_f32 v{t+1}, v{t+1}, s43, v14")
            for t, d in TT:
                A(f"v_exp_f32 v{t+2}, v{t+2}"); A(f"v_exp_f32 v{t+3}, v{t+3}")
            for t, d in TT:
                A(f"v_exp_f32 v{t}, v{t}"); A(f"v_exp_f32 v{t+1}, v{t+1}")
            for t, d in TT:
                A(f"v_pk_add_f32 {vr(t+2,2)}, {vr(t+2,2)}, s[52:53]")
            for t, d in TT:
                A(f"v_pk_add_f32 {vr(t+4,2)}, {vr(t,2)}, s[52:53]")
                A(f"v_pk_add_f32 {vr(t,2)}, {vr(t,2)}, s[52:53] neg_lo:[1,0] neg_hi:[1,0]")
            for t, d in TT:
                A(f"v_pk_mul_f32 {vr(t+4,2)}, {vr(t+4,2)}, {vr(t+2,2)}")
            for t, d in TT:
                A(f"v_rcp_f32 v{t+4}, v{t+4}"); A(f"v_rcp_f32 v{t+5}, v{t+5}")
            A("s_nop 0")
            for t, d in TT:
                A(f"v_pk_mul_f32 {vr(t,2)}, {vr(t,2)}, {vr(t+4,2)}")
            for t, d in TT:
                A(f"v_cvt_pk_bf16_f32 v{zb+d}, v{t}, v{t+1}")
        A(f"ds_write_b128 v9, {vr(zb)} offset:{256*half}")

def gen_stage2(opt):
    A = Asm()
    A.raw(f".globl {ST2}\n.p2align 8\n.type {ST2},@function\n{ST2}:")
    A("s_cmp_ge_u32 s2, 256")
    A("s_cbranch_scc1 L2_end")
    A("s_load_dwordx4 s[8:11], s[0:1], 16")
    A("s_load_dwordx2 s[14:15], s[0:1], 40")
    A("v_lshrrev_b32 v1, 6, v0")
    A("v_and_b32 v5, 63, v0")
    map_ids(A, opt)
    A("v_readfirstlane_b32 s30, v1")
    A("s_and_b32 s31, s29, 7")
    A("s_lshl_b32 s31, s31, 7")
    A("s_lshr_b32 s32, s29, 3")
    A("s_and_b32 s33, s32, 1")
    A("s_lshr_b32 s34, s32, 1")
    A("s_mul_i32 s35, s34, 2048000")
    A("s_mov_b32 s36, 0xffff0000")
    A("v_lshrrev_b32 v2, 4, v0")
    A("v_and_b32 v3, 15, v0")
    A("v_lshrrev_b32 v4, 3, v3")
    A("v_lshlrev_b32 v4, 12, v4")
    A("v_lshl_add_u32 v4, v2, 7, v4")
    A("v_and_b32 v14, 7, v3")
    A("v_lshl_add_u32 v4, v14, 4, v4")
    A("s_lshl_b32 s39, s29, 18")
    A("s_lshl_b32 s40, s28, 15")
    A("s_add_u32 s39, s39, s40")
    A("s_add_u32 s40, s39, 8192")
    A("s_add_u32 s41, s39, 16384")
    A("s_add_u32 s42, s39, 24576")
    A("v_lshrrev_b32 v12, 5, v5")
    A("s_and_b32 s44, s30, 1")
    A("s_lshl_b32 s44, s44, 1")
    A("v_add_u32 v13, s44, v12")
    A("v_lshlrev_b32 v13, 2, v13")
    A("v_and_b32 v15, 31, v5")
    A("v_xor_b32 v15, v15, v13")
    A("v_lshlrev_b32 v15, 4, v15")
    A("v_lshl_add_u32 v15, v12, 9, v15")
    A("s_lshl_b32 s56, s30, 10")
    A("s_waitcnt lgkmcnt(0)")
    for l in ["s_mov_b32 s24, s14", "s_mov_b32 s25, s15", f"s_mov_b32 s26, {WS_BYTES}", "s_mov_b32 s27, 0x20000"]: A(l)
    A(f"buffer_load_dwordx4 {vr(16)}, v4, s[24:27], s39 offen")
    A(f"buffer_load_dwordx4 {vr(20)}, v4, s[24:27], s41 offen")
    A(f"buffer_load_dwordx4 {vr(24)}, v4, s[24:27], s40 offen")
    A(f"buffer_load_dwordx4 {vr(28)}, v4, s[24:27], s42 offen")
    for l in ["s_mov_b32 s52, s8", "s_mov_b32 s53, s9", "s_mov_b32 s54, 131072", "s_mov_b32 s55, 0x20000"]: A(l)
    for k in range(16):
        A(f"s_add_u32 m0, s56, {k*8192}")
        A(f"s_add_u32 s45, s56, {k*8192}")
        A("buffer_load_dwordx4 v15, s[52:55], s45 offen lds")
    A("s_add_u32 s20, s10, s35")
    A("s_addc_u32 s21, s11, 0")
    A("s_mov_b32 s22, 2048000")
    A("s_mov_b32 s23, 0x20000")
    A("v_and_b32 v6, 15, v5")
    A("v_lshrrev_b32 v7, 4, v5")
    A("v_lshrrev_b32 v8, 2, v6")
    A("v_and_b32 v13, 3, v6")
    A("s_lshl_b32 s44, s30, 2")
    A("v_add_u32 v10, s44, v13")
    A("v_lshlrev_b32 v11, 2, v8")
    A("v_xor_b32 v10, v10, v11")
    A("v_lshlrev_b32 v10, 4, v10")
    A("v_lshl_add_u32 v11, v7, 3, v8")
    A("v_lshl_add_u32 v10, v11, 9, v10")
    A("v_add_u32 v12, 0x10000, v10")
    A("s_mov_b32 s48, 0xc038aa3b"); A("s_mov_b32 s49, 0xc038aa3b")
    A("s_mov_b32 s50, 0xbfb8aa3b"); A("s_mov_b32 s51, 0xbfb8aa3b")
    A("s_mov_b32 s58, 1.0"); A("s_mov_b32 s59, 1.0")
    A("s_mov_b32 s43, 0x42700000")
    A(f"v_mul_u32_u24 v9, {ZP}, v2")
    A("v_lshl_add_u32 v9, v3, 4, v9")
    A(f"v_add_u32 v9, {HST}, v9")
    A(f"v_mul_u32_u24 v11, {ZP}, v6")
    A("v_lshl_add_u32 v11, v7, 4, v11")
    A(f"v_add_u32 v11, {HST}, v11")
    A("v_lshlrev_b32 v8, 3, v6")
    A("s_add_u32 s44, s31, s28")
    A("v_add_u32 v8, s44, v8")
    A("v_lshlrev_b32 v8, 11, v8")
    A("s_lshl_b32 s44, s33, 9")
    A("s_lshl_b32 s45, s30, 6")
    A("s_add_u32 s44, s44, s45")
    A("v_add_u32 v8, s44, v8")
    A("v_lshl_add_u32 v8, v7, 4, v8")
    B = Asm()
    for half in gating(B):
        B(f"s_waitcnt vmcnt({18 if half == 0 else 16})")
    A.lines += [l.replace("s[52:53]", "s[58:59]") for l in B.lines]
    A("s_waitcnt vmcnt(0) lgkmcnt(0)")
    A("s_barrier")
    AF, BF, ACC2 = 64, 128, 160
    tr = LdsTracker()
    ops = []
    def rdA(kap):
        o = []
        for hf in range(2):
            off = kap * 32 * 512 + 8 * hf
            areg = 10 if kap < 4 else 12
            off -= 0 if kap < 4 else 65536
            d = AF + 8 * kap + 4 * hf
            o.append(("lds", f"ds_read_b64_tr_b16 {vr(d,2)}, v{areg} offset:{off}", rng(d, 2), []))
            o.append(("lds", f"ds_read_b64_tr_b16 {vr(d+2,2)}, v{areg} offset:{off+2048}", rng(d+2, 2), []))
        for tau in range(2):
            d = BF + 8 * (kap % 4) + 4 * tau
            o.append(("lds", f"ds_read_b128 {vr(d)}, v11 offset:{tau*16*ZP + kap*64}", rng(d, 4), []))
        return o
    ops += rdA(0) + rdA(1)
    for kap in range(8):
        if kap + 2 < 8: ops += rdA(kap + 2)
        for hf in range(2):
            for tau in range(2):
                acc = ACC2 + 4 * (2 * tau + hf)
                af = AF + 8 * kap + 4 * hf
                bf = BF + 8 * (kap % 4) + 4 * tau
                c = vr(acc) if kap > 0 else "0"
                ops.append(("mfma", f"v_mfma_f32_16x16x32_bf16 {vr(acc)}, {vr(af)}, {vr(bf)}, {c}", [], rng(bf, 4) + rng(af, 4)))
    emit_with_waits(A, ops, tr)
    A("s_nop 7"); A("s_nop 1")
    for tau in range(2):
        a_ = ACC2 + 8 * tau
        t = 16 + 4 * tau
        A(f"v_cvt_pk_bf16_f32 v{t}, v{a_}, v{a_+1}")
        A(f"v_cvt_pk_bf16_f32 v{t+1}, v{a_+2}, v{a_+3}")
        A(f"v_cvt_pk_bf16_f32 v{t+2}, v{a_+4}, v{a_+5}")
        A(f"v_cvt_pk_bf16_f32 v{t+3}, v{a_+6}, v{a_+7}")
        A(f"buffer_store_dwordx4 {vr(t)}, v8, s[20:23], 0 offen offset:{1024*tau} {opt.outflags}")
    A.label("L2_end")
    A("s_endpgm")
    return A.text()

def kd(name, nv, ns=102):
    return f""".amdhsa_kernel {name}
  .amdhsa_next_free_vgpr {nv}
  .amdhsa_next_free_sgpr {ns}
  .amdhsa_accum_offset {(nv + 3) // 4 * 4}
  .amdhsa_group_segment_fixed_size 0
  .amdhsa_kernarg_size 48
  .amdhsa_user_sgpr_count 2
  .amdhsa_user_sgpr_kernarg_segment_ptr 1
  .amdhsa_system_sgpr_workgroup_id_x 1
.end_amdhsa_kernel
"""

HEADER = """; Kernarg layout for this problem (48 bytes, ptrs only, base s[0:1]):
"""

def main():
    ap = argparse.ArgumentParser()
    ap.add_argument("-o", default="standalone__autoregressive_conv_wavenet__speech.s")
    ap.add_argument("--stamps", action="store_true")
    ap.add_argument("--cap", type=int, default=2)
    ap.add_argument("--outflags", default="")
    ap.add_argument("--cstamps", action="store_true")
    ap.add_argument("--dstamps", action="store_true")
    ap.add_argument("--xplain", action="store_true")
    ap.add_argument("--align", action="store_true")
    ap.add_argument("--no-prefetch", dest="prefetch", action="store_false")
    ap.add_argument("--pf_a", type=int, default=3)
    ap.add_argument("--st0", type=int, default=0)
    ap.add_argument("--nwin", type=int, default=3)
    ap.add_argument("--w_early", type=int, default=4)
    ap.add_argument("--map", default="n4m8")
    ap.add_argument("--sig_a", type=int, default=11)
    ap.add_argument("--poll_a", type=int, default=16)
    ap.add_argument("--wo_gaps", type=lambda s: [int(x) for x in s.split(",")], default=[9, 10])
    ap.add_argument("--we_gaps", type=lambda s: [int(x) for x in s.split(",")], default=[17, 18])
    ap.add_argument("--bar_after", type=int, default=0)
    ap.add_argument("--e64", action="store_true")
    ap.add_argument("--novalu", action="store_true")
    ap.add_argument("--split", action="store_true")
    ap.add_argument("--hflags", default="sc1")
    ap.add_argument("--dbgat", action="store_true")
    ap.add_argument("--dot2", action="store_true")
    ap.add_argument("--swap", action="store_true")
    opt = ap.parse_args()
    E64[0] = opt.e64; NOVALU[0] = opt.novalu; DOT2[0] = opt.dot2; SWAP[0] = opt.swap
    m = gen_main(opt)
    out = HEADER
    if opt.split:
        out += f"; @launch kernel={MAIN} grid=(256,1,1) block=(512,1,1) lds={HST + 32768}\n"
        out += f"; @launch kernel={ST2} grid=(256,1,1) block=(512,1,1) lds={HST + 32*ZP}\n"
    else:
        out += f"; @launch grid=(256,1,1) block=(512,1,1) lds={LDS_TOTAL}\n"
    out += '.amdgcn_target "amdgcn-amd-amdhsa--gfx950"\n.text\n'
    out += m
    out += '.section .rodata,"a"\n.p2align 6\n' + kd(MAIN, NV + (2 if (opt.cstamps or opt.dstamps) else 0))
    if opt.split: out += ".p2align 6\n" + kd(ST2, 176)
    open(opt.o, "w").write(out)

if __name__ == "__main__":
    main()
```

```python
import sys, argparse

MAIN = "standalone__autoregressive_conv_wavenet__speech_kernel"

XROWG = 19
XARR = 152 * 64
XBUF = 32768
WRING = 65536
WSLOT = 8192
NSLOT = 8
HST = 131072
LDS_TOTAL = 163840
ZP = 528
WS_XIMG = 8 << 20
WS_BYTES = 16 << 20
MODE_LDS = 30720
STAMP_OFF = 16 << 20
WS_FLAGS = 17 << 20

class Asm:
    def __init__(self): self.lines = []
    def __call__(self, s): self.lines.append("    " + s)
    def label(self, s): self.lines.append(s + ":")
    def raw(self, s): self.lines.append(s)
    def text(self): return "\n".join(self.lines) + "\n"
class Null:
    def __call__(self, s): pass
    def label(self, s): pass
    def raw(self, s): pass

def vr(b, n=4): return f"v[{b}:{b+n-1}]"
def rng(b, n): return list(range(b, b + n))

V_XA0, V_XA1, V_XA2, V_WA = 1, 2, 3, 4
TMP = [8, 12]
WSET = {0: 16, 1: 28, 2: 232}
WIN = {"D1": 40, "D2": 72, "X0": 104}
ARR = {"D1": 0, "D2": 1, "X0": 2}
ACC = {"Q1": 136, "Q2": 168, "Q0": 200}
NV = 244

def wset(a):
    a %= 16
    return WSET[2] if a == 0 else WSET[a & 1]

class LdsTracker:
    def __init__(self): self.out = []
    def issue(self, regs): self.out.append(set(regs))
    def need(self, regs):
        regs = set(regs); p = -1
        for i, d in enumerate(self.out):
            if d & regs: p = i
        if p < 0: return None
        n = min(len(self.out) - p - 1, 15)
        self.out = self.out[len(self.out) - n:] if n > 0 else []
        return n
    def waitall(self): self.out = []

def x_read(arr, idx0, dst, nxt=False):
    q0, mp = idx0 >> 3, idx0 & 7
    areg = V_XA2 if nxt else (V_XA0 if q0 == 0 else V_XA1)
    assert (q0 == 2) if nxt else (q0 in (0, 1))
    off = ARR[arr] * XARR + (mp * XROWG + q0) * 64
    return ("lds", f"ds_read_b128 {vr(dst)}, v{areg} offset:{off}", rng(dst, 4), [])

def w_read(slot, tile, dst):
    off = (slot % NSLOT) * WSLOT + tile * 4096
    return [("lds", f"ds_read_b64_tr_b16 {vr(dst,2)}, v{V_WA} offset:{off}", rng(dst, 2), []),
            ("lds", f"ds_read_b64_tr_b16 {vr(dst+2,2)}, v{V_WA} offset:{off+512}", rng(dst + 2, 2), [])]

E64 = [False]
NOVALU = [False]
DOT2 = [False]
SWAP = [False]
def ws_valu(base):
    ops = []
    if NOVALU[0]: return ops
    if DOT2[0]:
        for d0 in (0, 2):
            seq = []
            for d in (d0, d0 + 1):
                o, e = base + d, base + 4 + d
                t = TMP[d & 1]
                seq.append([("valu", f"v_dot2_f32_bf16 v{t}, v{o}, s91, 0", [], [o]),
                            ("valu", f"v_dot2_f32_bf16 v{t+1}, v{o}, s92, 0", [], [o]),
                            ("valu", f"v_dot2_f32_bf16 v{t}, v{e}, s91, v{t}", [], [e]),
                            ("valu", f"v_dot2_f32_bf16 v{t+1}, v{e}, s92, v{t+1}", [], [e]),
                            ("valu", f"v_cvt_pk_bf16_f32 v{base+8+d}, v{t}, v{t+1}", [], [])])
            a_, b_ = seq
            ops += [a_[0], a_[1], a_[2], a_[3], b_[0], b_[1], b_[2], b_[3], a_[4], ("valu", "s_nop 0", [], []), b_[4]] if d0 == 2 else [a_[0], a_[1], a_[2], a_[3], b_[0], b_[1], b_[2], b_[3], a_[4]]
            if d0 == 0: pend = b_[4]
            else: ops.insert(len(ops) - 11 + 3, pend)
        return ops
    for d in range(4):
        o, e, s = base + d, base + 4 + d, base + 8 + d
        t = TMP[d & 1]
        x = "_e64" if E64[0] else ""
        ops += [("valu", f"v_lshlrev_b32{x} v{t}, 16, v{o}", [], [o]),
                ("valu", f"v_lshlrev_b32{x} v{t+1}, 16, v{e}", [], [e]),
                ("valu", f"v_and_b32{x} v{t+2}, s36, v{o}", [], [o]),
                ("valu", f"v_and_b32{x} v{t+3}, s36, v{e}", [], [e]),
                ("valu", f"v_add_f32{x} v{t}, v{t}, v{t+1}", [], []),
                ("valu", f"v_add_f32{x} v{t+2}, v{t+2}, v{t+3}", [], []),
                ("valu", f"v_cvt_pk_bf16_f32 v{s}, v{t}, v{t+2}", [], [])]
    return ops

def gen_period(a, opt):
    cur = wset(a)
    if a <= 14: steps = [("Q1", cur + 0, "D1"), ("Q2", cur + 4, "D2"), ("Q0", cur + 8, "X0")]
    else: steps = [("Q2", cur + 8, "D2"), ("Q0", cur + 8, "X0")]
    ng = 8 * len(steps)
    fill = [[] for _ in range(ng)]
    mf = []
    last = {"D1": 14, "D2": 15, "X0": 15}
    for si, (q, wreg, arr) in enumerate(steps):
        for k in range(8):
            m = 7 - k
            sl = (m - a) % 8
            b = WIN[arr] + 4 * sl
            acc = ACC[q] + 4 * m
            if SWAP[0]: mf.append(("mfma", f"v_mfma_f32_16x16x32_bf16 {vr(acc)}, {vr(b)}, {vr(wreg)}, {vr(acc)}", [], rng(wreg, 4) + rng(b, 4)))
            else: mf.append(("mfma", f"v_mfma_f32_16x16x32_bf16 {vr(acc)}, {vr(wreg)}, {vr(b)}, {vr(acc)}", [], rng(wreg, 4) + rng(b, 4)))
            g = 8 * si + k
            if a == last[arr]: fill[g].append(x_read(arr, 16 + sl, b, nxt=True))
            elif k == 0: fill[g].append(x_read(arr, 15 - a, b))
    def place(ops, gaps):
        for o, g in zip(ops, gaps): fill[g].append(o)
    if a <= 12:
        nb = wset(a + 2)
        place(w_read(a + 2, 0, nb + 0), opt.wo_gaps)
        place(w_read(a + 2, 1, nb + 4), opt.we_gaps)
    elif a == 14:
        nb = wset(0)
        place(w_read(16, 0, nb + 0), [0, 1])
        place(w_read(16, 1, nb + 4), [2, 3])
        place(w_read(15, 1, wset(15) + 8), [4, 5])
    elif a == 15:
        nb = wset(1)
        place(w_read(17, 0, nb + 0), [1, 3])
        place(w_read(17, 1, nb + 4), [9, 11])
    valu = []; g0 = 0
    if a <= 13: valu = ws_valu(wset(a + 1))
    elif a == 14: valu = ws_valu(wset(0)); g0 = 9
    if a == 0: valu = [("valu", f"v_xor_b32 v{V_XA2}, s37, v{V_XA2}", [], [])] + valu
    if a == 15:
        fill[12].append(("valu", f"v_xor_b32 v{V_XA0}, s37, v{V_XA0}", [], []))
        fill[13].append(("valu", f"v_xor_b32 v{V_XA1}, s37, v{V_XA1}", [], []))
    if valu:
        gaps = list(range(g0, ng)); n = len(valu)
        cap = {g: max(0, opt.cap - len(fill[g])) for g in gaps}
        if sum(cap.values()) < n:
            for g in gaps: cap[g] = max(cap[g], 1)
        assert sum(cap.values()) >= n
        tot = sum(cap.values()); i = 0; accq = 0.0
        for g in gaps:
            accq += cap[g] * n / tot
            take = min(int(accq + 1e-9) - i, cap[g])
            for _ in range(take):
                fill[g].append(valu[i]); i += 1
        while i < n:
            fill[ng - 1].append(valu[i]); i += 1
    out = []
    for g in range(ng):
        out.append(mf[g]); out += fill[g]
    return out

def emit_with_waits(A, ops, tr):
    for kind, text, dests, reads in ops:
        if reads:
            n = tr.need(reads)
            if n is not None: A(f"s_waitcnt lgkmcnt({n})")
        A(text)
        if kind == "lds": tr.issue(dests)

NST = 6
def dstamp(A, k, opt):
    if not opt.dstamps: return
    A("s_memtime s[86:87]")
    A("s_waitcnt lgkmcnt(0)")
    A(f"v_writelane_b32 v245, s86, {k}")
def stamp(A, idx, opt):
    if not opt.stamps: return
    A(f"s_memtime s[{60+4*idx}:{61+4*idx}]")
    A(f"s_memrealtime s[{62+4*idx}:{63+4*idx}]")

XO, XW = 110, 120
RAW = 16
PT = 88
PD1, PD2 = 100, 104
NPT = 5
BIG = 0x40000000

def pair_addr(A):
    A("v_lshrrev_b32 v11, 3, v5")
    A("v_and_b32 v12, 7, v5")
    A("s_lshl_b32 s44, s33, 9")
    A("v_mov_b32 v9, 0x40000000")
    A("v_lshl_add_u32 v8, v12, 4, s44")
    A("v_and_b32 v7, 3, v12")
    A("v_lshrrev_b32 v6, 2, v12")
    A("v_lshlrev_b32 v6, 15, v6")
    A(f"v_mul_u32_u24 v10, {XROWG*64}, v11")
    A("v_add_u32 v6, v6, v10")
    for t in range(NPT):
        A(f"s_add_u32 s41, s30, {4*t}")
        A("s_lshl_b32 s42, s41, 3")
        A("s_add_u32 s42, s42, s31")
        A("s_sub_u32 s42, s42, 16")
        A("v_add_u32 v14, s42, v11")
        A("v_lshl_add_u32 v15, v14, 11, v8")
        A("v_add_u32 v10, 0xfffffc00, v15")
        A("v_cmp_gt_i32 s[46:47], 0, v14")
        A("v_cmp_gt_i32 s[48:49], 1, v14")
        if t == NPT - 1:
            A("s_cmp_ge_u32 s41, 18")
            A("s_cselect_b64 s[56:57], -1, 0")
            A("s_or_b64 s[46:47], s[46:47], s[56:57]")
            A("s_or_b64 s[48:49], s[48:49], s[56:57]")
        A("s_lshr_b32 s42, s41, 1")
        A("s_and_b32 s42, s42, 2")
        A(f"v_cndmask_b32 v{XO+1+2*t}, v15, v9, s[46:47]")
        A(f"v_cndmask_b32 v{XO+2*t}, v10, v9, s[48:49]")
        A("v_xor_b32 v13, s42, v7")
        A("v_lshl_add_u32 v13, v13, 4, v6")
        A("s_lshl_b32 s41, s41, 6")
        A(f"v_add_u32 v{XW+t}, s41, v13")

def job_loads(A, raw, offs, n):
    for t in range(n):
        b = raw + 12 * t
        A(f"buffer_load_dwordx4 {vr(b)}, v{offs+2*t}, s[16:19], 0 offen")
        A(f"buffer_load_dwordx4 {vr(b+4)}, v{offs+1+2*t}, s[16:19], 0 offen")
        A(f"buffer_load_dwordx4 {vr(b+8)}, v{offs+1+2*t}, s[16:19], 0 offen offset:1024")

def job_valu(A, b, pd1, pd2, ds=range(4)):
    for d in ds:
        m_, x0, x1 = b + d, b + 4 + d, b + 8 + d
        T = PT + 6 * (d & 1)
        A(f"v_lshlrev_b32 v{T}, 16, v{x0}")
        A(f"v_and_b32 v{T+1}, s36, v{x0}")
        A(f"v_lshlrev_b32 v{T+2}, 16, v{x1}")
        A(f"v_and_b32 v{T+3}, s36, v{x1}")
        A(f"v_lshlrev_b32 v{T+4}, 16, v{m_}")
        A(f"v_and_b32 v{T+5}, s36, v{m_}")
        A(f"v_sub_f32 v{T+2}, v{T+2}, v{T}")
        A(f"v_sub_f32 v{T+3}, v{T+3}, v{T+1}")
        A(f"v_sub_f32 v{T+4}, v{T+4}, v{T}")
        A(f"v_sub_f32 v{T+5}, v{T+5}, v{T+1}")
        A(f"v_cvt_pk_bf16_f32 v{pd2+d}, v{T+2}, v{T+3}")
        A(f"v_cvt_pk_bf16_f32 v{pd1+d}, v{T+4}, v{T+5}")

def pair_compute(A):
    for t in range(NPT):
        if t == NPT - 1:
            A("s_cmp_ge_u32 s30, 2")
            A("s_cbranch_scc1 L_pj")
        A(f"s_waitcnt vmcnt({3 * (NPT - 1 - t)})")
        b = RAW + 12 * t
        pd1, pd2 = PD1 + 28 * (t & 1), PD2 + 28 * (t & 1)
        job_valu(A, b, pd1, pd2)
        A(f"ds_write_b128 v{XW+t}, {vr(pd1)} offset:{0*XARR}")
        A(f"ds_write_b128 v{XW+t}, {vr(pd2)} offset:{1*XARR}")
        A(f"ds_write_b128 v{XW+t}, {vr(b+4)} offset:{2*XARR}")
    A.label("L_pj")

RAW2, SO, SS = 16, 64, 72
def shared_addr(A):
    A("v_mov_b32 v83, 0x40000000")
    A("s_lshl_b32 s45, s33, 9")
    A("s_add_u32 s45, s45, 128")
    A("s_mul_i32 s46, s28, %d" % (XROWG * 64))
    A("s_lshl_b32 s44, s29, 18")
    A("s_add_u32 s46, s46, s44")
    A(f"s_add_u32 s46, s46, {WS_XIMG + 2*32768}")
    A("s_add_u32 s44, s31, s28")
    A("s_sub_u32 s44, s44, 16")
    A("s_movk_i32 s55, 911")
    A("v_and_b32 v10, 3, v5")
    for k in range(4):
        A(f"s_add_u32 s41, s40, {2*k}")
        A("s_lshl_b32 s41, s41, 6")
        A("v_add_u32 v11, s41, v5")
        A("v_mul_u32_u24 v12, s55, v11")
        A("v_lshrrev_b32 v12, 16, v12")
        A("v_mul_u32_u24 v13, 72, v12")
        A("v_sub_u32 v13, v11, v13")
        A("v_lshrrev_b32 v13, 2, v13")
        A("v_lshl_add_u32 v14, v13, 3, s44")
        A("v_lshlrev_b32 v15, 11, v14")
        A("v_lshl_add_u32 v15, v12, 6, v15")
        A("v_lshl_add_u32 v15, v10, 4, v15")
        A("v_add_u32 v15, s45, v15")
        A("v_add_u32 v82, 0xfffffc00, v15")
        A("v_cmp_gt_i32 s[48:49], 0, v14")
        A("v_cmp_gt_i32 s[50:51], 1, v14")
        A("v_cmp_le_u32 vcc, 0x1b0, v11")
        A("v_lshrrev_b32 v14, 1, v13")
        A("v_and_b32 v14, 2, v14")
        A("s_or_b64 s[48:49], s[48:49], vcc")
        A("s_or_b64 s[50:51], s[50:51], vcc")
        A("v_xor_b32 v14, v14, v10")
        A(f"v_cndmask_b32 v{SO+1+2*k}, v15, v83, s[48:49]")
        A(f"v_cndmask_b32 v{SO+2*k}, v82, v83, s[50:51]")
        A("v_lshlrev_b32 v14, 4, v14")
        A("v_lshl_add_u32 v14, v13, 6, v14")
        A("v_lshl_add_u32 v14, v12, 15, v14")
        A("v_add_u32 v14, s46, v14")
        A(f"v_cndmask_b32 v{SS+k}, v14, v83, vcc")

def wdma_addr(A):
    A("v_lshrrev_b32 v6, 3, v5")
    A("s_lshl_b32 s44, s40, 3")
    A("v_add_u32 v6, s44, v6")
    A("v_and_b32 v7, 7, v5")
    A("v_lshrrev_b32 v8, 1, v6")
    A("v_and_b32 v8, 1, v8")
    A("v_lshrrev_b32 v9, 2, v6")
    A("v_and_b32 v9, 2, v9")
    A("v_or_b32 v8, v9, v8")
    A("v_lshrrev_b32 v9, 1, v7")
    A("v_xor_b32 v8, v8, v9")
    A("v_lshlrev_b32 v8, 5, v8")
    A("v_and_b32 v9, 1, v7")
    A("v_lshl_add_u32 v8, v9, 4, v8")
    A("v_lshl_add_u32 v8, v6, 10, v8")
    A("s_lshl_b32 s44, s28, 7")
    A("v_add_u32 v1, s44, v8")
    A("s_lshl_b32 s42, s40, 10")
    A(f"s_add_u32 s42, s42, {WRING}")

def dma_text(sig, creg):
    out = []
    a = sig & 15
    for tile, tap in ((0, min(2 * a + 1, 30)), (1, 2 * a)):
        out.append(f"s_add_u32 m0, s42, {(sig % NSLOT) * WSLOT + tile * 4096}")
        if creg is None: out.append(f"s_mov_b32 s45, {tap * 262144}")
        else: out.append(f"s_add_u32 s45, {creg}, {tap * 262144}")
        out.append(f"buffer_load_dwordx4 v1, s[20:23], s45 offen lds")
    return out

def gen_main(opt):
    A = Asm()
    A.raw(f".globl {MAIN}\n.p2align 8\n.type {MAIN},@function\n{MAIN}:")
    A("s_cmp_ge_u32 s2, 256")
    A("s_cbranch_scc1 L_end")
    A("s_load_dwordx4 s[4:7], s[0:1], 0")
    A("s_load_dwordx4 s[8:11], s[0:1], 16")
    A("s_load_dwordx4 s[12:15], s[0:1], 32")
    if opt.codepf:
        A("s_getpc_b64 s[44:45]")
        A.label("L_pcref")
        A(f"s_sub_u32 s44, s44, L_pcref-{MAIN}")
        A("s_subb_u32 s45, s45, 0")
        A("v_lshlrev_b32 v11, 6, v0")
        A(f"v_min_u32 v11, L_end-{MAIN}, v11")
        A("global_load_dword v250, v11, s[44:45]")
    stamp(A, 0, opt)
    dstamp(A, 0, opt)
    A("v_lshrrev_b32 v1, 6, v0")
    A("v_and_b32 v5, 63, v0")
    A("v_readfirstlane_b32 s30, v1")
    if opt.map == "n8":
        A("s_and_b32 s28, s2, 7")
        A("s_lshr_b32 s29, s2, 3")
    elif opt.map == "m4":
        A("s_and_b32 s29, s2, 7")
        A("s_lshl_b32 s29, s29, 2")
        A("s_lshr_b32 s28, s2, 3")
        A("s_lshr_b32 s35, s28, 3")
        A("s_add_u32 s29, s29, s35")
        A("s_and_b32 s28, s28, 7")
    else:
        A("s_lshr_b32 s35, s2, 3")
        A("s_and_b32 s28, s2, 1")
        A("s_lshl_b32 s28, s28, 2")
        A("s_and_b32 s29, s35, 3")
        A("s_add_u32 s28, s28, s29")
        A("s_lshr_b32 s29, s2, 1")
        A("s_and_b32 s29, s29, 3")
        A("s_lshl_b32 s29, s29, 3")
        A("s_lshr_b32 s35, s35, 2")
        A("s_add_u32 s29, s29, s35")
    A("s_and_b32 s31, s29, 7")
    A("s_lshl_b32 s31, s31, 7")
    A("s_lshr_b32 s32, s29, 3")
    A("s_and_b32 s33, s32, 1")
    A("s_lshr_b32 s34, s32, 1")
    A("s_mov_b32 s36, 0xffff0000")
    A("s_mov_b32 s91, 0x00003f80")
    A("s_mov_b32 s92, 0x3f800000")
    A(f"s_mov_b32 s37, {XBUF}")
    A("s_mul_i32 s35, s34, 2048000")
    A("s_and_b32 s40, s30, 3")
    A("s_cmp_ge_u32 s30, 4")
    A("s_cbranch_scc1 L_prod")

    pair_addr(A)
    dstamp(A, 1, opt)
    A("s_waitcnt lgkmcnt(0)")
    A("s_add_u32 s16, s4, s35")
    A("s_addc_u32 s17, s5, 0")
    A("s_mov_b32 s18, 2048000")
    A("s_mov_b32 s19, 0x20000")
    job_loads(A, RAW, XO, NPT)
    A("s_mov_b32 s20, s6")
    A("s_mov_b32 s21, s7")
    A(f"s_mov_b32 s22, {31*256*512*2}")
    A("s_mov_b32 s23, 0x20000")
    A("s_mov_b32 s24, s14")
    A("s_mov_b32 s25, s15")
    A(f"s_mov_b32 s26, {WS_BYTES}")
    A("s_mov_b32 s27, 0x20000")
    dstamp(A, 2, opt)
    for q in ("Q1", "Q2", "Q0"):
        for i in range(32): A(f"v_mov_b32 v{ACC[q]+i}, 0")
    dstamp(A, 3, opt)
    if opt.dstamps:
        A(f"s_waitcnt vmcnt({3*(NPT-1)})")
        dstamp(A, 4, opt)
    pair_compute(A)
    dstamp(A, 5, opt)
    A("v_and_b32 v6, 15, v5")
    A("v_lshrrev_b32 v7, 4, v5")
    for q0, reg in ((0, V_XA0), (1, V_XA1), (2, V_XA2)):
        A(f"v_add_u32 v8, {q0}, v6")
        A("v_lshrrev_b32 v8, 1, v8")
        A("v_and_b32 v8, 2, v8")
        A("v_xor_b32 v8, v8, v7")
        A("v_lshlrev_b32 v8, 4, v8")
        A(f"v_lshl_add_u32 v{reg}, v6, 6, v8")
    A("v_lshrrev_b32 v8, 2, v6")
    A("v_and_b32 v9, 3, v6")
    A("v_lshrrev_b32 v10, 1, v8")
    A("v_and_b32 v10, 1, v10")
    A("v_and_b32 v11, 1, v7")
    A("v_lshl_or_b32 v10, v11, 1, v10")
    A("v_xor_b32 v10, s30, v10")
    A("v_lshlrev_b32 v10, 5, v10")
    A("v_lshl_add_u32 v11, v7, 3, v8")
    A("v_lshl_add_u32 v10, v11, 7, v10")
    A("v_lshl_add_u32 v10, v9, 3, v10")
    A(f"v_add_u32 v{V_WA}, {WRING}, v10")
    A("s_waitcnt vmcnt(0) lgkmcnt(0)")
    dstamp(A, 6, opt)
    A("s_barrier")
    dstamp(A, 7, opt)
    stamp(A, 1, opt)
    tr = LdsTracker()
    pro = w_read(0, 0, wset(0)) + w_read(0, 1, wset(0) + 4)
    for jj in range(7, -1, -1): pro.append(x_read("D1", 16 + jj, WIN["D1"] + 4 * jj, nxt=True))
    pro += w_read(1, 0, wset(1)) + w_read(1, 1, wset(1) + 4)
    for arr in ("D2", "X0"):
        for jj in range(7, -1, -1): pro.append(x_read(arr, 16 + jj, WIN[arr] + 4 * jj, nxt=True))
    pro += ws_valu(wset(0))
    emit_with_waits(A, pro, tr)
    A("s_waitcnt lgkmcnt(0)")
    dstamp(A, 8, opt)
    tr.waitall()
    A("s_mov_b32 s38, 8")
    if opt.cstamps:
        A("s_memtime s[84:85]")
        A("s_waitcnt lgkmcnt(0)")
    def body(AA, tr):
        for a in range(16):
            if a == 15:
                AA("s_waitcnt lgkmcnt(0)"); tr.waitall()
            ops = gen_period(a, opt)
            if opt.bar_after:
                k = opt.bar_after
                mi = [i for i, o in enumerate(ops) if o[0] == "mfma"]
                head = [ops[i] for i in mi[:k]]
                moved = [o for i, o in enumerate(ops[:mi[k-1]+1]) if o[0] == "lds"]
                keepv = [(i, o) for i, o in enumerate(ops[:mi[k-1]+1]) if o[0] != "lds"]
                ops = [o for i, o in keepv] + [("bar", "s_barrier", [], [])] + moved + ops[mi[k-1]+1:]
            else:
                ops = [("bar", "s_barrier", [], [])] + ops
            emit_with_waits(AA, ops, tr)
    body(Null(), tr)
    if opt.align: A.raw(".p2align 6")
    A.label("L_cloop")
    body(A, tr)
    if opt.cstamps:
        A("s_mov_b32 m0, s38")
        A("s_nop 0")
        A("v_writelane_b32 v244, s84, m0")
        A("s_memtime s[84:85]")
    A("s_sub_u32 s38, s38, 1")
    A("s_cmp_lg_u32 s38, 0")
    A("s_cbranch_scc1 L_cloop")
    if opt.cstamps:
        A("s_waitcnt lgkmcnt(0)")
        A("v_writelane_b32 v244, s84, 0")
    A.label("L_cepi")
    stamp(A, 2, opt)
    dstamp(A, 50, opt)
    A("v_and_b32 v6, 15, v5")
    A("v_lshrrev_b32 v7, 4, v5")
    A("s_lshl_b32 s39, s30, 2")
    A("v_add_u32 v8, s39, v7")
    A("v_and_b32 v9, 7, v6")
    A("v_lshlrev_b32 v9, 1, v9")
    A("v_xor_b32 v8, v8, v9")
    A("v_lshlrev_b32 v8, 3, v8")
    A("v_lshl_add_u32 v1, v6, 7, v8")
    A(f"v_add_u32 v1, {HST}, v1")
    A("s_nop 4")
    A("s_waitcnt lgkmcnt(0)")
    for m in range(8):
        for q, acc in ((0, "Q1"), (1, "Q2")):
            a0 = ACC["Q0"] + 4 * m; a1 = ACC[acc] + 4 * m
            t = 8 + 8 * ((2 * m + q) % 4)
            A(f"v_pk_add_f32 {vr(t,2)}, {vr(a0,2)}, {vr(a1,2)}")
            A(f"v_pk_add_f32 {vr(t+2,2)}, {vr(a0+2,2)}, {vr(a1+2,2)}")
            A(f"v_cvt_pk_bf16_f32 v{t+4}, v{t}, v{t+1}")
            A(f"v_cvt_pk_bf16_f32 v{t+5}, v{t+2}, v{t+3}")
            A(f"ds_write_b64 v1, {vr(t+4,2)} offset:{(2*m+q)*16*128}")
        if m == 3 and opt.half2:
            A("s_waitcnt lgkmcnt(0)")
            A("s_barrier")
    A("s_waitcnt lgkmcnt(0)")
    dstamp(A, 51, opt)
    A("s_branch L_store")

    srd_x = ["s_add_u32 s16, s4, s35", "s_addc_u32 s17, s5, 0", "s_mov_b32 s18, 2048000", "s_mov_b32 s19, 0x20000"]
    srd_w = ["s_mov_b32 s20, s6", "s_mov_b32 s21, s7", f"s_mov_b32 s22, {31*256*512*2}", "s_mov_b32 s23, 0x20000"]
    srd_s = ["s_mov_b32 s24, s14", "s_mov_b32 s25, s15", f"s_mov_b32 s26, {WS_BYTES}", "s_mov_b32 s27, 0x20000"]
    class Role:
        def __init__(self): self.vm = []; self.waits = {}; self.mode = "sim"; self.E = Null()
        def cnt(self, tag):
            l = [i for i, x in enumerate(self.vm) if x == tag]
            if not l: return 63
            return len(self.vm) - max(l) - 1
        def site(self, key, tag, extra=""):
            if self.mode == "sim": self.waits[key] = min(self.waits.get(key, 63), self.cnt(tag), 63)
            else: self.E(f"s_waitcnt vmcnt({self.waits[key]}){extra}")
    def wodma(R, i0):
        R.E(f"s_add_u32 m0, s56, {i0*1024}")
        R.E(f"s_add_u32 s45, s56, {i0*1024}")
        R.E(f"buffer_load_dwordx4 v8, s[52:55], s45 offen lds")
        R.vm.append("wo")
    def wo_setup(E):
        for l in ["s_mov_b32 s52, s8", "s_mov_b32 s53, s9", "s_mov_b32 s54, 131072", "s_mov_b32 s55, 0x20000",
                  "s_and_b32 s40, s30, 3", "s_lshl_b32 s56, s40, 10",
                  "v_lshrrev_b32 v12, 5, v5", "s_and_b32 s44, s40, 1", "s_lshl_b32 s44, s44, 1", "v_add_u32 v13, s44, v12",
                  "v_lshlrev_b32 v13, 2, v13", "v_and_b32 v8, 31, v5", "v_xor_b32 v8, v8, v13", "v_lshlrev_b32 v8, 4, v8",
                  "v_lshl_add_u32 v8, v12, 9, v8"]: E(l)
    def wo_sched(R, a):
        if opt.split: return
        if a < 8: wodma(R, 4 * a)
        else:
            for k in range(2): wodma(R, 64 + 8 * (a - 8) + 4 * k)
        if a == 15:
            for k in range(8): wodma(R, 32 + 4 * k)

    A.label("L_prod")
    A("s_cmp_ge_u32 s30, 6")
    A("s_cbranch_scc1 L_aux")
    RW = Role()
    def wdma(R, sig, creg):
        a = sig & 15
        for tile, tap in ((0, min(2 * a + 1, 30)), (1, 2 * a)):
            for h in range(2):
                R.E(f"s_add_u32 m0, s42, {(sig % NSLOT) * WSLOT + tile * 4096 + h * 2048}")
                if creg is None: R.E(f"s_mov_b32 s45, {tap * 262144 + h * 16384}")
                else: R.E(f"s_add_u32 s45, {creg}, {tap * 262144 + h * 16384}")
                R.E(f"buffer_load_dwordx4 v1, s[20:23], s45 offen lds")
                R.vm.append(("w", sig))
    def w_prologue(R):
        E = R.E
        for sg in range(opt.w_early): wdma(R, sg, None)
        E("s_mov_b32 s50, 0"); E("s_mov_b32 s51, 32768")
        R.site(("p1",), ("w", 1))
        if R.mode == "emit": dstamp(A, 6, opt)
        E("s_barrier")
        if R.mode == "emit": dstamp(A, 7, opt)
        for sg in range(opt.w_early, 8): wdma(R, sg, None)
        R.site(("p2",), ("w", 2))
        if R.mode == "emit": dstamp(A, 9, opt)
    def w_body(R, kind, c):
        E = R.E
        for a in range(16):
            s = 16 * c + a
            if kind == "first" and R.mode == "emit": dstamp(A, 32 + a, opt)
            E("s_barrier")
            if kind == "first" and R.mode == "emit": dstamp(A, 16 + a, opt)
            sig = s + 8
            if sig < 128: wdma(R, sig, "s51" if a >= 8 else "s50")
            if kind == "last": wo_sched(R, a)
            if a == 15 and kind != "last":
                E("s_mov_b32 s50, s51"); E("s_add_u32 s51, s51, 32768")
            if s + 3 < 128: R.site(("w", kind, a), ("w", s + 3))
    def w_all(R, loop):
        w_prologue(R)
        w_body(R, "first", 0)
        if loop:
            A("s_mov_b32 s38, 6"); A.label("L_wloop")
            w_body(R, "mid", 1)
            A("s_sub_u32 s38, s38, 1"); A("s_cmp_lg_u32 s38, 0"); A("s_cbranch_scc1 L_wloop")
        else:
            for c in range(1, 7): w_body(R, "mid", c)
        R.E(f"v_mov_b32 v13, {MODE_LDS}")
        R.E("ds_read_b32 v12, v13")
        R.E("s_waitcnt lgkmcnt(0)")
        R.E("v_readfirstlane_b32 s94, v12")
        wo_setup(R.E)
        w_body(R, "last", 7)
    wdma_addr(A)
    dstamp(A, 1, opt)
    A("s_waitcnt lgkmcnt(0)")
    for l in srd_w + srd_s + srd_x: A(l)
    w_all(RW, False)
    RW.vm = []; RW.mode = "emit"; RW.E = A
    w_all(RW, True)
    A("s_branch L_store_p")

    A.label("L_aux")
    RA = Role()
    A("s_and_b32 s40, s30, 1")
    shared_addr(A)
    A("v_and_b32 v11, 15, v5")
    A("s_lshl_b32 s44, s40, 4")
    A("v_add_u32 v11, s44, v11")
    A("v_lshlrev_b32 v11, 10, v11")
    A("s_lshl_b32 s44, s28, 7")
    A("v_add_u32 v11, s44, v11")
    A("s_mul_i32 s44, s29, 262144")
    A("v_add_u32 v82, s44, v11")
    A("s_mov_b32 s90, 32768")
    A("s_and_b32 s44, s29, 15")
    A("s_lshl_b32 s44, s44, 1")
    A("s_add_u32 s44, s44, s40")
    A("s_lshl_b32 s44, s44, 5")
    A("v_and_b32 v83, 31, v5")
    A("v_add_u32 v83, s44, v83")
    A("v_lshlrev_b32 v83, 7, v83")
    A("v_lshlrev_b32 v2, 4, v5")
    A("s_lshl_b32 s56, s40, 10")
    A("s_lshl_b32 s57, s29, 18")
    A("s_add_u32 s57, s57, s56")
    A(f"s_add_u32 s57, s57, {WS_XIMG + 2*32768}")
    A("s_mov_b32 s58, s56")
    A("s_getreg_b32 s93, hwreg(HW_REG_XCC_ID)")
    A("s_and_b32 s93, s93, 15")
    A("v_mov_b32 v86, 0")
    A("s_lshl_b32 s59, s29, 3")
    A("s_add_u32 s59, s59, s28")
    A("s_lshl_b32 s59, s59, 7")
    A(f"s_add_u32 s59, s59, {WS_FLAGS}")
    A("v_mov_b32 v84, s59")
    A("v_and_b32 v85, 7, v5")
    A("s_lshl_b32 s59, s29, 10")
    A(f"s_add_u32 s59, s59, {WS_FLAGS}")
    A("v_lshl_add_u32 v85, v85, 7, s59")
    if opt.wtouch:
        A("v_and_b32 v11, 31, v5")
        A("v_lshlrev_b32 v11, 7, v11")
        A("s_lshl_b32 s44, s29, 18")
        A("s_lshl_b32 s45, s28, 12")
        A("s_add_u32 s44, s44, s45")
        A("s_lshl_b32 s45, s40, 17")
        A("s_add_u32 s44, s44, s45")
        A("v_add_u32 v76, s44, v11")
        A("s_mov_b32 s95, 0")
        A("v_lshrrev_b32 v11, 2, v5")
        A("v_lshlrev_b32 v11, 3, v11")
        A("s_add_u32 s44, s31, s28")
        A("v_add_u32 v11, s44, v11")
        A("v_lshlrev_b32 v11, 11, v11")
        A("v_and_b32 v12, 3, v5")
        A("v_lshl_add_u32 v11, v12, 7, v11")
        A("s_lshl_b32 s44, s33, 9")
        A("s_lshl_b32 s45, s40, 10")
        A("s_add_u32 s44, s44, s45")
        A("v_add_u32 v77, s44, v11")
    dstamp(A, 1, opt)
    A("s_waitcnt lgkmcnt(0)")
    for l in srd_x + srd_w + srd_s: A(l)
    def xdma(R, c1, k):
        R.E(f"s_add_u32 m0, s58, {k*2048}")
        R.E(f"s_add_u32 s45, s57, {k*2048}")
        R.E(f"buffer_load_dwordx4 v2, s[24:27], s45 offen {'' if opt.xplain else 'sc1 '}lds")
        R.vm.append(("x", c1))
    def spin(R, name, load, check, fail_branch):
        E = R.E
        E("s_mov_b32 s46, 0x100000")
        if R.mode == "emit": A.label(f"L_{name}spin")
        E("s_sleep 2"); E(load); E("s_waitcnt vmcnt(0)")
        for l in check[0]: E(l)
        E("s_sub_u32 s46, s46, 1"); E("s_cmp_eq_u32 s46, 0"); E(f"s_cbranch_scc1 L_{name}ok")
        for l in check[1]: E(l)
        E(f"{fail_branch} L_{name}spin")
        if R.mode == "emit": A.label(f"L_{name}ok")
    def xstores(R, t):
        E = R.E
        E(f"s_mov_b32 s45, {XARR}")
        E(f"s_mov_b32 s46, {2*XARR}")
        E(f"buffer_store_dwordx4 {vr(128 + 8*t)}, v{SS+t}, s[24:27], 0 offen sc1")
        E(f"buffer_store_dwordx4 {vr(132 + 8*t)}, v{SS+t}, s[24:27], s45 offen sc1")
        E(f"buffer_store_dwordx4 {vr(RAW2 + 12*t + 4)}, v{SS+t}, s[24:27], s46 offen sc1")
        R.vm.extend(["xs"] * 3)
    def a_prologue(R):
        E = R.E
        for t in range(4):
            b_ = RAW2 + 12 * t
            E(f"buffer_load_dwordx4 {vr(b_)}, v{SO+2*t}, s[16:19], 0 offen")
            E(f"buffer_load_dwordx4 {vr(b_+4)}, v{SO+1+2*t}, s[16:19], 0 offen")
            E(f"buffer_load_dwordx4 {vr(b_+8)}, v{SO+1+2*t}, s[16:19], 0 offen offset:1024")
            R.vm.extend([("x2", t)] * 3)
        if R.mode == "emit":
            for l in ["s_cmp_lg_u32 s2, 0", "s_cbranch_scc1 L_nononce", "s_cmp_lg_u32 s30, 6", "s_cbranch_scc1 L_nononce",
                      "s_memrealtime s[46:47]", "s_waitcnt lgkmcnt(0)", "s_and_b32 s46, s46, 0xfffffff0", "s_or_b32 s46, s46, 16", "v_mov_b32 v7, s46",
                      "s_mov_b64 exec, 1", "global_store_dword v86, v7, s[12:13] sc1", "s_mov_b64 exec, -1"]: A(l)
            A.label("L_nononce")
            dstamp(A, 3, opt)
        if R.mode == "emit": dstamp(A, 6, opt)
        E("s_barrier")
        if R.mode == "emit": dstamp(A, 7, opt)
        for t in range(opt.nwin):
            R.site(("x2", t), ("x2", t))
            if R.mode == "emit": job_valu(A, RAW2 + 12 * t, 128 + 8 * t, 132 + 8 * t)
        if R.mode == "emit": dstamp(A, 9, opt)
    def a_body(R, kind, c):
        E = R.E
        for a in range(16):
            if kind == "first" and R.mode == "emit": dstamp(A, 32 + a, opt)
            E("s_barrier")
            if kind == "first" and R.mode == "emit": dstamp(A, 16 + a, opt)
            if opt.prefetch and kind != "last" and a == opt.pf_a:
                E("buffer_load_dword v119, v82, s[20:23], s90 offen")
                E("s_add_u32 s90, s90, 32768")
                R.vm.append("pf")
            if opt.prefetch and kind == "first" and a == 12:
                E("global_load_dword v118, v83, s[8:9]")
                R.vm.append("pf")
            if kind == "first":
                rem = [(t, d) for t in range(opt.nwin, 4) for d in range(4)]
                for (t, d) in rem[2*a:2*a+2]:
                    if d == 0: R.site(("x2", t), ("x2", t))
                    if R.mode == "emit": job_valu(A, RAW2 + 12 * t, 128 + 8 * t, 132 + 8 * t, [d])
                st_at = {0: opt.st0, 1: opt.st0 + 2, 2: opt.st0 + 4, 3: opt.st0 + 6}
                for t in range(4):
                    if a == st_at[t]: xstores(R, t)
                if a == opt.sig_a - 2:
                    E("global_load_dword v87, v86, s[12:13] sc1")
                    R.vm.append("nonce")
                if a == opt.sig_a - 1:
                    R.site(("nonce",), "nonce")
                    E("v_readfirstlane_b32 s47, v87")
                    E("s_cmp_lg_u32 s47, 0")
                    E("s_cbranch_scc1 L_nok")
                    spin(R, "n", "global_load_dword v87, v86, s[12:13] sc1", (["v_readfirstlane_b32 s47, v87"], ["s_cmp_eq_u32 s47, 0"]), "s_cbranch_scc1")
                    R.site(("sig",), "xs")
                if a == opt.sig_a:
                    E("s_cmp_lg_u32 s30, 6")
                    E("s_cbranch_scc1 L_nosig")
                    E("s_or_b32 s44, s47, s93")
                    E("v_mov_b32 v11, s44")
                    E("s_mov_b64 exec, 1")
                    E("global_store_dword v84, v11, s[14:15] sc1")
                    E("s_mov_b64 exec, -1")
                    if R.mode == "emit": A.label("L_nosig")
                if a == opt.poll_a - 2:
                    E("global_load_dword v87, v85, s[14:15] sc1")
                    R.vm.append("poll")
                if a == opt.poll_a - 1:
                    R.site(("poll",), "poll")
                    E("v_and_b32 v12, -16, v87")
                    E("v_cmp_eq_u32 vcc, s47, v12")
                    E("s_nop 1")
                    E("s_cmp_eq_u64 vcc, -1")
                    E("s_cbranch_scc1 L_xok")
                    spin(R, "x", "global_load_dword v87, v85, s[14:15] sc1", (["v_and_b32 v12, -16, v87", "v_cmp_eq_u32 vcc, s47, v12"], ["s_cmp_eq_u64 vcc, -1"]), "s_cbranch_scc0")
                    E("s_or_b32 s44, s47, s93")
                    E("v_cmp_eq_u32 vcc, s44, v87")
                    E("s_mov_b32 s94, 0")
                    E("s_nop 0")
                    E("s_cmp_eq_u64 vcc, -1")
                    E("s_cselect_b32 s94, 1, 0")
                    if opt.slowmode: E("s_mov_b32 s94, 0")
                    E("v_mov_b32 v12, s94")
                    E(f"v_mov_b32 v13, {MODE_LDS}")
                    E("ds_write_b32 v13, v12")
                    E("s_waitcnt lgkmcnt(0)")
            elif kind == "mid":
                if 1 <= a <= 8:
                    for k in range(2):
                        kk = 2 * (a - 1) + k
                        if kk < 15: xdma(R, c + 1, kk)
                if a == 13: R.site(("xl",), ("x", c + 1))
                if opt.wtouch and a in opt.wt_a:
                    E("s_cmp_gt_u32 s38, %d" % opt.wt_it)
                    E(f"s_cbranch_scc1 L_nowt{a}")
                    E("buffer_load_dword v117, v76, s[24:27], s95 offen")
                    E("s_add_u32 s95, s95, 32768")
                    if R.mode == "emit": A.label(f"L_nowt{a}")
                if a == 15:
                    E("s_add_u32 s57, s57, 32768")
                    E(f"s_xor_b32 s58, s58, {XBUF}")
            elif kind == "last":
                if opt.tailpf >= 0 and a == opt.tailpf and R.mode == "emit":
                    A("s_getpc_b64 s[44:45]")
                    A.label("L_pcref2")
                    A(f"s_sub_u32 s44, s44, L_pcref2-{MAIN}")
                    A("s_subb_u32 s45, s45, 0")
                    A("v_lshlrev_b32 v11, 6, v5")
                    A(f"v_add_u32 v12, L_cepi-{MAIN}, v11")
                    A(f"v_add_u32 v13, L_store_p-{MAIN}, v11")
                    A("s_cmp_eq_u32 s30, 6")
                    A("s_cselect_b64 vcc, -1, 0")
                    A("v_cndmask_b32 v11, v13, v12, vcc")
                    A(f"v_min_u32 v11, L_end-{MAIN}, v11")
                    A("global_load_dword v114, v11, s[44:45]")
                wo_sched(R, a)
    def a_all(R, loop):
        a_prologue(R)
        a_body(R, "first", 0)
        if loop:
            A("s_mov_b32 s38, 6"); A.label("L_aloop")
            a_body(R, "mid", 1)
            A("s_sub_u32 s38, s38, 1"); A("s_cmp_lg_u32 s38, 0"); A("s_cbranch_scc1 L_aloop")
        else:
            for c in range(1, 7): a_body(R, "mid", c)
        wo_setup(R.E)
        a_body(R, "last", 7)
    a_all(RA, False)
    RA.vm = []; RA.mode = "emit"; RA.E = A
    a_all(RA, True)

    A.label("L_store_p")
    dstamp(A, 50, opt)
    A("v_and_b32 v1, 7, v5")
    A("v_lshrrev_b32 v2, 3, v5")
    A("s_and_b32 s40, s30, 3")
    A("s_lshl_b32 s41, s40, 3")
    A("v_add_u32 v2, s41, v2")
    A("v_and_b32 v3, 7, v2")
    A("v_xor_b32 v3, v3, v1")
    A("v_lshlrev_b32 v3, 4, v3")
    A("v_lshl_add_u32 v3, v2, 7, v3")
    A(f"v_add_u32 v3, {HST}, v3")
    A("v_lshlrev_b32 v4, 7, v2")
    A("v_lshl_add_u32 v4, v1, 4, v4")
    A("s_lshl_b32 s39, s29, 18")
    A("s_lshl_b32 s40, s28, 12")
    A("s_add_u32 s39, s39, s40")
    halves = [range(0, 4), range(4, 8)] if opt.half2 else [range(0, 8)]
    for hi_, blk in enumerate(halves):
        if hi_ == len(halves) - 1:
            A("s_waitcnt vmcnt(%d)" % (4 if opt.half2 else 0))
        dstamp(A, 51, opt) if hi_ == 0 else None
        A("s_barrier")
        dstamp(A, 52, opt) if hi_ == len(halves) - 1 else None
        n = len(blk)
        for i in blk: A(f"ds_read_b128 {vr(16+4*i)}, v3 offset:{i*32*128}")
        A("s_cmp_eq_u32 s94, 1")
        A(f"s_cbranch_scc1 L_hfast{hi_}")
        for fl, lab in (("sc1", None), (opt.fastflags, f"L_hfast{hi_}")):
            if lab: A.label(lab)
            for k, i in enumerate(blk):
                A(f"s_waitcnt lgkmcnt({n-1-k})")
                A(f"s_add_u32 s41, s39, {i*32768}")
                A(f"buffer_store_dwordx4 {vr(16+4*i)}, v4, s[24:27], s41 offen {fl}")
            A(f"s_branch L_hs{hi_}")
        A.label(f"L_hs{hi_}")
    A("s_branch L_hst")
    A.label("L_store")
    A("s_barrier")
    dstamp(A, 52, opt)
    A.label("L_hst")
    dstamp(A, 53, opt)
    A("v_and_b32 v6, 15, v5")
    A("v_lshrrev_b32 v7, 4, v5")
    A("v_lshrrev_b32 v8, 2, v6")
    A("v_and_b32 v13, 3, v6")
    A("s_lshl_b32 s41, s30, 2")
    A("v_add_u32 v10, s41, v13")
    A("v_lshlrev_b32 v11, 2, v8")
    A("v_xor_b32 v10, v10, v11")
    A("v_lshlrev_b32 v10, 4, v10")
    A("v_lshl_add_u32 v11, v7, 3, v8")
    A("v_lshl_add_u32 v10, v11, 9, v10")
    A("v_add_u32 v12, 0x10000, v10")
    AF = 128
    for kap in range(8):
        for hf in range(2):
            off = kap * 32 * 512 + 8 * hf
            areg = 10 if kap < 4 else 12
            off -= 0 if kap < 4 else 65536
            d = AF + 8 * kap + 4 * hf
            A(f"ds_read_b64_tr_b16 {vr(d,2)}, v{areg} offset:{off}")
            A(f"ds_read_b64_tr_b16 {vr(d+2,2)}, v{areg} offset:{off+2048}")
    A("s_add_u32 s20, s10, s35")
    A("s_addc_u32 s21, s11, 0")
    A("s_mov_b32 s22, 2048000")
    A("s_mov_b32 s23, 0x20000")
    A("v_lshrrev_b32 v2, 4, v0")
    A("v_and_b32 v3, 15, v0")
    A("v_lshrrev_b32 v4, 3, v3")
    A("v_lshlrev_b32 v4, 12, v4")
    A("v_lshl_add_u32 v4, v2, 7, v4")
    A("v_and_b32 v14, 7, v3")
    A("v_lshl_add_u32 v4, v14, 4, v4")
    A("s_lshl_b32 s39, s29, 18")
    A("s_lshl_b32 s40, s28, 15")
    A("s_add_u32 s39, s39, s40")
    A("s_add_u32 s40, s39, 8192")
    A("s_add_u32 s41, s39, 16384")
    A("s_add_u32 s42, s39, 24576")
    A("s_mov_b32 s48, 0xc038aa3b")
    A("s_mov_b32 s49, 0xc038aa3b")
    A("s_mov_b32 s50, 0xbfb8aa3b")
    A("s_mov_b32 s51, 0xbfb8aa3b")
    A("s_mov_b32 s52, 1.0")
    A("s_mov_b32 s53, 1.0")
    A("s_mov_b32 s43, 0x42700000")
    A(f"v_mul_u32_u24 v9, {ZP}, v2")
    A("v_lshl_add_u32 v9, v3, 4, v9")
    A(f"v_add_u32 v9, {HST}, v9")
    A(f"v_mul_u32_u24 v11, {ZP}, v6")
    A("v_lshl_add_u32 v11, v7, 4, v11")
    A(f"v_add_u32 v11, {HST}, v11")
    A("v_lshlrev_b32 v8, 3, v6")
    A("s_add_u32 s44, s31, s28")
    A("v_add_u32 v8, s44, v8")
    A("v_lshlrev_b32 v8, 11, v8")
    A("s_lshl_b32 s44, s33, 9")
    A("s_lshl_b32 s45, s30, 6")
    A("s_add_u32 s44, s44, s45")
    A("v_add_u32 v8, s44, v8")
    A("v_lshl_add_u32 v8, v7, 4, v8")
    dstamp(A, 54, opt)
    A("s_waitcnt vmcnt(0) lgkmcnt(0)")
    dstamp(A, 55, opt)
    A("s_barrier")
    dstamp(A, 56, opt)
    stamp(A, 3, opt)
    A("s_cmp_lg_u32 s30, 6")
    A("s_cbranch_scc1 L_hwait")
    A("v_add_u32 v84, 0x10000, v84")
    A("v_add_u32 v85, 0x10000, v85")
    A("v_mov_b32 v15, s47")
    A("s_mov_b64 exec, 1")
    A("s_cmp_eq_u32 s94, 1")
    A("s_cbranch_scc1 L_ffast")
    A("global_store_dword v84, v15, s[14:15] sc1")
    A("s_branch L_fdone")
    A.label("L_ffast")
    A("global_store_dword v84, v15, s[14:15]")
    A.label("L_fdone")
    A("s_mov_b64 exec, -1")
    A("s_mov_b32 s46, 0x100000")
    A.label("L_hspin")
    A("global_load_dword v87, v85, s[14:15] sc1")
    A("s_waitcnt vmcnt(0)")
    A("v_cmp_eq_u32 vcc, s47, v87")
    A("s_sub_u32 s46, s46, 1")
    A("s_cmp_eq_u32 s46, 0")
    A("s_cbranch_scc1 L_hwait")
    A("s_cmp_eq_u64 vcc, -1")
    A("s_cbranch_scc0 L_hspin")
    A.label("L_hwait")
    A("s_barrier")
    dstamp(A, 57, opt)
    stamp(A, 4, opt)
    A(f"buffer_load_dwordx4 {vr(16)}, v4, s[24:27], s39 offen {opt.hload}")
    A(f"buffer_load_dwordx4 {vr(20)}, v4, s[24:27], s41 offen {opt.hload}")
    A(f"buffer_load_dwordx4 {vr(24)}, v4, s[24:27], s40 offen {opt.hload}")
    A(f"buffer_load_dwordx4 {vr(28)}, v4, s[24:27], s42 offen {opt.hload}")
    A("v_mov_b32 v14, 0xc2700000")
    for half in range(2):
        A(f"s_waitcnt vmcnt({2 if half == 0 else 0})")
        dstamp(A, 58 + half, opt)
        fb, gb = 16 + 8 * half, 20 + 8 * half
        zb = 32 + 4 * half
        for d0 in range(0, 4, 2):
            TT = [(40, d0), (52, d0 + 1)]
            for t, d in TT:
                A(f"v_lshlrev_b32 v{t}, 16, v{fb+d}"); A(f"v_and_b32 v{t+1}, s36, v{fb+d}")
                A(f"v_lshlrev_b32 v{t+2}, 16, v{gb+d}"); A(f"v_and_b32 v{t+3}, s36, v{gb+d}")
            for t, d in TT:
                A(f"v_pk_mul_f32 {vr(t,2)}, {vr(t,2)}, s[48:49]")
                A(f"v_pk_mul_f32 {vr(t+2,2)}, {vr(t+2,2)}, s[50:51]")
            for t, d in TT:
                A(f"v_med3_f32 v{t}, v{t}, s43, v14"); A(f"v_med3_f32 v{t+1}, v{t+1}, s43, v14")
            for t, d in TT:
                A(f"v_exp_f32 v{t+2}, v{t+2}"); A(f"v_exp_f32 v{t+3}, v{t+3}")
            for t, d in TT:
                A(f"v_exp_f32 v{t}, v{t}"); A(f"v_exp_f32 v{t+1}, v{t+1}")
            for t, d in TT:
                A(f"v_pk_add_f32 {vr(t+2,2)}, {vr(t+2,2)}, s[52:53]")
            for t, d in TT:
                A(f"v_pk_add_f32 {vr(t+4,2)}, {vr(t,2)}, s[52:53]")
                A(f"v_pk_add_f32 {vr(t,2)}, {vr(t,2)}, s[52:53] neg_lo:[1,0] neg_hi:[1,0]")
            for t, d in TT:
                A(f"v_pk_mul_f32 {vr(t+4,2)}, {vr(t+4,2)}, {vr(t+2,2)}")
            for t, d in TT:
                A(f"v_rcp_f32 v{t+4}, v{t+4}"); A(f"v_rcp_f32 v{t+5}, v{t+5}")
            A("s_nop 0")
            for t, d in TT:
                A(f"v_pk_mul_f32 {vr(t,2)}, {vr(t,2)}, {vr(t+4,2)}")
            for t, d in TT:
                A(f"v_cvt_pk_bf16_f32 v{zb+d}, v{t}, v{t+1}")
        A(f"ds_write_b128 v9, {vr(zb)} offset:{256*half}")
    A("s_waitcnt lgkmcnt(0)")
    dstamp(A, 60, opt)
    A("s_barrier")
    dstamp(A, 61, opt)
    tr = LdsTracker()
    ACC2 = 64
    BF = 192
    ops = []
    for kap in range(8):
        for tau in range(2):
            d = BF + 8 * (kap % 4) + 4 * tau
            if kap < 4: ops.append(("lds", f"ds_read_b128 {vr(d)}, v11 offset:{tau*16*ZP + kap*64}", rng(d, 4), []))
    for kap in range(8):
        for hf in range(2):
            for tau in range(2):
                acc = ACC2 + 4 * (2 * tau + hf)
                af = AF + 8 * kap + 4 * hf
                bf = BF + 8 * (kap % 4) + 4 * tau
                c = vr(acc) if kap > 0 else "0"
                ops.append(("mfma", f"v_mfma_f32_16x16x32_bf16 {vr(acc)}, {vr(af)}, {vr(bf)}, {c}", [], rng(bf, 4)))
        if kap < 4:
            for tau in range(2):
                d = BF + 8 * (kap % 4) + 4 * tau
                ops.append(("lds", f"ds_read_b128 {vr(d)}, v11 offset:{tau*16*ZP + (kap+4)*64}", rng(d, 4), []))
    emit_with_waits(A, ops, tr)
    A("s_nop 7")
    A("s_nop 1")
    dstamp(A, 62, opt)
    for tau in range(2):
        a_ = ACC2 + 8 * tau
        t = 16 + 4 * tau
        A(f"v_cvt_pk_bf16_f32 v{t}, v{a_}, v{a_+1}")
        A(f"v_cvt_pk_bf16_f32 v{t+1}, v{a_+2}, v{a_+3}")
        A(f"v_cvt_pk_bf16_f32 v{t+2}, v{a_+4}, v{a_+5}")
        A(f"v_cvt_pk_bf16_f32 v{t+3}, v{a_+6}, v{a_+7}")
        A(f"buffer_store_dwordx4 {vr(t)}, v8, s[20:23], 0 offen offset:{1024*tau} {opt.outflags}")
    if opt.stamps and not opt.dbgat:
        A("s_waitcnt vmcnt(0)")
        dstamp(A, 63, opt)
        stamp(A, 5, opt)
        A("s_waitcnt lgkmcnt(0)")
        if opt.dstamps:
            A("s_and_b32 s50, s30, 1")
            A("s_cmp_lg_u32 s50, 0")
            A("s_cbranch_scc1 L_nods")
            A("s_lshl_b32 s50, s2, 10")
            A("s_lshr_b32 s51, s30, 1")
            A("s_lshl_b32 s51, s51, 8")
            A("s_add_u32 s50, s50, s51")
            A(f"s_add_u32 s50, s50, {STAMP_OFF + 131072}")
            A("v_lshl_add_u32 v1, v5, 2, s50")
            A("global_store_dword v1, v245, s[14:15]")
            A.label("L_nods")
        if opt.cstamps:
            A("v_cmp_gt_u32 vcc, 16, v0")
            A("s_and_saveexec_b64 s[48:49], vcc")
            A("s_cbranch_execz L_nocs")
            A("s_lshl_b32 s50, s2, 6")
            A(f"s_add_u32 s50, s50, {STAMP_OFF + 65536}")
            A("v_lshl_add_u32 v1, v0, 2, s50")
            A("global_store_dword v1, v244, s[14:15]")
            A.label("L_nocs")
            A("s_mov_b64 exec, s[48:49]")
        A("v_cmp_eq_u32 vcc, 0, v0")
        A("s_and_saveexec_b64 s[48:49], vcc")
        A("s_cbranch_execz L_end")
        A("s_lshl_b32 s50, s2, 6")
        A(f"s_add_u32 s50, s50, {STAMP_OFF}")
        A("v_mov_b32 v1, s50")
        order = [60, 61, 80, 81, 62, 63, 82, 83, 64, 65, 68, 69, 72, 73, 76, 77]
        for i in range(0, 16, 4):
            for k in range(4): A(f"v_mov_b32 v{4+k}, s{order[i+k]}")
            A(f"global_store_dwordx4 v1, v[4:7], s[14:15] offset:{i*4}")
            A("s_nop 1")
    if opt.dbgat:
        A("s_waitcnt vmcnt(0)")
        stamp(A, 5, opt)
        A("s_waitcnt lgkmcnt(0)")
        A("v_cmp_eq_u32 vcc, 0, v0")
        A("s_and_saveexec_b64 s[48:49], vcc")
        A("s_cbranch_execz L_end")
        A("v_mov_b32 v1, 0")
        def amax(word, expr):
            for l in expr: A(l)
            A("v_mov_b32 v2, s50")
            A(f"global_atomic_umax v1, v2, s[12:13] offset:{4*word}")
        amax(4, ["s_mov_b32 s50, s82"])
        amax(5, ["s_not_b32 s50, s62"])
        amax(6, ["s_sub_u32 s50, s80, s60"])
        amax(7, ["s_sub_u32 s50, s64, s60"])
        amax(8, ["s_sub_u32 s50, s68, s60"])
        amax(9, ["s_sub_u32 s50, s72, s60"])
        amax(10, ["s_sub_u32 s50, s76, s60"])
        amax(11, ["s_sub_u32 s50, s82, s62"])
        A("s_waitcnt vmcnt(0)")
    A.label("L_end")
    A("s_endpgm")
    return A.text()


ST2 = "wavenet_stage2_kernel"
def map_ids(A, opt):
    if opt.map == "n8":
        A("s_and_b32 s28, s2, 7"); A("s_lshr_b32 s29, s2, 3")
    elif opt.map == "m4":
        for l in ["s_and_b32 s29, s2, 7", "s_lshl_b32 s29, s29, 2", "s_lshr_b32 s28, s2, 3", "s_lshr_b32 s35, s28, 3",
                  "s_add_u32 s29, s29, s35", "s_and_b32 s28, s28, 7"]: A(l)
    else:
        for l in ["s_lshr_b32 s35, s2, 3", "s_and_b32 s28, s2, 1", "s_lshl_b32 s28, s28, 2", "s_and_b32 s29, s35, 3",
                  "s_add_u32 s28, s28, s29", "s_lshr_b32 s29, s2, 1", "s_and_b32 s29, s29, 3", "s_lshl_b32 s29, s29, 3",
                  "s_lshr_b32 s35, s35, 2", "s_add_u32 s29, s29, s35"]: A(l)

def gating(A):
    A("v_mov_b32 v14, 0xc2700000")
    for half in range(2):
        fb, gb = 16 + 8 * half, 20 + 8 * half
        zb = 32 + 4 * half
        yield half
        for d0 in range(0, 4, 2):
            TT = [(40, d0), (52, d0 + 1)]
            for t, d in TT:
                A(f"v_lshlrev_b32 v{t}, 16, v{fb+d}"); A(f"v_and_b32 v{t+1}, s36, v{fb+d}")
                A(f"v_lshlrev_b32 v{t+2}, 16, v{gb+d}"); A(f"v_and_b32 v{t+3}, s36, v{gb+d}")
            for t, d in TT:
                A(f"v_pk_mul_f32 {vr(t,2)}, {vr(t,2)}, s[48:49]")
                A(f"v_pk_mul_f32 {vr(t+2,2)}, {vr(t+2,2)}, s[50:51]")
            for t, d in TT:
                A(f"v_med3_f32 v{t}, v{t}, s43, v14"); A(f"v_med3_f32 v{t+1}, v{t+1}, s43, v14")
            for t, d in TT:
                A(f"v_exp_f32 v{t+2}, v{t+2}"); A(f"v_exp_f32 v{t+3}, v{t+3}")
            for t, d in TT:
                A(f"v_exp_f32 v{t}, v{t}"); A(f"v_exp_f32 v{t+1}, v{t+1}")
            for t, d in TT:
                A(f"v_pk_add_f32 {vr(t+2,2)}, {vr(t+2,2)}, s[52:53]")
            for t, d in TT:
                A(f"v_pk_add_f32 {vr(t+4,2)}, {vr(t,2)}, s[52:53]")
                A(f"v_pk_add_f32 {vr(t,2)}, {vr(t,2)}, s[52:53] neg_lo:[1,0] neg_hi:[1,0]")
            for t, d in TT:
                A(f"v_pk_mul_f32 {vr(t+4,2)}, {vr(t+4,2)}, {vr(t+2,2)}")
            for t, d in TT:
                A(f"v_rcp_f32 v{t+4}, v{t+4}"); A(f"v_rcp_f32 v{t+5}, v{t+5}")
            A("s_nop 0")
            for t, d in TT:
                A(f"v_pk_mul_f32 {vr(t,2)}, {vr(t,2)}, {vr(t+4,2)}")
            for t, d in TT:
                A(f"v_cvt_pk_bf16_f32 v{zb+d}, v{t}, v{t+1}")
        A(f"ds_write_b128 v9, {vr(zb)} offset:{256*half}")

def gen_stage2(opt):
    A = Asm()
    A.raw(f".globl {ST2}\n.p2align 8\n.type {ST2},@function\n{ST2}:")
    A("s_cmp_ge_u32 s2, 256")
    A("s_cbranch_scc1 L2_end")
    A("s_load_dwordx4 s[8:11], s[0:1], 16")
    A("s_load_dwordx2 s[14:15], s[0:1], 40")
    A("v_lshrrev_b32 v1, 6, v0")
    A("v_and_b32 v5, 63, v0")
    map_ids(A, opt)
    A("v_readfirstlane_b32 s30, v1")
    A("s_and_b32 s31, s29, 7")
    A("s_lshl_b32 s31, s31, 7")
    A("s_lshr_b32 s32, s29, 3")
    A("s_and_b32 s33, s32, 1")
    A("s_lshr_b32 s34, s32, 1")
    A("s_mul_i32 s35, s34, 2048000")
    A("s_mov_b32 s36, 0xffff0000")
    A("v_lshrrev_b32 v2, 4, v0")
    A("v_and_b32 v3, 15, v0")
    A("v_lshrrev_b32 v4, 3, v3")
    A("v_lshlrev_b32 v4, 12, v4")
    A("v_lshl_add_u32 v4, v2, 7, v4")
    A("v_and_b32 v14, 7, v3")
    A("v_lshl_add_u32 v4, v14, 4, v4")
    A("s_lshl_b32 s39, s29, 18")
    A("s_lshl_b32 s40, s28, 15")
    A("s_add_u32 s39, s39, s40")
    A("s_add_u32 s40, s39, 8192")
    A("s_add_u32 s41, s39, 16384")
    A("s_add_u32 s42, s39, 24576")
    A("v_lshrrev_b32 v12, 5, v5")
    A("s_and_b32 s44, s30, 1")
    A("s_lshl_b32 s44, s44, 1")
    A("v_add_u32 v13, s44, v12")
    A("v_lshlrev_b32 v13, 2, v13")
    A("v_and_b32 v15, 31, v5")
    A("v_xor_b32 v15, v15, v13")
    A("v_lshlrev_b32 v15, 4, v15")
    A("v_lshl_add_u32 v15, v12, 9, v15")
    A("s_lshl_b32 s56, s30, 10")
    A("s_waitcnt lgkmcnt(0)")
    for l in ["s_mov_b32 s24, s14", "s_mov_b32 s25, s15", f"s_mov_b32 s26, {WS_BYTES}", "s_mov_b32 s27, 0x20000"]: A(l)
    A(f"buffer_load_dwordx4 {vr(16)}, v4, s[24:27], s39 offen")
    A(f"buffer_load_dwordx4 {vr(20)}, v4, s[24:27], s41 offen")
    A(f"buffer_load_dwordx4 {vr(24)}, v4, s[24:27], s40 offen")
    A(f"buffer_load_dwordx4 {vr(28)}, v4, s[24:27], s42 offen")
    for l in ["s_mov_b32 s52, s8", "s_mov_b32 s53, s9", "s_mov_b32 s54, 131072", "s_mov_b32 s55, 0x20000"]: A(l)
    for k in range(16):
        A(f"s_add_u32 m0, s56, {k*8192}")
        A(f"s_add_u32 s45, s56, {k*8192}")
        A("buffer_load_dwordx4 v15, s[52:55], s45 offen lds")
    A("s_add_u32 s20, s10, s35")
    A("s_addc_u32 s21, s11, 0")
    A("s_mov_b32 s22, 2048000")
    A("s_mov_b32 s23, 0x20000")
    A("v_and_b32 v6, 15, v5")
    A("v_lshrrev_b32 v7, 4, v5")
    A("v_lshrrev_b32 v8, 2, v6")
    A("v_and_b32 v13, 3, v6")
    A("s_lshl_b32 s44, s30, 2")
    A("v_add_u32 v10, s44, v13")
    A("v_lshlrev_b32 v11, 2, v8")
    A("v_xor_b32 v10, v10, v11")
    A("v_lshlrev_b32 v10, 4, v10")
    A("v_lshl_add_u32 v11, v7, 3, v8")
    A("v_lshl_add_u32 v10, v11, 9, v10")
    A("v_add_u32 v12, 0x10000, v10")
    A("s_mov_b32 s48, 0xc038aa3b"); A("s_mov_b32 s49, 0xc038aa3b")
    A("s_mov_b32 s50, 0xbfb8aa3b"); A("s_mov_b32 s51, 0xbfb8aa3b")
    A("s_mov_b32 s58, 1.0"); A("s_mov_b32 s59, 1.0")
    A("s_mov_b32 s43, 0x42700000")
    A(f"v_mul_u32_u24 v9, {ZP}, v2")
    A("v_lshl_add_u32 v9, v3, 4, v9")
    A(f"v_add_u32 v9, {HST}, v9")
    A(f"v_mul_u32_u24 v11, {ZP}, v6")
    A("v_lshl_add_u32 v11, v7, 4, v11")
    A(f"v_add_u32 v11, {HST}, v11")
    A("v_lshlrev_b32 v8, 3, v6")
    A("s_add_u32 s44, s31, s28")
    A("v_add_u32 v8, s44, v8")
    A("v_lshlrev_b32 v8, 11, v8")
    A("s_lshl_b32 s44, s33, 9")
    A("s_lshl_b32 s45, s30, 6")
    A("s_add_u32 s44, s44, s45")
    A("v_add_u32 v8, s44, v8")
    A("v_lshl_add_u32 v8, v7, 4, v8")
    B = Asm()
    for half in gating(B):
        B(f"s_waitcnt vmcnt({18 if half == 0 else 16})")
    A.lines += [l.replace("s[52:53]", "s[58:59]") for l in B.lines]
    A("s_waitcnt vmcnt(0) lgkmcnt(0)")
    A("s_barrier")
    AF, BF, ACC2 = 64, 128, 160
    tr = LdsTracker()
    ops = []
    def rdA(kap):
        o = []
        for hf in range(2):
            off = kap * 32 * 512 + 8 * hf
            areg = 10 if kap < 4 else 12
            off -= 0 if kap < 4 else 65536
            d = AF + 8 * kap + 4 * hf
            o.append(("lds", f"ds_read_b64_tr_b16 {vr(d,2)}, v{areg} offset:{off}", rng(d, 2), []))
            o.append(("lds", f"ds_read_b64_tr_b16 {vr(d+2,2)}, v{areg} offset:{off+2048}", rng(d+2, 2), []))
        for tau in range(2):
            d = BF + 8 * (kap % 4) + 4 * tau
            o.append(("lds", f"ds_read_b128 {vr(d)}, v11 offset:{tau*16*ZP + kap*64}", rng(d, 4), []))
        return o
    ops += rdA(0) + rdA(1)
    for kap in range(8):
        if kap + 2 < 8: ops += rdA(kap + 2)
        for hf in range(2):
            for tau in range(2):
                acc = ACC2 + 4 * (2 * tau + hf)
                af = AF + 8 * kap + 4 * hf
                bf = BF + 8 * (kap % 4) + 4 * tau
                c = vr(acc) if kap > 0 else "0"
                ops.append(("mfma", f"v_mfma_f32_16x16x32_bf16 {vr(acc)}, {vr(af)}, {vr(bf)}, {c}", [], rng(bf, 4) + rng(af, 4)))
    emit_with_waits(A, ops, tr)
    A("s_nop 7"); A("s_nop 1")
    for tau in range(2):
        a_ = ACC2 + 8 * tau
        t = 16 + 4 * tau
        A(f"v_cvt_pk_bf16_f32 v{t}, v{a_}, v{a_+1}")
        A(f"v_cvt_pk_bf16_f32 v{t+1}, v{a_+2}, v{a_+3}")
        A(f"v_cvt_pk_bf16_f32 v{t+2}, v{a_+4}, v{a_+5}")
        A(f"v_cvt_pk_bf16_f32 v{t+3}, v{a_+6}, v{a_+7}")
        A(f"buffer_store_dwordx4 {vr(t)}, v8, s[20:23], 0 offen offset:{1024*tau} {opt.outflags}")
    A.label("L2_end")
    A("s_endpgm")
    return A.text()

def kd(name, nv, ns=102):
    return f""".amdhsa_kernel {name}
  .amdhsa_next_free_vgpr {nv}
  .amdhsa_next_free_sgpr {ns}
  .amdhsa_accum_offset {(nv + 3) // 4 * 4}
  .amdhsa_group_segment_fixed_size 0
  .amdhsa_kernarg_size 48
  .amdhsa_user_sgpr_count 2
  .amdhsa_user_sgpr_kernarg_segment_ptr 1
  .amdhsa_system_sgpr_workgroup_id_x 1
.end_amdhsa_kernel
"""

HEADER = """; Kernarg layout for this problem (48 bytes, ptrs only, base s[0:1]):
"""

def main():
    ap = argparse.ArgumentParser()
    ap.add_argument("-o", default="standalone__autoregressive_conv_wavenet__speech.s")
    ap.add_argument("--stamps", action="store_true")
    ap.add_argument("--cap", type=int, default=2)
    ap.add_argument("--outflags", default="")
    ap.add_argument("--cstamps", action="store_true")
    ap.add_argument("--dstamps", action="store_true")
    ap.add_argument("--xplain", action="store_true")
    ap.add_argument("--align", action="store_true")
    ap.add_argument("--no-prefetch", dest="prefetch", action="store_false")
    ap.add_argument("--pf_a", type=int, default=3)
    ap.add_argument("--st0", type=int, default=0)
    ap.add_argument("--nwin", type=int, default=3)
    ap.add_argument("--w_early", type=int, default=4)
    ap.add_argument("--map", default="m4")
    ap.add_argument("--sig_a", type=int, default=11)
    ap.add_argument("--poll_a", type=int, default=16)
    ap.add_argument("--wo_gaps", type=lambda s: [int(x) for x in s.split(",")], default=[9, 10])
    ap.add_argument("--we_gaps", type=lambda s: [int(x) for x in s.split(",")], default=[17, 18])
    ap.add_argument("--bar_after", type=int, default=1)
    ap.add_argument("--e64", action="store_true")
    ap.add_argument("--novalu", action="store_true")
    ap.add_argument("--half2", action="store_true")
    ap.add_argument("--tailpf", type=int, default=-1)
    ap.add_argument("--hload", default="sc1")
    ap.add_argument("--fastflags", default="")
    ap.add_argument("--wtouch", action="store_true")
    ap.add_argument("--wt_a", type=lambda s: [int(x) for x in s.split(",")], default=[9, 14])
    ap.add_argument("--wt_it", type=int, default=2)
    ap.add_argument("--slowmode", action="store_true")
    ap.add_argument("--codepf", type=int, default=1)
    ap.add_argument("--split", action="store_true")
    ap.add_argument("--hflags", default="sc1")
    ap.add_argument("--dbgat", action="store_true")
    ap.add_argument("--dot2", action="store_true")
    ap.add_argument("--swap", action="store_true")
    opt = ap.parse_args()
    E64[0] = opt.e64; NOVALU[0] = opt.novalu; DOT2[0] = opt.dot2; SWAP[0] = opt.swap
    m = gen_main(opt)
    out = HEADER
    if opt.split:
        out += f"; @launch kernel={MAIN} grid=(256,1,1) block=(512,1,1) lds={HST + 32768}\n"
        out += f"; @launch kernel={ST2} grid=(256,1,1) block=(512,1,1) lds={HST + 32*ZP}\n"
    else:
        out += f"; @launch grid=(256,1,1) block=(512,1,1) lds={LDS_TOTAL}\n"
    out += '.amdgcn_target "amdgcn-amd-amdhsa--gfx950"\n.text\n'
    out += m
    out += '.section .rodata,"a"\n.p2align 6\n' + kd(MAIN, 251 if opt.codepf else NV + (2 if (opt.cstamps or opt.dstamps) else 0))
    if opt.split: out += ".p2align 6\n" + kd(ST2, 176)
    open(opt.o, "w").write(out)

if __name__ == "__main__":
    main()
```

```python
import sys, argparse

MAIN = "standalone__autoregressive_conv_wavenet__speech_kernel"

XROWG = 19
XARR = 152 * 64
XBUF = 32768
WRING = 65536
WSLOT = 8192
NSLOT = 8
HST = 131072
LDS_TOTAL = 163840
ZP = 528
WS_XIMG = 8 << 20
WS_BYTES = 16 << 20
MODE_LDS = 30720
STAMP_OFF = 16 << 20
WS_FLAGS = 17 << 20

class Asm:
    def __init__(self): self.lines = []
    def __call__(self, s): self.lines.append("    " + s)
    def label(self, s): self.lines.append(s + ":")
    def raw(self, s): self.lines.append(s)
    def text(self): return "\n".join(self.lines) + "\n"
class Null:
    def __call__(self, s): pass
    def label(self, s): pass
    def raw(self, s): pass

def vr(b, n=4): return f"v[{b}:{b+n-1}]"
def rng(b, n): return list(range(b, b + n))

V_XA0, V_XA1, V_XA2, V_WA = 1, 2, 3, 4
TMP = [8, 12]
WSET = {0: 16, 1: 28, 2: 232}
WIN = {"D1": 40, "D2": 72, "X0": 104}
ARR = {"D1": 0, "D2": 1, "X0": 2}
ACC = {"Q1": 136, "Q2": 168, "Q0": 200}
NV = 244

def wset(a):
    a %= 16
    return WSET[2] if a == 0 else WSET[a & 1]

class LdsTracker:
    def __init__(self): self.out = []
    def issue(self, regs): self.out.append(set(regs))
    def need(self, regs):
        regs = set(regs); p = -1
        for i, d in enumerate(self.out):
            if d & regs: p = i
        if p < 0: return None
        n = min(len(self.out) - p - 1, 15)
        self.out = self.out[len(self.out) - n:] if n > 0 else []
        return n
    def waitall(self): self.out = []

def x_read(arr, idx0, dst, nxt=False):
    q0, mp = idx0 >> 3, idx0 & 7
    areg = V_XA2 if nxt else (V_XA0 if q0 == 0 else V_XA1)
    assert (q0 == 2) if nxt else (q0 in (0, 1))
    off = ARR[arr] * XARR + (mp * XROWG + q0) * 64
    return ("lds", f"ds_read_b128 {vr(dst)}, v{areg} offset:{off}", rng(dst, 4), [])

def w_read(slot, tile, dst):
    off = (slot % NSLOT) * WSLOT + tile * 4096
    return [("lds", f"ds_read_b64_tr_b16 {vr(dst,2)}, v{V_WA} offset:{off}", rng(dst, 2), []),
            ("lds", f"ds_read_b64_tr_b16 {vr(dst+2,2)}, v{V_WA} offset:{off+512}", rng(dst + 2, 2), [])]

E64 = [False]
NOVALU = [False]
DOT2 = [False]
SWAP = [False]
def ws_valu(base):
    ops = []
    if NOVALU[0]: return ops
    if DOT2[0]:
        for d0 in (0, 2):
            seq = []
            for d in (d0, d0 + 1):
                o, e = base + d, base + 4 + d
                t = TMP[d & 1]
                seq.append([("valu", f"v_dot2_f32_bf16 v{t}, v{o}, s91, 0", [], [o]),
                            ("valu", f"v_dot2_f32_bf16 v{t+1}, v{o}, s92, 0", [], [o]),
                            ("valu", f"v_dot2_f32_bf16 v{t}, v{e}, s91, v{t}", [], [e]),
                            ("valu", f"v_dot2_f32_bf16 v{t+1}, v{e}, s92, v{t+1}", [], [e]),
                            ("valu", f"v_cvt_pk_bf16_f32 v{base+8+d}, v{t}, v{t+1}", [], [])])
            a_, b_ = seq
            ops += [a_[0], a_[1], a_[2], a_[3], b_[0], b_[1], b_[2], b_[3], a_[4], ("valu", "s_nop 0", [], []), b_[4]] if d0 == 2 else [a_[0], a_[1], a_[2], a_[3], b_[0], b_[1], b_[2], b_[3], a_[4]]
            if d0 == 0: pend = b_[4]
            else: ops.insert(len(ops) - 11 + 3, pend)
        return ops
    for d in range(4):
        o, e, s = base + d, base + 4 + d, base + 8 + d
        t = TMP[d & 1]
        x = "_e64" if E64[0] else ""
        ops += [("valu", f"v_lshlrev_b32{x} v{t}, 16, v{o}", [], [o]),
                ("valu", f"v_lshlrev_b32{x} v{t+1}, 16, v{e}", [], [e]),
                ("valu", f"v_and_b32{x} v{t+2}, s36, v{o}", [], [o]),
                ("valu", f"v_and_b32{x} v{t+3}, s36, v{e}", [], [e]),
                ("valu", f"v_add_f32{x} v{t}, v{t}, v{t+1}", [], []),
                ("valu", f"v_add_f32{x} v{t+2}, v{t+2}, v{t+3}", [], []),
                ("valu", f"v_cvt_pk_bf16_f32 v{s}, v{t}, v{t+2}", [], [])]
    return ops

def gen_period(a, opt):
    cur = wset(a)
    if a <= 14: steps = [("Q1", cur + 0, "D1"), ("Q2", cur + 4, "D2"), ("Q0", cur + 8, "X0")]
    else: steps = [("Q2", cur + 8, "D2"), ("Q0", cur + 8, "X0")]
    ng = 8 * len(steps)
    fill = [[] for _ in range(ng)]
    mf = []
    last = {"D1": 14, "D2": 15, "X0": 15}
    for si, (q, wreg, arr) in enumerate(steps):
        for k in range(8):
            m = 7 - k
            sl = (m - a) % 8
            b = WIN[arr] + 4 * sl
            acc = ACC[q] + 4 * m
            if SWAP[0]: mf.append(("mfma", f"v_mfma_f32_16x16x32_bf16 {vr(acc)}, {vr(b)}, {vr(wreg)}, {vr(acc)}", [], rng(wreg, 4) + rng(b, 4)))
            else: mf.append(("mfma", f"v_mfma_f32_16x16x32_bf16 {vr(acc)}, {vr(wreg)}, {vr(b)}, {vr(acc)}", [], rng(wreg, 4) + rng(b, 4)))
            g = 8 * si + k
            if a == last[arr]: fill[g].append(x_read(arr, 16 + sl, b, nxt=True))
            elif k == 0: fill[g].append(x_read(arr, 15 - a, b))
    def place(ops, gaps):
        for o, g in zip(ops, gaps): fill[g].append(o)
    if a <= 12:
        nb = wset(a + 2)
        place(w_read(a + 2, 0, nb + 0), opt.wo_gaps)
        place(w_read(a + 2, 1, nb + 4), opt.we_gaps)
    elif a == 14:
        nb = wset(0)
        place(w_read(16, 0, nb + 0), [0, 1])
        place(w_read(16, 1, nb + 4), [2, 3])
        place(w_read(15, 1, wset(15) + 8), [4, 5])
    elif a == 15:
        nb = wset(1)
        place(w_read(17, 0, nb + 0), [1, 3])
        place(w_read(17, 1, nb + 4), [9, 11])
    valu = []; g0 = 0
    if a <= 13: valu = ws_valu(wset(a + 1))
    elif a == 14: valu = ws_valu(wset(0)); g0 = 9
    if a == 0: valu = [("valu", f"v_xor_b32 v{V_XA2}, s37, v{V_XA2}", [], [])] + valu
    if a == 15:
        fill[12].append(("valu", f"v_xor_b32 v{V_XA0}, s37, v{V_XA0}", [], []))
        fill[13].append(("valu", f"v_xor_b32 v{V_XA1}, s37, v{V_XA1}", [], []))
    if valu:
        gaps = list(range(g0, ng)); n = len(valu)
        cap = {g: max(0, opt.cap - len(fill[g])) for g in gaps}
        if sum(cap.values()) < n:
            for g in gaps: cap[g] = max(cap[g], 1)
        assert sum(cap.values()) >= n
        tot = sum(cap.values()); i = 0; accq = 0.0
        for g in gaps:
            accq += cap[g] * n / tot
            take = min(int(accq + 1e-9) - i, cap[g])
            for _ in range(take):
                fill[g].append(valu[i]); i += 1
        while i < n:
            fill[ng - 1].append(valu[i]); i += 1
    out = []
    for g in range(ng):
        out.append(mf[g]); out += fill[g]
    return out

def emit_with_waits(A, ops, tr):
    for kind, text, dests, reads in ops:
        if reads:
            n = tr.need(reads)
            if n is not None: A(f"s_waitcnt lgkmcnt({n})")
        A(text)
        if kind == "lds": tr.issue(dests)

NST = 6
def dstamp(A, k, opt):
    if not opt.dstamps: return
    A("s_memtime s[86:87]")
    A("s_waitcnt lgkmcnt(0)")
    A(f"v_writelane_b32 v245, s86, {k}")
def stamp(A, idx, opt):
    if not opt.stamps: return
    A(f"s_memtime s[{60+4*idx}:{61+4*idx}]")
    A(f"s_memrealtime s[{62+4*idx}:{63+4*idx}]")

XO, XW = 110, 120
RAW = 16
PT = 88
PD1, PD2 = 100, 104
NPT = 5
BIG = 0x40000000

def pair_addr(A):
    A("v_lshrrev_b32 v11, 3, v5")
    A("v_and_b32 v12, 7, v5")
    A("s_lshl_b32 s44, s33, 9")
    A("v_mov_b32 v9, 0x40000000")
    A("v_lshl_add_u32 v8, v12, 4, s44")
    A("v_and_b32 v7, 3, v12")
    A("v_lshrrev_b32 v6, 2, v12")
    A("v_lshlrev_b32 v6, 15, v6")
    A(f"v_mul_u32_u24 v10, {XROWG*64}, v11")
    A("v_add_u32 v6, v6, v10")
    for t in range(NPT):
        A(f"s_add_u32 s41, s30, {4*t}")
        A("s_lshl_b32 s42, s41, 3")
        A("s_add_u32 s42, s42, s31")
        A("s_sub_u32 s42, s42, 16")
        A("v_add_u32 v14, s42, v11")
        A("v_lshl_add_u32 v15, v14, 11, v8")
        A("v_add_u32 v10, 0xfffffc00, v15")
        A("v_cmp_gt_i32 s[46:47], 0, v14")
        A("v_cmp_gt_i32 s[48:49], 1, v14")
        if t == NPT - 1:
            A("s_cmp_ge_u32 s41, 18")
            A("s_cselect_b64 s[56:57], -1, 0")
            A("s_or_b64 s[46:47], s[46:47], s[56:57]")
            A("s_or_b64 s[48:49], s[48:49], s[56:57]")
        A("s_lshr_b32 s42, s41, 1")
        A("s_and_b32 s42, s42, 2")
        A(f"v_cndmask_b32 v{XO+1+2*t}, v15, v9, s[46:47]")
        A(f"v_cndmask_b32 v{XO+2*t}, v10, v9, s[48:49]")
        A("v_xor_b32 v13, s42, v7")
        A("v_lshl_add_u32 v13, v13, 4, v6")
        A("s_lshl_b32 s41, s41, 6")
        A(f"v_add_u32 v{XW+t}, s41, v13")

def job_loads(A, raw, offs, n):
    for t in range(n):
        b = raw + 12 * t
        A(f"buffer_load_dwordx4 {vr(b)}, v{offs+2*t}, s[16:19], 0 offen")
        A(f"buffer_load_dwordx4 {vr(b+4)}, v{offs+1+2*t}, s[16:19], 0 offen")
        A(f"buffer_load_dwordx4 {vr(b+8)}, v{offs+1+2*t}, s[16:19], 0 offen offset:1024")

def job_valu(A, b, pd1, pd2, ds=range(4)):
    for d in ds:
        m_, x0, x1 = b + d, b + 4 + d, b + 8 + d
        T = PT + 6 * (d & 1)
        A(f"v_lshlrev_b32 v{T}, 16, v{x0}")
        A(f"v_and_b32 v{T+1}, s36, v{x0}")
        A(f"v_lshlrev_b32 v{T+2}, 16, v{x1}")
        A(f"v_and_b32 v{T+3}, s36, v{x1}")
        A(f"v_lshlrev_b32 v{T+4}, 16, v{m_}")
        A(f"v_and_b32 v{T+5}, s36, v{m_}")
        A(f"v_sub_f32 v{T+2}, v{T+2}, v{T}")
        A(f"v_sub_f32 v{T+3}, v{T+3}, v{T+1}")
        A(f"v_sub_f32 v{T+4}, v{T+4}, v{T}")
        A(f"v_sub_f32 v{T+5}, v{T+5}, v{T+1}")
        A(f"v_cvt_pk_bf16_f32 v{pd2+d}, v{T+2}, v{T+3}")
        A(f"v_cvt_pk_bf16_f32 v{pd1+d}, v{T+4}, v{T+5}")

def pair_compute(A):
    for t in range(NPT):
        if t == NPT - 1:
            A("s_cmp_ge_u32 s30, 2")
            A("s_cbranch_scc1 L_pj")
        A(f"s_waitcnt vmcnt({3 * (NPT - 1 - t)})")
        b = RAW + 12 * t
        pd1, pd2 = PD1 + 28 * (t & 1), PD2 + 28 * (t & 1)
        job_valu(A, b, pd1, pd2)
        A(f"ds_write_b128 v{XW+t}, {vr(pd1)} offset:{0*XARR}")
        A(f"ds_write_b128 v{XW+t}, {vr(pd2)} offset:{1*XARR}")
        A(f"ds_write_b128 v{XW+t}, {vr(b+4)} offset:{2*XARR}")
    A.label("L_pj")

RAW2, SO, SS = 16, 64, 72
def shared_addr(A):
    A("v_mov_b32 v83, 0x40000000")
    A("s_lshl_b32 s45, s33, 9")
    A("s_add_u32 s45, s45, 128")
    A("s_mul_i32 s46, s28, %d" % (XROWG * 64))
    A("s_lshl_b32 s44, s29, 18")
    A("s_add_u32 s46, s46, s44")
    A(f"s_add_u32 s46, s46, {WS_XIMG + 2*32768}")
    A("s_add_u32 s44, s31, s28")
    A("s_sub_u32 s44, s44, 16")
    A("s_movk_i32 s55, 911")
    A("v_and_b32 v10, 3, v5")
    for k in range(4):
        A(f"s_add_u32 s41, s40, {2*k}")
        A("s_lshl_b32 s41, s41, 6")
        A("v_add_u32 v11, s41, v5")
        A("v_mul_u32_u24 v12, s55, v11")
        A("v_lshrrev_b32 v12, 16, v12")
        A("v_mul_u32_u24 v13, 72, v12")
        A("v_sub_u32 v13, v11, v13")
        A("v_lshrrev_b32 v13, 2, v13")
        A("v_lshl_add_u32 v14, v13, 3, s44")
        A("v_lshlrev_b32 v15, 11, v14")
        A("v_lshl_add_u32 v15, v12, 6, v15")
        A("v_lshl_add_u32 v15, v10, 4, v15")
        A("v_add_u32 v15, s45, v15")
        A("v_add_u32 v82, 0xfffffc00, v15")
        A("v_cmp_gt_i32 s[48:49], 0, v14")
        A("v_cmp_gt_i32 s[50:51], 1, v14")
        A("v_cmp_le_u32 vcc, 0x1b0, v11")
        A("v_lshrrev_b32 v14, 1, v13")
        A("v_and_b32 v14, 2, v14")
        A("s_or_b64 s[48:49], s[48:49], vcc")
        A("s_or_b64 s[50:51], s[50:51], vcc")
        A("v_xor_b32 v14, v14, v10")
        A(f"v_cndmask_b32 v{SO+1+2*k}, v15, v83, s[48:49]")
        A(f"v_cndmask_b32 v{SO+2*k}, v82, v83, s[50:51]")
        A("v_lshlrev_b32 v14, 4, v14")
        A("v_lshl_add_u32 v14, v13, 6, v14")
        A("v_lshl_add_u32 v14, v12, 15, v14")
        A("v_add_u32 v14, s46, v14")
        A(f"v_cndmask_b32 v{SS+k}, v14, v83, vcc")

def wdma_addr(A):
    A("v_lshrrev_b32 v6, 3, v5")
    A("s_lshl_b32 s44, s40, 3")
    A("v_add_u32 v6, s44, v6")
    A("v_and_b32 v7, 7, v5")
    A("v_lshrrev_b32 v8, 1, v6")
    A("v_and_b32 v8, 1, v8")
    A("v_lshrrev_b32 v9, 2, v6")
    A("v_and_b32 v9, 2, v9")
    A("v_or_b32 v8, v9, v8")
    A("v_lshrrev_b32 v9, 1, v7")
    A("v_xor_b32 v8, v8, v9")
    A("v_lshlrev_b32 v8, 5, v8")
    A("v_and_b32 v9, 1, v7")
    A("v_lshl_add_u32 v8, v9, 4, v8")
    A("v_lshl_add_u32 v8, v6, 10, v8")
    A("s_lshl_b32 s44, s28, 7")
    A("v_add_u32 v1, s44, v8")
    A("s_lshl_b32 s42, s40, 10")
    A(f"s_add_u32 s42, s42, {WRING}")

def dma_text(sig, creg):
    out = []
    a = sig & 15
    for tile, tap in ((0, min(2 * a + 1, 30)), (1, 2 * a)):
        out.append(f"s_add_u32 m0, s42, {(sig % NSLOT) * WSLOT + tile * 4096}")
        if creg is None: out.append(f"s_mov_b32 s45, {tap * 262144}")
        else: out.append(f"s_add_u32 s45, {creg}, {tap * 262144}")
        out.append(f"buffer_load_dwordx4 v1, s[20:23], s45 offen lds")
    return out

def gen_main(opt):
    A = Asm()
    A.raw(f".globl {MAIN}\n.p2align 8\n.type {MAIN},@function\n{MAIN}:")
    A("s_cmp_ge_u32 s2, 256")
    A("s_cbranch_scc1 L_end")
    A("s_load_dwordx4 s[4:7], s[0:1], 0")
    A("s_load_dwordx4 s[8:11], s[0:1], 16")
    A("s_load_dwordx4 s[12:15], s[0:1], 32")
    if opt.codepf:
        A("s_getpc_b64 s[44:45]")
        A.label("L_pcref")
        A(f"s_sub_u32 s44, s44, L_pcref-{MAIN}")
        A("s_subb_u32 s45, s45, 0")
        A("v_lshlrev_b32 v11, 6, v0")
        A(f"v_min_u32 v11, L_end-{MAIN}, v11")
        A("global_load_dword v250, v11, s[44:45]")
    stamp(A, 0, opt)
    dstamp(A, 0, opt)
    A("v_lshrrev_b32 v1, 6, v0")
    A("v_and_b32 v5, 63, v0")
    A("v_readfirstlane_b32 s30, v1")
    if opt.map == "n8":
        A("s_and_b32 s28, s2, 7")
        A("s_lshr_b32 s29, s2, 3")
    elif opt.map == "m4":
        A("s_and_b32 s29, s2, 7")
        A("s_lshl_b32 s29, s29, 2")
        A("s_lshr_b32 s28, s2, 3")
        A("s_lshr_b32 s35, s28, 3")
        A("s_add_u32 s29, s29, s35")
        A("s_and_b32 s28, s28, 7")
    else:
        A("s_lshr_b32 s35, s2, 3")
        A("s_and_b32 s28, s2, 1")
        A("s_lshl_b32 s28, s28, 2")
        A("s_and_b32 s29, s35, 3")
        A("s_add_u32 s28, s28, s29")
        A("s_lshr_b32 s29, s2, 1")
        A("s_and_b32 s29, s29, 3")
        A("s_lshl_b32 s29, s29, 3")
        A("s_lshr_b32 s35, s35, 2")
        A("s_add_u32 s29, s29, s35")
    A("s_and_b32 s31, s29, 7")
    A("s_lshl_b32 s31, s31, 7")
    A("s_lshr_b32 s32, s29, 3")
    A("s_and_b32 s33, s32, 1")
    A("s_lshr_b32 s34, s32, 1")
    A("s_mov_b32 s36, 0xffff0000")
    A("s_mov_b32 s91, 0x00003f80")
    A("s_mov_b32 s92, 0x3f800000")
    A(f"s_mov_b32 s37, {XBUF}")
    A("s_mul_i32 s35, s34, 2048000")
    A("s_and_b32 s40, s30, 3")
    A("s_cmp_ge_u32 s30, 4")
    A("s_cbranch_scc1 L_prod")

    pair_addr(A)
    dstamp(A, 1, opt)
    A("s_waitcnt lgkmcnt(0)")
    A("s_add_u32 s16, s4, s35")
    A("s_addc_u32 s17, s5, 0")
    A("s_mov_b32 s18, 2048000")
    A("s_mov_b32 s19, 0x20000")
    job_loads(A, RAW, XO, NPT)
    A("s_mov_b32 s20, s6")
    A("s_mov_b32 s21, s7")
    A(f"s_mov_b32 s22, {31*256*512*2}")
    A("s_mov_b32 s23, 0x20000")
    A("s_mov_b32 s24, s14")
    A("s_mov_b32 s25, s15")
    A(f"s_mov_b32 s26, {WS_BYTES}")
    A("s_mov_b32 s27, 0x20000")
    dstamp(A, 2, opt)
    for q in ("Q1", "Q2", "Q0"):
        for i in range(32): A(f"v_mov_b32 v{ACC[q]+i}, 0")
    dstamp(A, 3, opt)
    if opt.dstamps:
        A(f"s_waitcnt vmcnt({3*(NPT-1)})")
        dstamp(A, 4, opt)
    pair_compute(A)
    dstamp(A, 5, opt)
    A("v_and_b32 v6, 15, v5")
    A("v_lshrrev_b32 v7, 4, v5")
    for q0, reg in ((0, V_XA0), (1, V_XA1), (2, V_XA2)):
        A(f"v_add_u32 v8, {q0}, v6")
        A("v_lshrrev_b32 v8, 1, v8")
        A("v_and_b32 v8, 2, v8")
        A("v_xor_b32 v8, v8, v7")
        A("v_lshlrev_b32 v8, 4, v8")
        A(f"v_lshl_add_u32 v{reg}, v6, 6, v8")
    A("v_lshrrev_b32 v8, 2, v6")
    A("v_and_b32 v9, 3, v6")
    A("v_lshrrev_b32 v10, 1, v8")
    A("v_and_b32 v10, 1, v10")
    A("v_and_b32 v11, 1, v7")
    A("v_lshl_or_b32 v10, v11, 1, v10")
    A("v_xor_b32 v10, s30, v10")
    A("v_lshlrev_b32 v10, 5, v10")
    A("v_lshl_add_u32 v11, v7, 3, v8")
    A("v_lshl_add_u32 v10, v11, 7, v10")
    A("v_lshl_add_u32 v10, v9, 3, v10")
    A(f"v_add_u32 v{V_WA}, {WRING}, v10")
    A("s_waitcnt vmcnt(0) lgkmcnt(0)")
    dstamp(A, 6, opt)
    A("s_barrier")
    dstamp(A, 7, opt)
    stamp(A, 1, opt)
    tr = LdsTracker()
    pro = w_read(0, 0, wset(0)) + w_read(0, 1, wset(0) + 4)
    for jj in range(7, -1, -1): pro.append(x_read("D1", 16 + jj, WIN["D1"] + 4 * jj, nxt=True))
    pro += w_read(1, 0, wset(1)) + w_read(1, 1, wset(1) + 4)
    for arr in ("D2", "X0"):
        for jj in range(7, -1, -1): pro.append(x_read(arr, 16 + jj, WIN[arr] + 4 * jj, nxt=True))
    pro += ws_valu(wset(0))
    emit_with_waits(A, pro, tr)
    A("s_waitcnt lgkmcnt(0)")
    dstamp(A, 8, opt)
    tr.waitall()
    A("s_mov_b32 s38, 8")
    if opt.cstamps:
        A("s_memtime s[84:85]")
        A("s_waitcnt lgkmcnt(0)")
    def body(AA, tr):
        for a in range(16):
            if a == 15:
                AA("s_waitcnt lgkmcnt(0)"); tr.waitall()
            ops = gen_period(a, opt)
            if opt.bar_after:
                k = opt.bar_after
                mi = [i for i, o in enumerate(ops) if o[0] == "mfma"]
                head = [ops[i] for i in mi[:k]]
                moved = [o for i, o in enumerate(ops[:mi[k-1]+1]) if o[0] == "lds"]
                keepv = [(i, o) for i, o in enumerate(ops[:mi[k-1]+1]) if o[0] != "lds"]
                ops = [o for i, o in keepv] + [("bar", "s_barrier", [], [])] + moved + ops[mi[k-1]+1:]
            else:
                ops = [("bar", "s_barrier", [], [])] + ops
            emit_with_waits(AA, ops, tr)
    body(Null(), tr)
    if opt.align: A.raw(".p2align 6")
    A.label("L_cloop")
    body(A, tr)
    if opt.cstamps:
        A("s_mov_b32 m0, s38")
        A("s_nop 0")
        A("v_writelane_b32 v244, s84, m0")
        A("s_memtime s[84:85]")
    A("s_sub_u32 s38, s38, 1")
    A("s_cmp_lg_u32 s38, 0")
    A("s_cbranch_scc1 L_cloop")
    if opt.cstamps:
        A("s_waitcnt lgkmcnt(0)")
        A("v_writelane_b32 v244, s84, 0")
    A.label("L_cepi")
    stamp(A, 2, opt)
    dstamp(A, 50, opt)
    A("v_and_b32 v6, 15, v5")
    A("v_lshrrev_b32 v7, 4, v5")
    A("s_lshl_b32 s39, s30, 2")
    A("v_add_u32 v8, s39, v7")
    A("v_and_b32 v9, 7, v6")
    A("v_lshlrev_b32 v9, 1, v9")
    A("v_xor_b32 v8, v8, v9")
    A("v_lshlrev_b32 v8, 3, v8")
    A("v_lshl_add_u32 v1, v6, 7, v8")
    A(f"v_add_u32 v1, {HST}, v1")
    A("s_nop 4")
    A("s_waitcnt lgkmcnt(0)")
    for m in range(8):
        for q, acc in ((0, "Q1"), (1, "Q2")):
            a0 = ACC["Q0"] + 4 * m; a1 = ACC[acc] + 4 * m
            t = 8 + 8 * ((2 * m + q) % 4)
            A(f"v_pk_add_f32 {vr(t,2)}, {vr(a0,2)}, {vr(a1,2)}")
            A(f"v_pk_add_f32 {vr(t+2,2)}, {vr(a0+2,2)}, {vr(a1+2,2)}")
            A(f"v_cvt_pk_bf16_f32 v{t+4}, v{t}, v{t+1}")
            A(f"v_cvt_pk_bf16_f32 v{t+5}, v{t+2}, v{t+3}")
            A(f"ds_write_b64 v1, {vr(t+4,2)} offset:{(2*m+q)*16*128}")
        if m == 3 and opt.half2:
            A("s_waitcnt lgkmcnt(0)")
            A("s_barrier")
    A("s_waitcnt lgkmcnt(0)")
    dstamp(A, 51, opt)
    A("s_branch L_store")

    srd_x = ["s_add_u32 s16, s4, s35", "s_addc_u32 s17, s5, 0", "s_mov_b32 s18, 2048000", "s_mov_b32 s19, 0x20000"]
    srd_w = ["s_mov_b32 s20, s6", "s_mov_b32 s21, s7", f"s_mov_b32 s22, {31*256*512*2}", "s_mov_b32 s23, 0x20000"]
    srd_s = ["s_mov_b32 s24, s14", "s_mov_b32 s25, s15", f"s_mov_b32 s26, {WS_BYTES}", "s_mov_b32 s27, 0x20000"]
    class Role:
        def __init__(self): self.vm = []; self.waits = {}; self.mode = "sim"; self.E = Null()
        def cnt(self, tag):
            l = [i for i, x in enumerate(self.vm) if x == tag]
            if not l: return 63
            return len(self.vm) - max(l) - 1
        def site(self, key, tag, extra=""):
            if self.mode == "sim": self.waits[key] = min(self.waits.get(key, 63), self.cnt(tag), 63)
            else: self.E(f"s_waitcnt vmcnt({self.waits[key]}){extra}")
    def wodma(R, i0):
        R.E(f"s_add_u32 m0, s56, {i0*1024}")
        R.E(f"s_add_u32 s45, s56, {i0*1024}")
        R.E(f"buffer_load_dwordx4 v8, s[52:55], s45 offen lds")
        R.vm.append("wo")
    def wo_setup(E):
        for l in ["s_mov_b32 s52, s8", "s_mov_b32 s53, s9", "s_mov_b32 s54, 131072", "s_mov_b32 s55, 0x20000",
                  "s_and_b32 s40, s30, 3", "s_lshl_b32 s56, s40, 10",
                  "v_lshrrev_b32 v12, 5, v5", "s_and_b32 s44, s40, 1", "s_lshl_b32 s44, s44, 1", "v_add_u32 v13, s44, v12",
                  "v_lshlrev_b32 v13, 2, v13", "v_and_b32 v8, 31, v5", "v_xor_b32 v8, v8, v13", "v_lshlrev_b32 v8, 4, v8",
                  "v_lshl_add_u32 v8, v12, 9, v8"]: E(l)
    def wo_sched(R, a):
        if opt.split: return
        if a < 8: wodma(R, 4 * a)
        else:
            for k in range(2): wodma(R, 64 + 8 * (a - 8) + 4 * k)
        if a == 15:
            for k in range(8): wodma(R, 32 + 4 * k)

    A.label("L_prod")
    A("s_cmp_ge_u32 s30, 6")
    A("s_cbranch_scc1 L_aux")
    RW = Role()
    def wdma(R, sig, creg):
        a = sig & 15
        for tile, tap in ((0, min(2 * a + 1, 30)), (1, 2 * a)):
            for h in range(2):
                R.E(f"s_add_u32 m0, s42, {(sig % NSLOT) * WSLOT + tile * 4096 + h * 2048}")
                if creg is None: R.E(f"s_mov_b32 s45, {tap * 262144 + h * 16384}")
                else: R.E(f"s_add_u32 s45, {creg}, {tap * 262144 + h * 16384}")
                R.E(f"buffer_load_dwordx4 v1, s[20:23], s45 offen lds")
                R.vm.append(("w", sig))
    def w_prologue(R):
        E = R.E
        for sg in range(opt.w_early): wdma(R, sg, None)
        E("s_mov_b32 s50, 0"); E("s_mov_b32 s51, 32768")
        R.site(("p1",), ("w", 1))
        if R.mode == "emit": dstamp(A, 6, opt)
        E("s_barrier")
        if R.mode == "emit": dstamp(A, 7, opt)
        for sg in range(opt.w_early, 8): wdma(R, sg, None)
        R.site(("p2",), ("w", 2))
        if R.mode == "emit": dstamp(A, 9, opt)
    def w_body(R, kind, c):
        E = R.E
        for a in range(16):
            s = 16 * c + a
            if kind == "first" and R.mode == "emit": dstamp(A, 32 + a, opt)
            E("s_barrier")
            if kind == "first" and R.mode == "emit": dstamp(A, 16 + a, opt)
            sig = s + 8
            if sig < 128: wdma(R, sig, "s51" if a >= 8 else "s50")
            if kind == "last": wo_sched(R, a)
            if a == 15 and kind != "last":
                E("s_mov_b32 s50, s51"); E("s_add_u32 s51, s51, 32768")
            if s + 3 < 128: R.site(("w", kind, a), ("w", s + 3))
    def w_all(R, loop):
        w_prologue(R)
        w_body(R, "first", 0)
        if loop:
            A("s_mov_b32 s38, 6"); A.label("L_wloop")
            w_body(R, "mid", 1)
            A("s_sub_u32 s38, s38, 1"); A("s_cmp_lg_u32 s38, 0"); A("s_cbranch_scc1 L_wloop")
        else:
            for c in range(1, 7): w_body(R, "mid", c)
        R.E(f"v_mov_b32 v13, {MODE_LDS}")
        R.E("ds_read_b32 v12, v13")
        R.E("s_waitcnt lgkmcnt(0)")
        R.E("v_readfirstlane_b32 s94, v12")
        wo_setup(R.E)
        w_body(R, "last", 7)
    wdma_addr(A)
    dstamp(A, 1, opt)
    A("s_waitcnt lgkmcnt(0)")
    for l in srd_w + srd_s + srd_x: A(l)
    if opt.ptouch:
        A("s_lshr_b32 s44, s2, 3")
        A("s_lshl_b32 s44, s44, 1")
        A("s_add_u32 s44, s44, s40")
        A("v_lshlrev_b32 v11, 16, v5")
        A("s_cmp_eq_u32 s44, 0"); A("s_cbranch_scc0 L_pt1")
        A("buffer_load_dword v12, v11, s[20:23], 0 offen"); A("s_branch L_ptd")
        A.label("L_pt1"); A("s_cmp_eq_u32 s44, 1"); A("s_cbranch_scc0 L_pt2")
        A("s_mov_b32 s45, 0x400000"); A("buffer_load_dword v12, v11, s[20:23], s45 offen"); A("s_branch L_ptd")
        A.label("L_pt2"); A("s_cmp_eq_u32 s44, 2"); A("s_cbranch_scc0 L_pt4")
        A("v_min_u32 v11, 0x3e7ffc, v11"); A("global_load_dword v12, v11, s[10:11]"); A("s_branch L_ptd")
        A.label("L_pt4"); A("s_cmp_eq_u32 s44, 3"); A("s_cbranch_scc0 L_ptd")
        A("v_min_u32 v11, 0x3e7ffc, v11"); A("global_load_dword v12, v11, s[4:5]")
        A.label("L_ptd")
    w_all(RW, False)
    RW.vm = []; RW.mode = "emit"; RW.E = A
    w_all(RW, True)
    A("s_branch L_store_p")

    A.label("L_aux")
    RA = Role()
    A("s_and_b32 s40, s30, 1")
    shared_addr(A)
    A("v_and_b32 v11, 15, v5")
    A("s_lshl_b32 s44, s40, 4")
    A("v_add_u32 v11, s44, v11")
    A("v_lshlrev_b32 v11, 10, v11")
    A("s_lshl_b32 s44, s28, 7")
    A("v_add_u32 v11, s44, v11")
    A("s_mul_i32 s44, s29, 262144")
    A("v_add_u32 v82, s44, v11")
    A("s_mov_b32 s90, 32768")
    A("s_and_b32 s44, s29, 15")
    A("s_lshl_b32 s44, s44, 1")
    A("s_add_u32 s44, s44, s40")
    A("s_lshl_b32 s44, s44, 5")
    A("v_and_b32 v83, 31, v5")
    A("v_add_u32 v83, s44, v83")
    A("v_lshlrev_b32 v83, 7, v83")
    A("v_lshlrev_b32 v2, 4, v5")
    A("s_lshl_b32 s56, s40, 10")
    A("s_lshl_b32 s57, s29, 18")
    A("s_add_u32 s57, s57, s56")
    A(f"s_add_u32 s57, s57, {WS_XIMG + 2*32768}")
    A("s_mov_b32 s58, s56")
    A("s_getreg_b32 s93, hwreg(HW_REG_XCC_ID)")
    A("s_and_b32 s93, s93, 15")
    A("v_mov_b32 v86, 0")
    A("s_lshl_b32 s59, s29, 3")
    A("s_add_u32 s59, s59, s28")
    A("s_lshl_b32 s59, s59, 7")
    A(f"s_add_u32 s59, s59, {WS_FLAGS}")
    A("v_mov_b32 v84, s59")
    A("v_and_b32 v85, 7, v5")
    A("s_lshl_b32 s59, s29, 10")
    A(f"s_add_u32 s59, s59, {WS_FLAGS}")
    A("v_lshl_add_u32 v85, v85, 7, s59")
    if opt.wtouch:
        A("v_and_b32 v11, 31, v5")
        A("v_lshlrev_b32 v11, 7, v11")
        A("s_lshl_b32 s44, s29, 18")
        A("s_lshl_b32 s45, s28, 12")
        A("s_add_u32 s44, s44, s45")
        A("s_lshl_b32 s45, s40, 17")
        A("s_add_u32 s44, s44, s45")
        A("v_add_u32 v76, s44, v11")
        A("s_mov_b32 s95, 0")
        A("v_lshrrev_b32 v11, 2, v5")
        A("v_lshlrev_b32 v11, 3, v11")
        A("s_add_u32 s44, s31, s28")
        A("v_add_u32 v11, s44, v11")
        A("v_lshlrev_b32 v11, 11, v11")
        A("v_and_b32 v12, 3, v5")
        A("v_lshl_add_u32 v11, v12, 7, v11")
        A("s_lshl_b32 s44, s33, 9")
        A("s_lshl_b32 s45, s40, 10")
        A("s_add_u32 s44, s44, s45")
        A("v_add_u32 v77, s44, v11")
    dstamp(A, 1, opt)
    A("s_waitcnt lgkmcnt(0)")
    for l in srd_x + srd_w + srd_s: A(l)
    def xdma(R, c1, k):
        R.E(f"s_add_u32 m0, s58, {k*2048}")
        R.E(f"s_add_u32 s45, s57, {k*2048}")
        R.E(f"buffer_load_dwordx4 v2, s[24:27], s45 offen {'' if opt.xplain else 'sc1 '}lds")
        R.vm.append(("x", c1))
    def spin(R, name, load, check, fail_branch):
        E = R.E
        E("s_mov_b32 s46, 0x100000")
        if R.mode == "emit": A.label(f"L_{name}spin")
        E("s_sleep 2"); E(load); E("s_waitcnt vmcnt(0)")
        for l in check[0]: E(l)
        E("s_sub_u32 s46, s46, 1"); E("s_cmp_eq_u32 s46, 0"); E(f"s_cbranch_scc1 L_{name}ok")
        for l in check[1]: E(l)
        E(f"{fail_branch} L_{name}spin")
        if R.mode == "emit": A.label(f"L_{name}ok")
    def xstores(R, t):
        E = R.E
        E(f"s_mov_b32 s45, {XARR}")
        E(f"s_mov_b32 s46, {2*XARR}")
        E(f"buffer_store_dwordx4 {vr(128 + 8*t)}, v{SS+t}, s[24:27], 0 offen sc1")
        E(f"buffer_store_dwordx4 {vr(132 + 8*t)}, v{SS+t}, s[24:27], s45 offen sc1")
        E(f"buffer_store_dwordx4 {vr(RAW2 + 12*t + 4)}, v{SS+t}, s[24:27], s46 offen sc1")
        R.vm.extend(["xs"] * 3)
    def a_prologue(R):
        E = R.E
        for t in range(4):
            b_ = RAW2 + 12 * t
            E(f"buffer_load_dwordx4 {vr(b_)}, v{SO+2*t}, s[16:19], 0 offen")
            E(f"buffer_load_dwordx4 {vr(b_+4)}, v{SO+1+2*t}, s[16:19], 0 offen")
            E(f"buffer_load_dwordx4 {vr(b_+8)}, v{SO+1+2*t}, s[16:19], 0 offen offset:1024")
            R.vm.extend([("x2", t)] * 3)
        if R.mode == "emit":
            for l in ["s_cmp_lg_u32 s2, 0", "s_cbranch_scc1 L_nononce", "s_cmp_lg_u32 s30, 6", "s_cbranch_scc1 L_nononce",
                      "s_memrealtime s[46:47]", "s_waitcnt lgkmcnt(0)", "s_and_b32 s46, s46, 0xfffffff0", "s_or_b32 s46, s46, 16", "v_mov_b32 v7, s46",
                      "s_mov_b64 exec, 1", "global_store_dword v86, v7, s[12:13] sc1", "s_mov_b64 exec, -1"]: A(l)
            A.label("L_nononce")
            dstamp(A, 3, opt)
        if R.mode == "emit": dstamp(A, 6, opt)
        E("s_barrier")
        if R.mode == "emit": dstamp(A, 7, opt)
        for t in range(opt.nwin):
            R.site(("x2", t), ("x2", t))
            if R.mode == "emit": job_valu(A, RAW2 + 12 * t, 128 + 8 * t, 132 + 8 * t)
        if R.mode == "emit": dstamp(A, 9, opt)
    def a_body(R, kind, c):
        E = R.E
        for a in range(16):
            if kind == "first" and R.mode == "emit": dstamp(A, 32 + a, opt)
            E("s_barrier")
            if kind == "first" and R.mode == "emit": dstamp(A, 16 + a, opt)
            if opt.prefetch and kind != "last" and a == opt.pf_a:
                E("buffer_load_dword v119, v82, s[20:23], s90 offen")
                E("s_add_u32 s90, s90, 32768")
                R.vm.append("pf")
            if opt.prefetch and kind == "first" and a == 12:
                E("global_load_dword v118, v83, s[8:9]")
                R.vm.append("pf")
            if kind == "first":
                rem = [(t, d) for t in range(opt.nwin, 4) for d in range(4)]
                for (t, d) in rem[2*a:2*a+2]:
                    if d == 0: R.site(("x2", t), ("x2", t))
                    if R.mode == "emit": job_valu(A, RAW2 + 12 * t, 128 + 8 * t, 132 + 8 * t, [d])
                st_at = {0: opt.st0, 1: opt.st0 + 2, 2: opt.st0 + 4, 3: opt.st0 + 6}
                for t in range(4):
                    if a == st_at[t]: xstores(R, t)
                if a == opt.sig_a - 2:
                    E("global_load_dword v87, v86, s[12:13] sc1")
                    R.vm.append("nonce")
                if a == opt.sig_a - 1:
                    R.site(("nonce",), "nonce")
                    E("v_readfirstlane_b32 s47, v87")
                    E("s_cmp_lg_u32 s47, 0")
                    E("s_cbranch_scc1 L_nok")
                    spin(R, "n", "global_load_dword v87, v86, s[12:13] sc1", (["v_readfirstlane_b32 s47, v87"], ["s_cmp_eq_u32 s47, 0"]), "s_cbranch_scc1")
                    R.site(("sig",), "xs")
                if a == opt.sig_a:
                    E("s_cmp_lg_u32 s30, 6")
                    E("s_cbranch_scc1 L_nosig")
                    E("s_or_b32 s44, s47, s93")
                    E("v_mov_b32 v11, s44")
                    E("s_mov_b64 exec, 1")
                    E("global_store_dword v84, v11, s[14:15] sc1")
                    E("s_mov_b64 exec, -1")
                    if R.mode == "emit": A.label("L_nosig")
                if a == opt.poll_a - 2:
                    E("global_load_dword v87, v85, s[14:15] sc1")
                    R.vm.append("poll")
                if a == opt.poll_a - 1:
                    R.site(("poll",), "poll")
                    E("v_and_b32 v12, -16, v87")
                    E("v_cmp_eq_u32 vcc, s47, v12")
                    E("s_nop 1")
                    E("s_cmp_eq_u64 vcc, -1")
                    E("s_cbranch_scc1 L_xok")
                    spin(R, "x", "global_load_dword v87, v85, s[14:15] sc1", (["v_and_b32 v12, -16, v87", "v_cmp_eq_u32 vcc, s47, v12"], ["s_cmp_eq_u64 vcc, -1"]), "s_cbranch_scc0")
                    E("s_or_b32 s44, s47, s93")
                    E("v_cmp_eq_u32 vcc, s44, v87")
                    E("s_mov_b32 s94, 0")
                    E("s_nop 0")
                    E("s_cmp_eq_u64 vcc, -1")
                    E("s_cselect_b32 s94, 1, 0")
                    if opt.slowmode: E("s_mov_b32 s94, 0")
                    E("v_mov_b32 v12, s94")
                    E(f"v_mov_b32 v13, {MODE_LDS}")
                    E("ds_write_b32 v13, v12")
                    E("s_waitcnt lgkmcnt(0)")
            elif kind == "mid":
                if 1 <= a <= 8:
                    for k in range(2):
                        kk = 2 * (a - 1) + k
                        if kk < 15: xdma(R, c + 1, kk)
                if a == 13: R.site(("xl",), ("x", c + 1))
                if opt.otouch and a == 14:
                    E("s_cmp_lg_u32 s38, %d" % opt.otouch)
                    E("s_cbranch_scc1 L_noot")
                    E("s_add_u32 s60, s10, s35"); E("s_addc_u32 s61, s11, 0"); E("s_mov_b32 s62, 2048000"); E("s_mov_b32 s63, 0x20000")
                    E("buffer_load_dword v115, v77, s[60:63], 0 offen")
                    if R.mode == "emit": A.label("L_noot")
                if opt.wtouch and a in opt.wt_a:
                    E("s_cmp_gt_u32 s38, %d" % opt.wt_it)
                    E(f"s_cbranch_scc1 L_nowt{a}")
                    E("buffer_load_dword v117, v76, s[24:27], s95 offen")
                    E("s_add_u32 s95, s95, 32768")
                    if R.mode == "emit": A.label(f"L_nowt{a}")
                if a == 15:
                    E("s_add_u32 s57, s57, 32768")
                    E(f"s_xor_b32 s58, s58, {XBUF}")
            elif kind == "last":
                if opt.tailpf >= 0 and a == opt.tailpf and R.mode == "emit":
                    A("s_getpc_b64 s[44:45]")
                    A.label("L_pcref2")
                    A(f"s_sub_u32 s44, s44, L_pcref2-{MAIN}")
                    A("s_subb_u32 s45, s45, 0")
                    A("v_lshlrev_b32 v11, 6, v5")
                    A(f"v_add_u32 v12, L_cepi-{MAIN}, v11")
                    A(f"v_add_u32 v13, L_store_p-{MAIN}, v11")
                    A("s_cmp_eq_u32 s30, 6")
                    A("s_cselect_b64 vcc, -1, 0")
                    A("v_cndmask_b32 v11, v13, v12, vcc")
                    A(f"v_min_u32 v11, L_end-{MAIN}, v11")
                    A("global_load_dword v114, v11, s[44:45]")
                wo_sched(R, a)
    def a_all(R, loop):
        a_prologue(R)
        a_body(R, "first", 0)
        if loop:
            A("s_mov_b32 s38, 6"); A.label("L_aloop")
            a_body(R, "mid", 1)
            A("s_sub_u32 s38, s38, 1"); A("s_cmp_lg_u32 s38, 0"); A("s_cbranch_scc1 L_aloop")
        else:
            for c in range(1, 7): a_body(R, "mid", c)
        wo_setup(R.E)
        a_body(R, "last", 7)
    a_all(RA, False)
    RA.vm = []; RA.mode = "emit"; RA.E = A
    a_all(RA, True)

    A.label("L_store_p")
    dstamp(A, 50, opt)
    A("v_and_b32 v1, 7, v5")
    A("v_lshrrev_b32 v2, 3, v5")
    A("s_and_b32 s40, s30, 3")
    A("s_lshl_b32 s41, s40, 3")
    A("v_add_u32 v2, s41, v2")
    A("v_and_b32 v3, 7, v2")
    A("v_xor_b32 v3, v3, v1")
    A("v_lshlrev_b32 v3, 4, v3")
    A("v_lshl_add_u32 v3, v2, 7, v3")
    A(f"v_add_u32 v3, {HST}, v3")
    A("v_lshlrev_b32 v4, 7, v2")
    A("v_lshl_add_u32 v4, v1, 4, v4")
    A("s_lshl_b32 s39, s29, 18")
    A("s_lshl_b32 s40, s28, 12")
    A("s_add_u32 s39, s39, s40")
    halves = [range(0, 4), range(4, 8)] if opt.half2 else [range(0, 8)]
    for hi_, blk in enumerate(halves):
        if hi_ == len(halves) - 1:
            A("s_waitcnt vmcnt(%d)" % (4 if opt.half2 else 0))
        dstamp(A, 51, opt) if hi_ == 0 else None
        A("s_barrier")
        dstamp(A, 52, opt) if hi_ == len(halves) - 1 else None
        n = len(blk)
        for i in blk: A(f"ds_read_b128 {vr(16+4*i)}, v3 offset:{i*32*128}")
        A("s_cmp_eq_u32 s94, 1")
        A(f"s_cbranch_scc1 L_hfast{hi_}")
        for fl, lab in (("sc1", None), (opt.fastflags, f"L_hfast{hi_}")):
            if lab: A.label(lab)
            for k, i in enumerate(blk):
                A(f"s_waitcnt lgkmcnt({n-1-k})")
                A(f"s_add_u32 s41, s39, {i*32768}")
                A(f"buffer_store_dwordx4 {vr(16+4*i)}, v4, s[24:27], s41 offen {fl}")
            A(f"s_branch L_hs{hi_}")
        A.label(f"L_hs{hi_}")
    A("s_branch L_hst")
    A.label("L_store")
    A("s_barrier")
    dstamp(A, 52, opt)
    A.label("L_hst")
    dstamp(A, 53, opt)
    A("v_and_b32 v6, 15, v5")
    A("v_lshrrev_b32 v7, 4, v5")
    A("v_lshrrev_b32 v8, 2, v6")
    A("v_and_b32 v13, 3, v6")
    A("s_lshl_b32 s41, s30, 2")
    A("v_add_u32 v10, s41, v13")
    A("v_lshlrev_b32 v11, 2, v8")
    A("v_xor_b32 v10, v10, v11")
    A("v_lshlrev_b32 v10, 4, v10")
    A("v_lshl_add_u32 v11, v7, 3, v8")
    A("v_lshl_add_u32 v10, v11, 9, v10")
    A("v_add_u32 v12, 0x10000, v10")
    AF = 128
    for kap in range(8):
        for hf in range(2):
            off = kap * 32 * 512 + 8 * hf
            areg = 10 if kap < 4 else 12
            off -= 0 if kap < 4 else 65536
            d = AF + 8 * kap + 4 * hf
            A(f"ds_read_b64_tr_b16 {vr(d,2)}, v{areg} offset:{off}")
            A(f"ds_read_b64_tr_b16 {vr(d+2,2)}, v{areg} offset:{off+2048}")
    A("s_add_u32 s20, s10, s35")
    A("s_addc_u32 s21, s11, 0")
    A("s_mov_b32 s22, 2048000")
    A("s_mov_b32 s23, 0x20000")
    A("v_lshrrev_b32 v2, 4, v0")
    A("v_and_b32 v3, 15, v0")
    A("v_lshrrev_b32 v4, 3, v3")
    A("v_lshlrev_b32 v4, 12, v4")
    A("v_lshl_add_u32 v4, v2, 7, v4")
    A("v_and_b32 v14, 7, v3")
    A("v_lshl_add_u32 v4, v14, 4, v4")
    A("s_lshl_b32 s39, s29, 18")
    A("s_lshl_b32 s40, s28, 15")
    A("s_add_u32 s39, s39, s40")
    A("s_add_u32 s40, s39, 8192")
    A("s_add_u32 s41, s39, 16384")
    A("s_add_u32 s42, s39, 24576")
    A("s_mov_b32 s48, 0xc038aa3b")
    A("s_mov_b32 s49, 0xc038aa3b")
    A("s_mov_b32 s50, 0xbfb8aa3b")
    A("s_mov_b32 s51, 0xbfb8aa3b")
    A("s_mov_b32 s52, 1.0")
    A("s_mov_b32 s53, 1.0")
    A("s_mov_b32 s43, 0x42700000")
    A(f"v_mul_u32_u24 v9, {ZP}, v2")
    A("v_lshl_add_u32 v9, v3, 4, v9")
    A(f"v_add_u32 v9, {HST}, v9")
    A(f"v_mul_u32_u24 v11, {ZP}, v6")
    A("v_lshl_add_u32 v11, v7, 4, v11")
    A(f"v_add_u32 v11, {HST}, v11")
    A("v_lshlrev_b32 v8, 3, v6")
    A("s_add_u32 s44, s31, s28")
    A("v_add_u32 v8, s44, v8")
    A("v_lshlrev_b32 v8, 11, v8")
    A("s_lshl_b32 s44, s33, 9")
    A("s_lshl_b32 s45, s30, 6")
    A("s_add_u32 s44, s44, s45")
    A("v_add_u32 v8, s44, v8")
    A("v_lshl_add_u32 v8, v7, 4, v8")
    dstamp(A, 54, opt)
    A("s_waitcnt vmcnt(0) lgkmcnt(0)")
    dstamp(A, 55, opt)
    A("s_barrier")
    dstamp(A, 56, opt)
    stamp(A, 3, opt)
    A("s_cmp_lg_u32 s30, 6")
    A("s_cbranch_scc1 L_hwait")
    A("v_add_u32 v84, 0x10000, v84")
    A("v_add_u32 v85, 0x10000, v85")
    A("v_mov_b32 v15, s47")
    A("s_mov_b64 exec, 1")
    A("s_cmp_eq_u32 s94, 1")
    A("s_cbranch_scc1 L_ffast")
    A("global_store_dword v84, v15, s[14:15] sc1")
    A("s_branch L_fdone")
    A.label("L_ffast")
    A("global_store_dword v84, v15, s[14:15]")
    A.label("L_fdone")
    A("s_mov_b64 exec, -1")
    A("s_mov_b32 s46, 0x100000")
    A.label("L_hspin")
    A("global_load_dword v87, v85, s[14:15] sc1")
    A("s_waitcnt vmcnt(0)")
    A("v_cmp_eq_u32 vcc, s47, v87")
    A("s_sub_u32 s46, s46, 1")
    A("s_cmp_eq_u32 s46, 0")
    A("s_cbranch_scc1 L_hwait")
    A("s_cmp_eq_u64 vcc, -1")
    A("s_cbranch_scc0 L_hspin")
    A.label("L_hwait")
    A("s_barrier")
    dstamp(A, 57, opt)
    stamp(A, 4, opt)
    A(f"buffer_load_dwordx4 {vr(16)}, v4, s[24:27], s39 offen {opt.hload}")
    A(f"buffer_load_dwordx4 {vr(20)}, v4, s[24:27], s41 offen {opt.hload}")
    A(f"buffer_load_dwordx4 {vr(24)}, v4, s[24:27], s40 offen {opt.hload}")
    A(f"buffer_load_dwordx4 {vr(28)}, v4, s[24:27], s42 offen {opt.hload}")
    A("v_mov_b32 v14, 0xc2700000")
    for half in range(2):
        A(f"s_waitcnt vmcnt({2 if half == 0 else 0})")
        dstamp(A, 58 + half, opt)
        fb, gb = 16 + 8 * half, 20 + 8 * half
        zb = 32 + 4 * half
        for d0 in range(0, 4, 2):
            TT = [(40, d0), (52, d0 + 1)]
            for t, d in TT:
                A(f"v_lshlrev_b32 v{t}, 16, v{fb+d}"); A(f"v_and_b32 v{t+1}, s36, v{fb+d}")
                A(f"v_lshlrev_b32 v{t+2}, 16, v{gb+d}"); A(f"v_and_b32 v{t+3}, s36, v{gb+d}")
            for t, d in TT:
                A(f"v_pk_mul_f32 {vr(t,2)}, {vr(t,2)}, s[48:49]")
                A(f"v_pk_mul_f32 {vr(t+2,2)}, {vr(t+2,2)}, s[50:51]")
            for t, d in TT:
                A(f"v_med3_f32 v{t}, v{t}, s43, v14"); A(f"v_med3_f32 v{t+1}, v{t+1}, s43, v14")
            for t, d in TT:
                A(f"v_exp_f32 v{t+2}, v{t+2}"); A(f"v_exp_f32 v{t+3}, v{t+3}")
            for t, d in TT:
                A(f"v_exp_f32 v{t}, v{t}"); A(f"v_exp_f32 v{t+1}, v{t+1}")
            for t, d in TT:
                A(f"v_pk_add_f32 {vr(t+2,2)}, {vr(t+2,2)}, s[52:53]")
            for t, d in TT:
                A(f"v_pk_add_f32 {vr(t+4,2)}, {vr(t,2)}, s[52:53]")
                A(f"v_pk_add_f32 {vr(t,2)}, {vr(t,2)}, s[52:53] neg_lo:[1,0] neg_hi:[1,0]")
            for t, d in TT:
                A(f"v_pk_mul_f32 {vr(t+4,2)}, {vr(t+4,2)}, {vr(t+2,2)}")
            for t, d in TT:
                A(f"v_rcp_f32 v{t+4}, v{t+4}"); A(f"v_rcp_f32 v{t+5}, v{t+5}")
            A("s_nop 0")
            for t, d in TT:
                A(f"v_pk_mul_f32 {vr(t,2)}, {vr(t,2)}, {vr(t+4,2)}")
            for t, d in TT:
                A(f"v_cvt_pk_bf16_f32 v{zb+d}, v{t}, v{t+1}")
        A(f"ds_write_b128 v9, {vr(zb)} offset:{256*half}")
    A("s_waitcnt lgkmcnt(0)")
    dstamp(A, 60, opt)
    A("s_barrier")
    dstamp(A, 61, opt)
    tr = LdsTracker()
    ACC2 = 64
    BF = 192
    ops = []
    for kap in range(8):
        for tau in range(2):
            d = BF + 8 * (kap % 4) + 4 * tau
            if kap < 4: ops.append(("lds", f"ds_read_b128 {vr(d)}, v11 offset:{tau*16*ZP + kap*64}", rng(d, 4), []))
    for kap in range(8):
        for hf in range(2):
            for tau in range(2):
                acc = ACC2 + 4 * (2 * tau + hf)
                af = AF + 8 * kap + 4 * hf
                bf = BF + 8 * (kap % 4) + 4 * tau
                c = vr(acc) if kap > 0 else "0"
                ops.append(("mfma", f"v_mfma_f32_16x16x32_bf16 {vr(acc)}, {vr(af)}, {vr(bf)}, {c}", [], rng(bf, 4)))
        if kap < 4:
            for tau in range(2):
                d = BF + 8 * (kap % 4) + 4 * tau
                ops.append(("lds", f"ds_read_b128 {vr(d)}, v11 offset:{tau*16*ZP + (kap+4)*64}", rng(d, 4), []))
    emit_with_waits(A, ops, tr)
    A("s_nop 7")
    A("s_nop 1")
    dstamp(A, 62, opt)
    for tau in range(2):
        a_ = ACC2 + 8 * tau
        t = 16 + 4 * tau
        A(f"v_cvt_pk_bf16_f32 v{t}, v{a_}, v{a_+1}")
        A(f"v_cvt_pk_bf16_f32 v{t+1}, v{a_+2}, v{a_+3}")
        A(f"v_cvt_pk_bf16_f32 v{t+2}, v{a_+4}, v{a_+5}")
        A(f"v_cvt_pk_bf16_f32 v{t+3}, v{a_+6}, v{a_+7}")
        A(f"buffer_store_dwordx4 {vr(t)}, v8, s[20:23], 0 offen offset:{1024*tau} {opt.outflags}")
    if opt.stamps and not opt.dbgat:
        A("s_waitcnt vmcnt(0)")
        dstamp(A, 63, opt)
        stamp(A, 5, opt)
        A("s_waitcnt lgkmcnt(0)")
        if opt.dstamps:
            A("s_and_b32 s50, s30, 1")
            A("s_cmp_lg_u32 s50, 0")
            A("s_cbranch_scc1 L_nods")
            A("s_lshl_b32 s50, s2, 10")
            A("s_lshr_b32 s51, s30, 1")
            A("s_lshl_b32 s51, s51, 8")
            A("s_add_u32 s50, s50, s51")
            A(f"s_add_u32 s50, s50, {STAMP_OFF + 131072}")
            A("v_lshl_add_u32 v1, v5, 2, s50")
            A("global_store_dword v1, v245, s[14:15]")
            A.label("L_nods")
        if opt.cstamps:
            A("v_cmp_gt_u32 vcc, 16, v0")
            A("s_and_saveexec_b64 s[48:49], vcc")
            A("s_cbranch_execz L_nocs")
            A("s_lshl_b32 s50, s2, 6")
            A(f"s_add_u32 s50, s50, {STAMP_OFF + 65536}")
            A("v_lshl_add_u32 v1, v0, 2, s50")
            A("global_store_dword v1, v244, s[14:15]")
            A.label("L_nocs")
            A("s_mov_b64 exec, s[48:49]")
        A("v_cmp_eq_u32 vcc, 0, v0")
        A("s_and_saveexec_b64 s[48:49], vcc")
        A("s_cbranch_execz L_end")
        A("s_lshl_b32 s50, s2, 6")
        A(f"s_add_u32 s50, s50, {STAMP_OFF}")
        A("v_mov_b32 v1, s50")
        order = [60, 61, 80, 81, 62, 63, 82, 83, 64, 65, 68, 69, 72, 73, 76, 77]
        for i in range(0, 16, 4):
            for k in range(4): A(f"v_mov_b32 v{4+k}, s{order[i+k]}")
            A(f"global_store_dwordx4 v1, v[4:7], s[14:15] offset:{i*4}")
            A("s_nop 1")
    if opt.dbgat:
        A("s_waitcnt vmcnt(0)")
        stamp(A, 5, opt)
        A("s_waitcnt lgkmcnt(0)")
        A("v_cmp_eq_u32 vcc, 0, v0")
        A("s_and_saveexec_b64 s[48:49], vcc")
        A("s_cbranch_execz L_end")
        A("v_mov_b32 v1, 0")
        def amax(word, expr):
            for l in expr: A(l)
            A("v_mov_b32 v2, s50")
            A(f"global_atomic_umax v1, v2, s[12:13] offset:{4*word}")
        amax(4, ["s_mov_b32 s50, s82"])
        amax(5, ["s_not_b32 s50, s62"])
        amax(6, ["s_sub_u32 s50, s80, s60"])
        amax(7, ["s_sub_u32 s50, s64, s60"])
        amax(8, ["s_sub_u32 s50, s68, s60"])
        amax(9, ["s_sub_u32 s50, s72, s60"])
        amax(10, ["s_sub_u32 s50, s76, s60"])
        amax(11, ["s_sub_u32 s50, s82, s62"])
        A("s_waitcnt vmcnt(0)")
    A.label("L_end")
    A("s_endpgm")
    return A.text()


ST2 = "wavenet_stage2_kernel"
def map_ids(A, opt):
    if opt.map == "n8":
        A("s_and_b32 s28, s2, 7"); A("s_lshr_b32 s29, s2, 3")
    elif opt.map == "m4":
        for l in ["s_and_b32 s29, s2, 7", "s_lshl_b32 s29, s29, 2", "s_lshr_b32 s28, s2, 3", "s_lshr_b32 s35, s28, 3",
                  "s_add_u32 s29, s29, s35", "s_and_b32 s28, s28, 7"]: A(l)
    else:
        for l in ["s_lshr_b32 s35, s2, 3", "s_and_b32 s28, s2, 1", "s_lshl_b32 s28, s28, 2", "s_and_b32 s29, s35, 3",
                  "s_add_u32 s28, s28, s29", "s_lshr_b32 s29, s2, 1", "s_and_b32 s29, s29, 3", "s_lshl_b32 s29, s29, 3",
                  "s_lshr_b32 s35, s35, 2", "s_add_u32 s29, s29, s35"]: A(l)

def gating(A):
    A("v_mov_b32 v14, 0xc2700000")
    for half in range(2):
        fb, gb = 16 + 8 * half, 20 + 8 * half
        zb = 32 + 4 * half
        yield half
        for d0 in range(0, 4, 2):
            TT = [(40, d0), (52, d0 + 1)]
            for t, d in TT:
                A(f"v_lshlrev_b32 v{t}, 16, v{fb+d}"); A(f"v_and_b32 v{t+1}, s36, v{fb+d}")
                A(f"v_lshlrev_b32 v{t+2}, 16, v{gb+d}"); A(f"v_and_b32 v{t+3}, s36, v{gb+d}")
            for t, d in TT:
                A(f"v_pk_mul_f32 {vr(t,2)}, {vr(t,2)}, s[48:49]")
                A(f"v_pk_mul_f32 {vr(t+2,2)}, {vr(t+2,2)}, s[50:51]")
            for t, d in TT:
                A(f"v_med3_f32 v{t}, v{t}, s43, v14"); A(f"v_med3_f32 v{t+1}, v{t+1}, s43, v14")
            for t, d in TT:
                A(f"v_exp_f32 v{t+2}, v{t+2}"); A(f"v_exp_f32 v{t+3}, v{t+3}")
            for t, d in TT:
                A(f"v_exp_f32 v{t}, v{t}"); A(f"v_exp_f32 v{t+1}, v{t+1}")
            for t, d in TT:
                A(f"v_pk_add_f32 {vr(t+2,2)}, {vr(t+2,2)}, s[52:53]")
            for t, d in TT:
                A(f"v_pk_add_f32 {vr(t+4,2)}, {vr(t,2)}, s[52:53]")
                A(f"v_pk_add_f32 {vr(t,2)}, {vr(t,2)}, s[52:53] neg_lo:[1,0] neg_hi:[1,0]")
            for t, d in TT:
                A(f"v_pk_mul_f32 {vr(t+4,2)}, {vr(t+4,2)}, {vr(t+2,2)}")
            for t, d in TT:
                A(f"v_rcp_f32 v{t+4}, v{t+4}"); A(f"v_rcp_f32 v{t+5}, v{t+5}")
            A("s_nop 0")
            for t, d in TT:
                A(f"v_pk_mul_f32 {vr(t,2)}, {vr(t,2)}, {vr(t+4,2)}")
            for t, d in TT:
                A(f"v_cvt_pk_bf16_f32 v{zb+d}, v{t}, v{t+1}")
        A(f"ds_write_b128 v9, {vr(zb)} offset:{256*half}")

def gen_stage2(opt):
    A = Asm()
    A.raw(f".globl {ST2}\n.p2align 8\n.type {ST2},@function\n{ST2}:")
    A("s_cmp_ge_u32 s2, 256")
    A("s_cbranch_scc1 L2_end")
    A("s_load_dwordx4 s[8:11], s[0:1], 16")
    A("s_load_dwordx2 s[14:15], s[0:1], 40")
    A("v_lshrrev_b32 v1, 6, v0")
    A("v_and_b32 v5, 63, v0")
    map_ids(A, opt)
    A("v_readfirstlane_b32 s30, v1")
    A("s_and_b32 s31, s29, 7")
    A("s_lshl_b32 s31, s31, 7")
    A("s_lshr_b32 s32, s29, 3")
    A("s_and_b32 s33, s32, 1")
    A("s_lshr_b32 s34, s32, 1")
    A("s_mul_i32 s35, s34, 2048000")
    A("s_mov_b32 s36, 0xffff0000")
    A("v_lshrrev_b32 v2, 4, v0")
    A("v_and_b32 v3, 15, v0")
    A("v_lshrrev_b32 v4, 3, v3")
    A("v_lshlrev_b32 v4, 12, v4")
    A("v_lshl_add_u32 v4, v2, 7, v4")
    A("v_and_b32 v14, 7, v3")
    A("v_lshl_add_u32 v4, v14, 4, v4")
    A("s_lshl_b32 s39, s29, 18")
    A("s_lshl_b32 s40, s28, 15")
    A("s_add_u32 s39, s39, s40")
    A("s_add_u32 s40, s39, 8192")
    A("s_add_u32 s41, s39, 16384")
    A("s_add_u32 s42, s39, 24576")
    A("v_lshrrev_b32 v12, 5, v5")
    A("s_and_b32 s44, s30, 1")
    A("s_lshl_b32 s44, s44, 1")
    A("v_add_u32 v13, s44, v12")
    A("v_lshlrev_b32 v13, 2, v13")
    A("v_and_b32 v15, 31, v5")
    A("v_xor_b32 v15, v15, v13")
    A("v_lshlrev_b32 v15, 4, v15")
    A("v_lshl_add_u32 v15, v12, 9, v15")
    A("s_lshl_b32 s56, s30, 10")
    A("s_waitcnt lgkmcnt(0)")
    for l in ["s_mov_b32 s24, s14", "s_mov_b32 s25, s15", f"s_mov_b32 s26, {WS_BYTES}", "s_mov_b32 s27, 0x20000"]: A(l)
    A(f"buffer_load_dwordx4 {vr(16)}, v4, s[24:27], s39 offen")
    A(f"buffer_load_dwordx4 {vr(20)}, v4, s[24:27], s41 offen")
    A(f"buffer_load_dwordx4 {vr(24)}, v4, s[24:27], s40 offen")
    A(f"buffer_load_dwordx4 {vr(28)}, v4, s[24:27], s42 offen")
    for l in ["s_mov_b32 s52, s8", "s_mov_b32 s53, s9", "s_mov_b32 s54, 131072", "s_mov_b32 s55, 0x20000"]: A(l)
    for k in range(16):
        A(f"s_add_u32 m0, s56, {k*8192}")
        A(f"s_add_u32 s45, s56, {k*8192}")
        A("buffer_load_dwordx4 v15, s[52:55], s45 offen lds")
    A("s_add_u32 s20, s10, s35")
    A("s_addc_u32 s21, s11, 0")
    A("s_mov_b32 s22, 2048000")
    A("s_mov_b32 s23, 0x20000")
    A("v_and_b32 v6, 15, v5")
    A("v_lshrrev_b32 v7, 4, v5")
    A("v_lshrrev_b32 v8, 2, v6")
    A("v_and_b32 v13, 3, v6")
    A("s_lshl_b32 s44, s30, 2")
    A("v_add_u32 v10, s44, v13")
    A("v_lshlrev_b32 v11, 2, v8")
    A("v_xor_b32 v10, v10, v11")
    A("v_lshlrev_b32 v10, 4, v10")
    A("v_lshl_add_u32 v11, v7, 3, v8")
    A("v_lshl_add_u32 v10, v11, 9, v10")
    A("v_add_u32 v12, 0x10000, v10")
    A("s_mov_b32 s48, 0xc038aa3b"); A("s_mov_b32 s49, 0xc038aa3b")
    A("s_mov_b32 s50, 0xbfb8aa3b"); A("s_mov_b32 s51, 0xbfb8aa3b")
    A("s_mov_b32 s58, 1.0"); A("s_mov_b32 s59, 1.0")
    A("s_mov_b32 s43, 0x42700000")
    A(f"v_mul_u32_u24 v9, {ZP}, v2")
    A("v_lshl_add_u32 v9, v3, 4, v9")
    A(f"v_add_u32 v9, {HST}, v9")
    A(f"v_mul_u32_u24 v11, {ZP}, v6")
    A("v_lshl_add_u32 v11, v7, 4, v11")
    A(f"v_add_u32 v11, {HST}, v11")
    A("v_lshlrev_b32 v8, 3, v6")
    A("s_add_u32 s44, s31, s28")
    A("v_add_u32 v8, s44, v8")
    A("v_lshlrev_b32 v8, 11, v8")
    A("s_lshl_b32 s44, s33, 9")
    A("s_lshl_b32 s45, s30, 6")
    A("s_add_u32 s44, s44, s45")
    A("v_add_u32 v8, s44, v8")
    A("v_lshl_add_u32 v8, v7, 4, v8")
    B = Asm()
    for half in gating(B):
        B(f"s_waitcnt vmcnt({18 if half == 0 else 16})")
    A.lines += [l.replace("s[52:53]", "s[58:59]") for l in B.lines]
    A("s_waitcnt vmcnt(0) lgkmcnt(0)")
    A("s_barrier")
    AF, BF, ACC2 = 64, 128, 160
    tr = LdsTracker()
    ops = []
    def rdA(kap):
        o = []
        for hf in range(2):
            off = kap * 32 * 512 + 8 * hf
            areg = 10 if kap < 4 else 12
            off -= 0 if kap < 4 else 65536
            d = AF + 8 * kap + 4 * hf
            o.append(("lds", f"ds_read_b64_tr_b16 {vr(d,2)}, v{areg} offset:{off}", rng(d, 2), []))
            o.append(("lds", f"ds_read_b64_tr_b16 {vr(d+2,2)}, v{areg} offset:{off+2048}", rng(d+2, 2), []))
        for tau in range(2):
            d = BF + 8 * (kap % 4) + 4 * tau
            o.append(("lds", f"ds_read_b128 {vr(d)}, v11 offset:{tau*16*ZP + kap*64}", rng(d, 4), []))
        return o
    ops += rdA(0) + rdA(1)
    for kap in range(8):
        if kap + 2 < 8: ops += rdA(kap + 2)
        for hf in range(2):
            for tau in range(2):
                acc = ACC2 + 4 * (2 * tau + hf)
                af = AF + 8 * kap + 4 * hf
                bf = BF + 8 * (kap % 4) + 4 * tau
                c = vr(acc) if kap > 0 else "0"
                ops.append(("mfma", f"v_mfma_f32_16x16x32_bf16 {vr(acc)}, {vr(af)}, {vr(bf)}, {c}", [], rng(bf, 4) + rng(af, 4)))
    emit_with_waits(A, ops, tr)
    A("s_nop 7"); A("s_nop 1")
    for tau in range(2):
        a_ = ACC2 + 8 * tau
        t = 16 + 4 * tau
        A(f"v_cvt_pk_bf16_f32 v{t}, v{a_}, v{a_+1}")
        A(f"v_cvt_pk_bf16_f32 v{t+1}, v{a_+2}, v{a_+3}")
        A(f"v_cvt_pk_bf16_f32 v{t+2}, v{a_+4}, v{a_+5}")
        A(f"v_cvt_pk_bf16_f32 v{t+3}, v{a_+6}, v{a_+7}")
        A(f"buffer_store_dwordx4 {vr(t)}, v8, s[20:23], 0 offen offset:{1024*tau} {opt.outflags}")
    A.label("L2_end")
    A("s_endpgm")
    return A.text()

def kd(name, nv, ns=102):
    return f""".amdhsa_kernel {name}
  .amdhsa_next_free_vgpr {nv}
  .amdhsa_next_free_sgpr {ns}
  .amdhsa_accum_offset {(nv + 3) // 4 * 4}
  .amdhsa_group_segment_fixed_size 0
  .amdhsa_kernarg_size 48
  .amdhsa_user_sgpr_count 2
  .amdhsa_user_sgpr_kernarg_segment_ptr 1
  .amdhsa_system_sgpr_workgroup_id_x 1
.end_amdhsa_kernel
"""

HEADER = """; Kernarg layout for this problem (48 bytes, ptrs only, base s[0:1]):
"""

def main():
    ap = argparse.ArgumentParser()
    ap.add_argument("-o", default="standalone__autoregressive_conv_wavenet__speech.s")
    ap.add_argument("--stamps", action="store_true")
    ap.add_argument("--cap", type=int, default=2)
    ap.add_argument("--outflags", default="")
    ap.add_argument("--cstamps", action="store_true")
    ap.add_argument("--dstamps", action="store_true")
    ap.add_argument("--xplain", action="store_true")
    ap.add_argument("--align", action="store_true")
    ap.add_argument("--no-prefetch", dest="prefetch", action="store_false")
    ap.add_argument("--pf_a", type=int, default=3)
    ap.add_argument("--st0", type=int, default=0)
    ap.add_argument("--nwin", type=int, default=3)
    ap.add_argument("--w_early", type=int, default=4)
    ap.add_argument("--map", default="m4")
    ap.add_argument("--sig_a", type=int, default=11)
    ap.add_argument("--poll_a", type=int, default=16)
    ap.add_argument("--wo_gaps", type=lambda s: [int(x) for x in s.split(",")], default=[9, 10])
    ap.add_argument("--we_gaps", type=lambda s: [int(x) for x in s.split(",")], default=[17, 18])
    ap.add_argument("--bar_after", type=int, default=1)
    ap.add_argument("--e64", action="store_true")
    ap.add_argument("--novalu", action="store_true")
    ap.add_argument("--otouch", type=int, default=0)
    ap.add_argument("--ptouch", action="store_true")
    ap.add_argument("--half2", action="store_true")
    ap.add_argument("--tailpf", type=int, default=-1)
    ap.add_argument("--hload", default="sc1")
    ap.add_argument("--fastflags", default="")
    ap.add_argument("--wtouch", action="store_true")
    ap.add_argument("--wt_a", type=lambda s: [int(x) for x in s.split(",")], default=[9, 14])
    ap.add_argument("--wt_it", type=int, default=2)
    ap.add_argument("--slowmode", action="store_true")
    ap.add_argument("--codepf", type=int, default=1)
    ap.add_argument("--split", action="store_true")
    ap.add_argument("--hflags", default="sc1")
    ap.add_argument("--dbgat", action="store_true")
    ap.add_argument("--dot2", action="store_true")
    ap.add_argument("--swap", action="store_true")
    opt = ap.parse_args()
    E64[0] = opt.e64; NOVALU[0] = opt.novalu; DOT2[0] = opt.dot2; SWAP[0] = opt.swap
    m = gen_main(opt)
    out = HEADER
    if opt.split:
        out += f"; @launch kernel={MAIN} grid=(256,1,1) block=(512,1,1) lds={HST + 32768}\n"
        out += f"; @launch kernel={ST2} grid=(256,1,1) block=(512,1,1) lds={HST + 32*ZP}\n"
    else:
        out += f"; @launch grid=(256,1,1) block=(512,1,1) lds={LDS_TOTAL}\n"
    out += '.amdgcn_target "amdgcn-amd-amdhsa--gfx950"\n.text\n'
    out += m
    out += '.section .rodata,"a"\n.p2align 6\n' + kd(MAIN, 251 if opt.codepf else NV + (2 if (opt.cstamps or opt.dstamps) else 0))
    if opt.split: out += ".p2align 6\n" + kd(ST2, 176)
    open(opt.o, "w").write(out)

if __name__ == "__main__":
    main()
```

```python
import sys, argparse

MAIN = "standalone__autoregressive_conv_wavenet__speech_kernel"

XROWG = 19
XARR = 152 * 64
XBUF = 32768
WRING = 65536
WSLOT = 8192
NSLOT = 8
HST = 131072
LDS_TOTAL = 163840
ZP = 528
WS_XIMG = 8 << 20
WS_BYTES = 16 << 20
MODE_LDS = 30720
STAMP_OFF = 16 << 20
WS_FLAGS = 17 << 20

class Asm:
    def __init__(self): self.lines = []
    def __call__(self, s): self.lines.append("    " + s)
    def label(self, s): self.lines.append(s + ":")
    def raw(self, s): self.lines.append(s)
    def text(self): return "\n".join(self.lines) + "\n"
class Null:
    def __call__(self, s): pass
    def label(self, s): pass
    def raw(self, s): pass

def vr(b, n=4): return f"v[{b}:{b+n-1}]"
def rng(b, n): return list(range(b, b + n))

V_XA0, V_XA1, V_XA2, V_WA = 1, 2, 3, 4
TMP = [8, 12]
WSET = {0: 16, 1: 28, 2: 232}
WIN = {"D1": 40, "D2": 72, "X0": 104}
ARR = {"D1": 0, "D2": 1, "X0": 2}
ACC = {"Q1": 136, "Q2": 168, "Q0": 200}
NV = 244

def wset(a):
    a %= 16
    return WSET[2] if a == 0 else WSET[a & 1]

class LdsTracker:
    def __init__(self): self.out = []
    def issue(self, regs): self.out.append(set(regs))
    def need(self, regs):
        regs = set(regs); p = -1
        for i, d in enumerate(self.out):
            if d & regs: p = i
        if p < 0: return None
        n = min(len(self.out) - p - 1, 15)
        self.out = self.out[len(self.out) - n:] if n > 0 else []
        return n
    def waitall(self): self.out = []

def x_read(arr, idx0, dst, nxt=False):
    q0, mp = idx0 >> 3, idx0 & 7
    areg = V_XA2 if nxt else (V_XA0 if q0 == 0 else V_XA1)
    assert (q0 == 2) if nxt else (q0 in (0, 1))
    off = ARR[arr] * XARR + (mp * XROWG + q0) * 64
    return ("lds", f"ds_read_b128 {vr(dst)}, v{areg} offset:{off}", rng(dst, 4), [])

def w_read(slot, tile, dst):
    off = (slot % NSLOT) * WSLOT + tile * 4096
    return [("lds", f"ds_read_b64_tr_b16 {vr(dst,2)}, v{V_WA} offset:{off}", rng(dst, 2), []),
            ("lds", f"ds_read_b64_tr_b16 {vr(dst+2,2)}, v{V_WA} offset:{off+512}", rng(dst + 2, 2), [])]

E64 = [False]
NOVALU = [False]
DOT2 = [False]
SWAP = [False]
def ws_valu(base):
    ops = []
    if NOVALU[0]: return ops
    if DOT2[0]:
        for d0 in (0, 2):
            seq = []
            for d in (d0, d0 + 1):
                o, e = base + d, base + 4 + d
                t = TMP[d & 1]
                seq.append([("valu", f"v_dot2_f32_bf16 v{t}, v{o}, s91, 0", [], [o]),
                            ("valu", f"v_dot2_f32_bf16 v{t+1}, v{o}, s92, 0", [], [o]),
                            ("valu", f"v_dot2_f32_bf16 v{t}, v{e}, s91, v{t}", [], [e]),
                            ("valu", f"v_dot2_f32_bf16 v{t+1}, v{e}, s92, v{t+1}", [], [e]),
                            ("valu", f"v_cvt_pk_bf16_f32 v{base+8+d}, v{t}, v{t+1}", [], [])])
            a_, b_ = seq
            ops += [a_[0], a_[1], a_[2], a_[3], b_[0], b_[1], b_[2], b_[3], a_[4], ("valu", "s_nop 0", [], []), b_[4]] if d0 == 2 else [a_[0], a_[1], a_[2], a_[3], b_[0], b_[1], b_[2], b_[3], a_[4]]
            if d0 == 0: pend = b_[4]
            else: ops.insert(len(ops) - 11 + 3, pend)
        return ops
    for d in range(4):
        o, e, s = base + d, base + 4 + d, base + 8 + d
        t = TMP[d & 1]
        x = "_e64" if E64[0] else ""
        ops += [("valu", f"v_lshlrev_b32{x} v{t}, 16, v{o}", [], [o]),
                ("valu", f"v_lshlrev_b32{x} v{t+1}, 16, v{e}", [], [e]),
                ("valu", f"v_and_b32{x} v{t+2}, s36, v{o}", [], [o]),
                ("valu", f"v_and_b32{x} v{t+3}, s36, v{e}", [], [e]),
                ("valu", f"v_add_f32{x} v{t}, v{t}, v{t+1}", [], []),
                ("valu", f"v_add_f32{x} v{t+2}, v{t+2}, v{t+3}", [], []),
                ("valu", f"v_cvt_pk_bf16_f32 v{s}, v{t}, v{t+2}", [], [])]
    return ops

def gen_period(a, opt):
    cur = wset(a)
    if a <= 14: steps = [("Q1", cur + 0, "D1"), ("Q2", cur + 4, "D2"), ("Q0", cur + 8, "X0")]
    else: steps = [("Q2", cur + 8, "D2"), ("Q0", cur + 8, "X0")]
    ng = 8 * len(steps)
    fill = [[] for _ in range(ng)]
    mf = []
    last = {"D1": 14, "D2": 15, "X0": 15}
    for si, (q, wreg, arr) in enumerate(steps):
        for k in range(8):
            m = 7 - k
            sl = (m - a) % 8
            b = WIN[arr] + 4 * sl
            acc = ACC[q] + 4 * m
            if SWAP[0]: mf.append(("mfma", f"v_mfma_f32_16x16x32_bf16 {vr(acc)}, {vr(b)}, {vr(wreg)}, {vr(acc)}", [], rng(wreg, 4) + rng(b, 4)))
            else: mf.append(("mfma", f"v_mfma_f32_16x16x32_bf16 {vr(acc)}, {vr(wreg)}, {vr(b)}, {vr(acc)}", [], rng(wreg, 4) + rng(b, 4)))
            g = 8 * si + k
            if a == last[arr]: fill[g].append(x_read(arr, 16 + sl, b, nxt=True))
            elif k == 0: fill[g].append(x_read(arr, 15 - a, b))
    def place(ops, gaps):
        for o, g in zip(ops, gaps): fill[g].append(o)
    if a <= 12:
        nb = wset(a + 2)
        place(w_read(a + 2, 0, nb + 0), opt.wo_gaps)
        place(w_read(a + 2, 1, nb + 4), opt.we_gaps)
    elif a == 14:
        nb = wset(0)
        place(w_read(16, 0, nb + 0), [0, 1])
        place(w_read(16, 1, nb + 4), [2, 3])
        place(w_read(15, 1, wset(15) + 8), [4, 5])
    elif a == 15:
        nb = wset(1)
        place(w_read(17, 0, nb + 0), [1, 3])
        place(w_read(17, 1, nb + 4), [9, 11])
    if a == 2: fill[12].append(("lds", "ds_read_b64 v[246:247], v248", [246, 247], []))
    valu = []; g0 = 0
    if a <= 13: valu = ws_valu(wset(a + 1))
    elif a == 14: valu = ws_valu(wset(0)); g0 = 9
    if a == 0: valu = [("valu", f"v_xor_b32 v{V_XA2}, s37, v{V_XA2}", [], [])] + valu
    if a == 15:
        fill[12].append(("valu", f"v_xor_b32 v{V_XA0}, s37, v{V_XA0}", [], []))
        fill[13].append(("valu", f"v_xor_b32 v{V_XA1}, s37, v{V_XA1}", [], []))
    if valu:
        gaps = list(range(g0, ng)); n = len(valu)
        cap = {g: max(0, opt.cap - len(fill[g])) for g in gaps}
        if sum(cap.values()) < n:
            for g in gaps: cap[g] = max(cap[g], 1)
        assert sum(cap.values()) >= n
        tot = sum(cap.values()); i = 0; accq = 0.0
        for g in gaps:
            accq += cap[g] * n / tot
            take = min(int(accq + 1e-9) - i, cap[g])
            for _ in range(take):
                fill[g].append(valu[i]); i += 1
        while i < n:
            fill[ng - 1].append(valu[i]); i += 1
    out = []
    for g in range(ng):
        out.append(mf[g]); out += fill[g]
    return out

def emit_with_waits(A, ops, tr):
    for kind, text, dests, reads in ops:
        if reads:
            n = tr.need(reads)
            if n is not None: A(f"s_waitcnt lgkmcnt({n})")
        if kind == "label": A.label(text)
        else: A(text)
        if kind == "lds": tr.issue(dests)

NST = 6
def dstamp(A, k, opt):
    if not opt.dstamps: return
    A("s_memtime s[86:87]")
    A("s_waitcnt lgkmcnt(0)")
    A(f"v_writelane_b32 v245, s86, {k}")
def stamp(A, idx, opt):
    if not opt.stamps: return
    A(f"s_memtime s[{60+4*idx}:{61+4*idx}]")
    A(f"s_memrealtime s[{62+4*idx}:{63+4*idx}]")

XO, XW = 110, 120
RAW = 16
PT = 88
PD1, PD2 = 100, 104
NPT = 5
BIG = 0x40000000

def pair_addr(A):
    A("v_lshrrev_b32 v11, 3, v5")
    A("v_and_b32 v12, 7, v5")
    A("s_lshl_b32 s44, s33, 9")
    A("s_lshl_b32 s42, s30, 3")
    A("s_add_u32 s42, s42, s31")
    A("s_sub_u32 s42, s42, 16")
    A("v_add_u32 v14, s42, v11")
    A("v_lshl_add_u32 v8, v12, 4, s44")
    A("v_lshl_add_u32 v15, v14, 11, v8")
    A("v_cmp_gt_i32 s[46:47], 0, v14")
    A("v_cmp_gt_i32 s[48:49], 1, v14")
    A("v_add_u32 v113, 0x10000, v15")
    A("v_add_u32 v10, 0xfffffc00, v15")
    A("v_mov_b32 v9, 0x40000000")
    A("v_add_u32 v112, 0xfc00, v15")
    A("v_cndmask_b32 v111, v15, v9, s[46:47]")
    A("v_cndmask_b32 v110, v10, v9, s[48:49]")
    A("v_and_b32 v7, 3, v12")
    A("v_lshrrev_b32 v6, 2, v12")
    A("v_lshlrev_b32 v6, 15, v6")
    A(f"v_mul_u32_u24 v10, {XROWG*64}, v11")
    A("s_lshl_b32 s41, s30, 6")
    A("v_add3_u32 v6, v6, v10, s41")
    A("v_lshl_add_u32 v120, v7, 4, v6")
    A("v_xor_b32 v7, 2, v7")
    A("v_lshl_add_u32 v121, v7, 4, v6")
    A("s_cmp_ge_u32 s30, 2")
    A(f"s_cselect_b32 s41, 0x40000000, {3*65536}")

def pair_loads(A):
    for t in range(NPT):
        b = RAW + 12 * t
        va, vb = (110, 111) if t == 0 else (112, 113)
        so = {0: "0", 1: "0", 2: "s42", 3: "s43", 4: "s41"}[t]
        if t == 2: A("s_mov_b32 s42, 0x10000")
        if t == 3: A("s_mov_b32 s43, 0x20000")
        A(f"buffer_load_dwordx4 {vr(b)}, v{va}, s[16:19], {so} offen")
        A(f"buffer_load_dwordx4 {vr(b+4)}, v{vb}, s[16:19], {so} offen")
        A(f"buffer_load_dwordx4 {vr(b+8)}, v{vb}, s[16:19], {so} offen offset:1024")

def job_loads(A, raw, offs, n):
    for t in range(n):
        b = raw + 12 * t
        A(f"buffer_load_dwordx4 {vr(b)}, v{offs+2*t}, s[16:19], 0 offen")
        A(f"buffer_load_dwordx4 {vr(b+4)}, v{offs+1+2*t}, s[16:19], 0 offen")
        A(f"buffer_load_dwordx4 {vr(b+8)}, v{offs+1+2*t}, s[16:19], 0 offen offset:1024")

def job_valu(A, b, pd1, pd2, ds=range(4)):
    for d in ds:
        m_, x0, x1 = b + d, b + 4 + d, b + 8 + d
        T = PT + 6 * (d & 1)
        A(f"v_lshlrev_b32 v{T}, 16, v{x0}")
        A(f"v_and_b32 v{T+1}, s36, v{x0}")
        A(f"v_lshlrev_b32 v{T+2}, 16, v{x1}")
        A(f"v_and_b32 v{T+3}, s36, v{x1}")
        A(f"v_lshlrev_b32 v{T+4}, 16, v{m_}")
        A(f"v_and_b32 v{T+5}, s36, v{m_}")
        A(f"v_sub_f32 v{T+2}, v{T+2}, v{T}")
        A(f"v_sub_f32 v{T+3}, v{T+3}, v{T+1}")
        A(f"v_sub_f32 v{T+4}, v{T+4}, v{T}")
        A(f"v_sub_f32 v{T+5}, v{T+5}, v{T+1}")
        A(f"v_cvt_pk_bf16_f32 v{pd2+d}, v{T+2}, v{T+3}")
        A(f"v_cvt_pk_bf16_f32 v{pd1+d}, v{T+4}, v{T+5}")

def pair_compute(A):
    for t in range(NPT):
        if t == NPT - 1:
            A("s_cmp_ge_u32 s30, 2")
            A("s_cbranch_scc1 L_pj")
        A(f"s_waitcnt vmcnt({3 * (NPT - 1 - t)})")
        b = RAW + 12 * t
        pd1, pd2 = PD1 + 28 * (t & 1), PD2 + 28 * (t & 1)
        job_valu(A, b, pd1, pd2)
        A(f"ds_write_b128 v{120 + (t & 1)}, {vr(pd1)} offset:{0*XARR + t*256}")
        A(f"ds_write_b128 v{120 + (t & 1)}, {vr(pd2)} offset:{1*XARR + t*256}")
        A(f"ds_write_b128 v{120 + (t & 1)}, {vr(b+4)} offset:{2*XARR + t*256}")
    A.label("L_pj")

RAW2, SO, SS = 16, 64, 72
def shared_addr(A):
    A("v_mov_b32 v83, 0x40000000")
    A("s_lshl_b32 s45, s33, 9")
    A("s_add_u32 s45, s45, 128")
    A("s_mul_i32 s46, s28, %d" % (XROWG * 64))
    A("s_lshl_b32 s44, s29, 18")
    A("s_add_u32 s46, s46, s44")
    A(f"s_add_u32 s46, s46, {WS_XIMG + 2*32768}")
    A("s_add_u32 s44, s31, s28")
    A("s_sub_u32 s44, s44, 16")
    A("s_movk_i32 s55, 911")
    A("v_and_b32 v10, 3, v5")
    for k in range(4):
        A(f"s_add_u32 s41, s40, {2*k}")
        A("s_lshl_b32 s41, s41, 6")
        A("v_add_u32 v11, s41, v5")
        A("v_mul_u32_u24 v12, s55, v11")
        A("v_lshrrev_b32 v12, 16, v12")
        A("v_mul_u32_u24 v13, 72, v12")
        A("v_sub_u32 v13, v11, v13")
        A("v_lshrrev_b32 v13, 2, v13")
        A("v_lshl_add_u32 v14, v13, 3, s44")
        A("v_lshlrev_b32 v15, 11, v14")
        A("v_lshl_add_u32 v15, v12, 6, v15")
        A("v_lshl_add_u32 v15, v10, 4, v15")
        A("v_add_u32 v15, s45, v15")
        A("v_add_u32 v82, 0xfffffc00, v15")
        A("v_cmp_gt_i32 s[48:49], 0, v14")
        A("v_cmp_gt_i32 s[50:51], 1, v14")
        A("v_cmp_le_u32 vcc, 0x1b0, v11")
        A("v_lshrrev_b32 v14, 1, v13")
        A("v_and_b32 v14, 2, v14")
        A("s_or_b64 s[48:49], s[48:49], vcc")
        A("s_or_b64 s[50:51], s[50:51], vcc")
        A("v_xor_b32 v14, v14, v10")
        A(f"v_cndmask_b32 v{SO+1+2*k}, v15, v83, s[48:49]")
        A(f"v_cndmask_b32 v{SO+2*k}, v82, v83, s[50:51]")
        A("v_lshlrev_b32 v14, 4, v14")
        A("v_lshl_add_u32 v14, v13, 6, v14")
        A("v_lshl_add_u32 v14, v12, 15, v14")
        A("v_add_u32 v14, s46, v14")
        A(f"v_cndmask_b32 v{SS+k}, v14, v83, vcc")

def wdma_addr(A):
    A("v_lshrrev_b32 v6, 3, v5")
    A("s_lshl_b32 s44, s40, 3")
    A("v_add_u32 v6, s44, v6")
    A("v_and_b32 v7, 7, v5")
    A("v_lshrrev_b32 v8, 1, v6")
    A("v_and_b32 v8, 1, v8")
    A("v_lshrrev_b32 v9, 2, v6")
    A("v_and_b32 v9, 2, v9")
    A("v_or_b32 v8, v9, v8")
    A("v_lshrrev_b32 v9, 1, v7")
    A("v_xor_b32 v8, v8, v9")
    A("v_lshlrev_b32 v8, 5, v8")
    A("v_and_b32 v9, 1, v7")
    A("v_lshl_add_u32 v8, v9, 4, v8")
    A("v_lshl_add_u32 v8, v6, 10, v8")
    A("s_lshl_b32 s44, s28, 7")
    A("v_add_u32 v1, s44, v8")
    A("s_lshl_b32 s42, s40, 10")
    A(f"s_add_u32 s42, s42, {WRING}")

def dma_text(sig, creg):
    out = []
    a = sig & 15
    for tile, tap in ((0, min(2 * a + 1, 30)), (1, 2 * a)):
        out.append(f"s_add_u32 m0, s42, {(sig % NSLOT) * WSLOT + tile * 4096}")
        if creg is None: out.append(f"s_mov_b32 s45, {tap * 262144}")
        else: out.append(f"s_add_u32 s45, {creg}, {tap * 262144}")
        out.append(f"buffer_load_dwordx4 v1, s[20:23], s45 offen lds")
    return out

_gid = [0]
def guard_begin(A, opt):
    if not opt.tdry: return None
    _gid[0] += 1
    lab = f"L_g{_gid[0]}"
    A(f"s_cbranch_execz {lab}")
    return lab
def guard_end(A, lab):
    if lab: A.label(lab)
def gbar(A, opt):
    g = guard_begin(A, opt); A("s_barrier"); guard_end(A, g)

def gen_main(opt):
    A = Asm()
    A.raw(f".globl {MAIN}\n.p2align 8\n.type {MAIN},@function\n{MAIN}:")
    A("s_cmp_ge_u32 s2, 256")
    A("s_cbranch_scc1 L_end")
    A("s_load_dwordx4 s[4:7], s[0:1], 0")
    A("s_load_dwordx4 s[8:11], s[0:1], 16")
    A("s_load_dwordx4 s[12:15], s[0:1], 32")
    if opt.codepf:
        A("s_getpc_b64 s[44:45]")
        A.label("L_pcref")
        A(f"s_sub_u32 s44, s44, L_pcref-{MAIN}")
        A("s_subb_u32 s45, s45, 0")
        A("v_lshlrev_b32 v11, 6, v0")
        A(f"v_min_u32 v11, L_end-{MAIN}, v11")
        A("global_load_dword v250, v11, s[44:45]")
    stamp(A, 0, opt)
    dstamp(A, 0, opt)
    A("v_lshrrev_b32 v1, 6, v0")
    A("v_and_b32 v5, 63, v0")
    A("v_readfirstlane_b32 s30, v1")
    if opt.map == "n8":
        A("s_and_b32 s28, s2, 7")
        A("s_lshr_b32 s29, s2, 3")
    elif opt.map == "m4":
        A("s_and_b32 s29, s2, 7")
        A("s_lshl_b32 s29, s29, 2")
        A("s_lshr_b32 s28, s2, 3")
        A("s_lshr_b32 s35, s28, 3")
        A("s_add_u32 s29, s29, s35")
        A("s_and_b32 s28, s28, 7")
    else:
        A("s_lshr_b32 s35, s2, 3")
        A("s_and_b32 s28, s2, 1")
        A("s_lshl_b32 s28, s28, 2")
        A("s_and_b32 s29, s35, 3")
        A("s_add_u32 s28, s28, s29")
        A("s_lshr_b32 s29, s2, 1")
        A("s_and_b32 s29, s29, 3")
        A("s_lshl_b32 s29, s29, 3")
        A("s_lshr_b32 s35, s35, 2")
        A("s_add_u32 s29, s29, s35")
    A("s_and_b32 s31, s29, 7")
    A("s_lshl_b32 s31, s31, 7")
    A("s_lshr_b32 s32, s29, 3")
    A("s_and_b32 s33, s32, 1")
    A("s_lshr_b32 s34, s32, 1")
    A("v_mov_b32 v84, 0")
    A("v_mov_b32 v85, 0")
    A("s_mov_b32 s36, 0xffff0000")
    A("s_mov_b32 s91, 0x00003f80")
    A("s_mov_b32 s92, 0x3f800000")
    A(f"s_mov_b32 s37, {XBUF}")
    A("s_mul_i32 s35, s34, 2048000")
    A("s_and_b32 s40, s30, 3")
    A("s_cmp_ge_u32 s30, 4")
    A("s_cbranch_scc1 L_prod")

    pair_addr(A)
    dstamp(A, 1, opt)
    A("s_waitcnt lgkmcnt(0)")
    A("s_add_u32 s16, s4, s35")
    A("s_addc_u32 s17, s5, 0")
    A("s_mov_b32 s18, 2048000")
    A("s_mov_b32 s19, 0x20000")
    pair_loads(A)
    A("s_mov_b32 s20, s6")
    A("s_mov_b32 s21, s7")
    A(f"s_mov_b32 s22, {31*256*512*2}")
    A("s_mov_b32 s23, 0x20000")
    A("s_mov_b32 s24, s14")
    A("s_mov_b32 s25, s15")
    A(f"s_mov_b32 s26, {WS_BYTES}")
    A("s_mov_b32 s27, 0x20000")
    dstamp(A, 2, opt)
    for q in ("Q1", "Q2", "Q0"):
        for i in range(32): A(f"v_mov_b32 v{ACC[q]+i}, 0")
    dstamp(A, 3, opt)
    if opt.dstamps:
        A(f"s_waitcnt vmcnt({3*(NPT-1)})")
        dstamp(A, 4, opt)
    pair_compute(A)
    dstamp(A, 5, opt)
    A("v_and_b32 v6, 15, v5")
    A("v_lshrrev_b32 v7, 4, v5")
    for q0, reg in ((0, V_XA0), (1, V_XA1), (2, V_XA2)):
        A(f"v_add_u32 v8, {q0}, v6")
        A("v_lshrrev_b32 v8, 1, v8")
        A("v_and_b32 v8, 2, v8")
        A("v_xor_b32 v8, v8, v7")
        A("v_lshlrev_b32 v8, 4, v8")
        A(f"v_lshl_add_u32 v{reg}, v6, 6, v8")
    A("v_lshrrev_b32 v8, 2, v6")
    A("v_and_b32 v9, 3, v6")
    A("v_lshrrev_b32 v10, 1, v8")
    A("v_and_b32 v10, 1, v10")
    A("v_and_b32 v11, 1, v7")
    A("v_lshl_or_b32 v10, v11, 1, v10")
    A("v_xor_b32 v10, s30, v10")
    A("v_lshlrev_b32 v10, 5, v10")
    A("v_lshl_add_u32 v11, v7, 3, v8")
    A("v_lshl_add_u32 v10, v11, 7, v10")
    A("v_lshl_add_u32 v10, v9, 3, v10")
    A(f"v_add_u32 v{V_WA}, {WRING}, v10")
    A(f"v_mov_b32 v248, {MODE_LDS}")
    A("s_waitcnt vmcnt(0) lgkmcnt(0)")
    dstamp(A, 6, opt)
    A("s_barrier")
    dstamp(A, 7, opt)
    stamp(A, 1, opt)
    tr = LdsTracker()
    pro = w_read(0, 0, wset(0)) + w_read(0, 1, wset(0) + 4)
    for jj in range(7, -1, -1): pro.append(x_read("D1", 16 + jj, WIN["D1"] + 4 * jj, nxt=True))
    pro += w_read(1, 0, wset(1)) + w_read(1, 1, wset(1) + 4)
    for arr in ("D2", "X0"):
        for jj in range(7, -1, -1): pro.append(x_read(arr, 16 + jj, WIN[arr] + 4 * jj, nxt=True))
    pro += ws_valu(wset(0))
    emit_with_waits(A, pro, tr)
    A("s_waitcnt lgkmcnt(0)")
    dstamp(A, 8, opt)
    tr.waitall()
    A("s_mov_b32 s38, 8")
    if opt.cstamps:
        A("s_memtime s[84:85]")
        A("s_waitcnt lgkmcnt(0)")
    DRY_EXIT = {5: "L_wdry_ret", 10: "L_wdry_ret", 13: "L_adry_ret"}
    def body(AA, tr):
        for a in range(16):
            if opt.dry:
                if a in DRY_EXIT: AA(f"s_cbranch_execz {DRY_EXIT[a]}")
                AA.label(f"L_cp{a}")
            if a == 15:
                AA("s_waitcnt lgkmcnt(0)"); tr.waitall()
            ops = gen_period(a, opt)
            bar = [("bar", "s_barrier", [], [])]
            if opt.dry: bar = [("bar", f"s_cbranch_execz L_nb{a}", [], []), ("bar", "s_barrier", [], []), ("label", f"L_nb{a}", [], [])]
            if opt.bar_after:
                k = opt.bar_after
                mi = [i for i, o in enumerate(ops) if o[0] == "mfma"]
                moved = [o for i, o in enumerate(ops[:mi[k-1]+1]) if o[0] == "lds"]
                keepv = [(i, o) for i, o in enumerate(ops[:mi[k-1]+1]) if o[0] != "lds"]
                ops = [o for i, o in keepv] + bar + moved + ops[mi[k-1]+1:]
            else:
                ops = bar + ops
            emit_with_waits(AA, ops, tr)
        if opt.dry: AA("s_cbranch_execz L_adry_ret")
    body(Null(), tr)
    if opt.align: A.raw(".p2align 6")
    A.label("L_cloop")
    body(A, tr)
    if opt.cstamps:
        A("s_mov_b32 m0, s38")
        A("s_nop 0")
        A("v_writelane_b32 v244, s84, m0")
        A("s_memtime s[84:85]")
    A("s_sub_u32 s38, s38, 1")
    A("s_cmp_lg_u32 s38, 0")
    A("s_cbranch_scc1 L_cloop")
    if opt.cstamps:
        A("s_waitcnt lgkmcnt(0)")
        A("v_writelane_b32 v244, s84, 0")
    A.label("L_cepi")
    stamp(A, 2, opt)
    dstamp(A, 50, opt)
    A("v_and_b32 v6, 15, v5")
    A("v_lshrrev_b32 v7, 4, v5")
    A("s_lshl_b32 s39, s30, 2")
    A("v_add_u32 v8, s39, v7")
    A("v_and_b32 v9, 7, v6")
    A("v_lshlrev_b32 v9, 1, v9")
    A("v_xor_b32 v8, v8, v9")
    A("v_lshlrev_b32 v8, 3, v8")
    A("v_lshl_add_u32 v1, v6, 7, v8")
    A(f"v_add_u32 v1, {HST}, v1")
    A("s_nop 4")
    A("s_waitcnt lgkmcnt(0)")
    dstamp(A, 40, opt)
    for hb in range(2):
        blocks = [(m, q) for m in range(4 * hb, 4 * hb + 4) for q in range(2)]
        for (m, q) in blocks:
            a0 = ACC["Q0"] + 4 * m; a1 = ACC["Q1" if q == 0 else "Q2"] + 4 * m
            if opt.epk:
                A(f"v_pk_add_f32 {vr(a1,2)}, {vr(a0,2)}, {vr(a1,2)}")
                A(f"v_pk_add_f32 {vr(a1+2,2)}, {vr(a0+2,2)}, {vr(a1+2,2)}")
            else:
                for i in range(4): A(f"v_add_f32 v{a1+i}, v{a0+i}, v{a1+i}")
        for k, (m, q) in enumerate(blocks):
            a1 = ACC["Q1" if q == 0 else "Q2"] + 4 * m
            t = 8 + 2 * k + 16 * hb
            A(f"v_cvt_pk_bf16_f32 v{t}, v{a1}, v{a1+1}")
            A(f"v_cvt_pk_bf16_f32 v{t+1}, v{a1+2}, v{a1+3}")
        for k, (m, q) in enumerate(blocks):
            t = 8 + 2 * k + 16 * hb
            A(f"ds_write_b64 v1, {vr(t,2)} offset:{(2*m+q)*16*128}")
        if hb == 0 and opt.half2:
            dstamp(A, 41, opt)
            A("s_waitcnt lgkmcnt(0)")
            dstamp(A, 42, opt)
            gbar(A, opt)
            dstamp(A, 43, opt)
    A("s_waitcnt lgkmcnt(0)")
    dstamp(A, 51, opt)
    if opt.tdry: A("s_cbranch_execz L_store_p")
    A("s_branch L_store")

    srd_x = ["s_add_u32 s16, s4, s35", "s_addc_u32 s17, s5, 0", "s_mov_b32 s18, 2048000", "s_mov_b32 s19, 0x20000"]
    srd_w = ["s_mov_b32 s20, s6", "s_mov_b32 s21, s7", f"s_mov_b32 s22, {31*256*512*2}", "s_mov_b32 s23, 0x20000"]
    srd_s = ["s_mov_b32 s24, s14", "s_mov_b32 s25, s15", f"s_mov_b32 s26, {WS_BYTES}", "s_mov_b32 s27, 0x20000"]
    class Role:
        def __init__(self): self.vm = []; self.waits = {}; self.mode = "sim"; self.E = Null()
        def cnt(self, tag):
            l = [i for i, x in enumerate(self.vm) if x == tag]
            if not l: return 63
            return len(self.vm) - max(l) - 1
        def site(self, key, tag, extra=""):
            if self.mode == "sim": self.waits[key] = min(self.waits.get(key, 63), self.cnt(tag), 63)
            else: self.E(f"s_waitcnt vmcnt({self.waits[key]}){extra}")
    def wodma(R, i0):
        R.E(f"s_add_u32 m0, s56, {i0*1024}")
        R.E(f"s_add_u32 s45, s56, {i0*1024}")
        R.E(f"buffer_load_dwordx4 v8, s[52:55], s45 offen lds")
        R.vm.append("wo")
    def wo_setup(E):
        for l in ["s_mov_b32 s52, s8", "s_mov_b32 s53, s9", "s_mov_b32 s54, 131072", "s_mov_b32 s55, 0x20000",
                  "s_and_b32 s40, s30, 3", "s_lshl_b32 s56, s40, 10",
                  "v_lshrrev_b32 v12, 5, v5", "s_and_b32 s44, s40, 1", "s_lshl_b32 s44, s44, 1", "v_add_u32 v13, s44, v12",
                  "v_lshlrev_b32 v13, 2, v13", "v_and_b32 v8, 31, v5", "v_xor_b32 v8, v8, v13", "v_lshlrev_b32 v8, 4, v8",
                  "v_lshl_add_u32 v8, v12, 9, v8"]: E(l)
    def wo_sched(R, a):
        if opt.split: return
        if a < 8: wodma(R, 4 * a)
        else:
            for k in range(2): wodma(R, 64 + 8 * (a - 8) + 4 * k)
        if a == 15:
            for k in range(8): wodma(R, 32 + 4 * k)

    A.label("L_prod")
    A("s_cmp_ge_u32 s30, 6")
    A("s_cbranch_scc1 L_aux")
    RW = Role()
    def wdma(R, sig, creg):
        a = sig & 15
        for tile, tap in ((0, min(2 * a + 1, 30)), (1, 2 * a)):
            for h in range(2):
                R.E(f"s_add_u32 m0, s42, {(sig % NSLOT) * WSLOT + tile * 4096 + h * 2048}")
                if creg is None: R.E(f"s_mov_b32 s45, {tap * 262144 + h * 16384}")
                else: R.E(f"s_add_u32 s45, {creg}, {tap * 262144 + h * 16384}")
                R.E(f"buffer_load_dwordx4 v1, s[20:23], s45 offen lds")
                R.vm.append(("w", sig))
    def w_prologue(R):
        E = R.E
        for sg in range(opt.w_early): wdma(R, sg, None)
        if opt.tdry and R.mode == "emit":
            A("s_mov_b32 s94, 1")
            A("s_mov_b64 exec, 0")
            A("s_cmp_eq_u32 s30, 4")
            A("s_cbranch_scc1 L_cepi")
            A("s_branch L_hst")
            A.label("L_tdry_ret")
            A("s_mov_b64 exec, -1")
        E("s_mov_b32 s50, 0"); E("s_mov_b32 s51, 32768")
        if opt.dry and R.mode == "emit":
            A("s_mov_b64 exec, 0")
            A("s_cmp_eq_u32 s30, 4")
            A("s_cbranch_scc1 L_cp0")
            A("s_branch L_cp5")
            A.label("L_wdry_ret")
            A("s_mov_b64 exec, -1")
        R.site(("p1",), ("w", 1))
        if R.mode == "emit": dstamp(A, 6, opt)
        E("s_barrier")
        if R.mode == "emit": dstamp(A, 7, opt)
        for sg in range(opt.w_early, 8): wdma(R, sg, None)
        R.site(("p2",), ("w", 2))
        if R.mode == "emit": dstamp(A, 9, opt)
    def w_body(R, kind, c):
        E = R.E
        for a in range(16):
            s = 16 * c + a
            if kind == "first" and R.mode == "emit": dstamp(A, 32 + a, opt)
            E("s_barrier")
            if kind == "first" and R.mode == "emit": dstamp(A, 16 + a, opt)
            sig = s + 8
            if sig < 128: wdma(R, sig, "s51" if a >= 8 else "s50")
            if kind == "last": wo_sched(R, a)
            if a == 15 and kind != "last":
                E("s_mov_b32 s50, s51"); E("s_add_u32 s51, s51, 32768")
            if s + 3 < 128: R.site(("w", kind, a), ("w", s + 3))
    def w_all(R, loop):
        w_prologue(R)
        w_body(R, "first", 0)
        if loop:
            A("s_mov_b32 s38, 6"); A.label("L_wloop")
            w_body(R, "mid", 1)
            A("s_sub_u32 s38, s38, 1"); A("s_cmp_lg_u32 s38, 0"); A("s_cbranch_scc1 L_wloop")
        else:
            for c in range(1, 7): w_body(R, "mid", c)
        R.E(f"v_mov_b32 v13, {MODE_LDS}")
        R.E("ds_read_b32 v12, v13")
        R.E("s_waitcnt lgkmcnt(0)")
        R.E("v_readfirstlane_b32 s94, v12")
        wo_setup(R.E)
        w_body(R, "last", 7)
    wdma_addr(A)
    dstamp(A, 1, opt)
    A("s_waitcnt lgkmcnt(0)")
    for l in srd_w + srd_s + srd_x: A(l)
    if opt.ptouch:
        A("s_lshr_b32 s44, s2, 3")
        A("s_lshl_b32 s44, s44, 1")
        A("s_add_u32 s44, s44, s40")
        A("v_lshlrev_b32 v11, 16, v5")
        A("s_cmp_eq_u32 s44, 0"); A("s_cbranch_scc0 L_pt1")
        A("buffer_load_dword v12, v11, s[20:23], 0 offen"); A("s_branch L_ptd")
        A.label("L_pt1"); A("s_cmp_eq_u32 s44, 1"); A("s_cbranch_scc0 L_pt2")
        A("s_mov_b32 s45, 0x400000"); A("buffer_load_dword v12, v11, s[20:23], s45 offen"); A("s_branch L_ptd")
        A.label("L_pt2"); A("s_cmp_eq_u32 s44, 2"); A("s_cbranch_scc0 L_pt4")
        A("v_min_u32 v11, 0x3e7ffc, v11"); A("global_load_dword v12, v11, s[10:11]"); A("s_branch L_ptd")
        A.label("L_pt4"); A("s_cmp_eq_u32 s44, 3"); A("s_cbranch_scc0 L_ptd")
        A("v_min_u32 v11, 0x3e7ffc, v11"); A("global_load_dword v12, v11, s[4:5]")
        A.label("L_ptd")
    w_all(RW, False)
    RW.vm = []; RW.mode = "emit"; RW.E = A
    w_all(RW, True)
    A("s_branch L_store_p")

    A.label("L_aux")
    RA = Role()
    A("s_and_b32 s40, s30, 1")
    shared_addr(A)
    A("v_and_b32 v11, 15, v5")
    A("s_lshl_b32 s44, s40, 4")
    A("v_add_u32 v11, s44, v11")
    A("v_lshlrev_b32 v11, 10, v11")
    A("s_lshl_b32 s44, s28, 7")
    A("v_add_u32 v11, s44, v11")
    A("s_mul_i32 s44, s29, 262144")
    A("v_add_u32 v82, s44, v11")
    A("s_mov_b32 s90, 32768")
    A("s_and_b32 s44, s29, 15")
    A("s_lshl_b32 s44, s44, 1")
    A("s_add_u32 s44, s44, s40")
    A("s_lshl_b32 s44, s44, 5")
    A("v_and_b32 v83, 31, v5")
    A("v_add_u32 v83, s44, v83")
    A("v_lshlrev_b32 v83, 7, v83")
    A("v_lshlrev_b32 v2, 4, v5")
    A("s_lshl_b32 s56, s40, 10")
    A("s_lshl_b32 s57, s29, 18")
    A("s_add_u32 s57, s57, s56")
    A(f"s_add_u32 s57, s57, {WS_XIMG + 2*32768}")
    A("s_mov_b32 s58, s56")
    A("s_getreg_b32 s93, hwreg(HW_REG_XCC_ID)")
    A("s_and_b32 s93, s93, 15")
    A("v_mov_b32 v86, 0")
    A("s_lshl_b32 s59, s29, 3")
    A("s_add_u32 s59, s59, s28")
    A("s_lshl_b32 s59, s59, 7")
    A(f"s_add_u32 s59, s59, {WS_FLAGS}")
    A("v_mov_b32 v84, s59")
    A("v_and_b32 v85, 7, v5")
    A("s_lshl_b32 s59, s29, 10")
    A(f"s_add_u32 s59, s59, {WS_FLAGS}")
    A("v_lshl_add_u32 v85, v85, 7, s59")
    if opt.wtouch:
        A("v_and_b32 v11, 31, v5")
        A("v_lshlrev_b32 v11, 7, v11")
        A("s_lshl_b32 s44, s29, 18")
        A("s_lshl_b32 s45, s28, 12")
        A("s_add_u32 s44, s44, s45")
        A("s_lshl_b32 s45, s40, 17")
        A("s_add_u32 s44, s44, s45")
        A("v_add_u32 v76, s44, v11")
        A("s_mov_b32 s95, 0")
        A("v_lshrrev_b32 v11, 2, v5")
        A("v_lshlrev_b32 v11, 3, v11")
        A("s_add_u32 s44, s31, s28")
        A("v_add_u32 v11, s44, v11")
        A("v_lshlrev_b32 v11, 11, v11")
        A("v_and_b32 v12, 3, v5")
        A("v_lshl_add_u32 v11, v12, 7, v11")
        A("s_lshl_b32 s44, s33, 9")
        A("s_lshl_b32 s45, s40, 10")
        A("s_add_u32 s44, s44, s45")
        A("v_add_u32 v77, s44, v11")
    dstamp(A, 1, opt)
    A("s_waitcnt lgkmcnt(0)")
    for l in srd_x + srd_w + srd_s: A(l)
    def xdma(R, c1, k):
        R.E(f"s_add_u32 m0, s58, {k*2048}")
        R.E(f"s_add_u32 s45, s57, {k*2048}")
        R.E(f"buffer_load_dwordx4 v2, s[24:27], s45 offen {'' if opt.xplain else 'sc1 '}lds")
        R.vm.append(("x", c1))
    def spin(R, name, load, check, fail_branch):
        E = R.E
        E("s_mov_b32 s46, 0x100000")
        if R.mode == "emit": A.label(f"L_{name}spin")
        E("s_sleep 2"); E(load); E("s_waitcnt vmcnt(0)")
        for l in check[0]: E(l)
        E("s_sub_u32 s46, s46, 1"); E("s_cmp_eq_u32 s46, 0"); E(f"s_cbranch_scc1 L_{name}ok")
        for l in check[1]: E(l)
        E(f"{fail_branch} L_{name}spin")
        if R.mode == "emit": A.label(f"L_{name}ok")
    def xstores(R, t):
        E = R.E
        E(f"s_mov_b32 s45, {XARR}")
        E(f"s_mov_b32 s46, {2*XARR}")
        E(f"buffer_store_dwordx4 {vr(128 + 8*t)}, v{SS+t}, s[24:27], 0 offen sc1")
        E(f"buffer_store_dwordx4 {vr(132 + 8*t)}, v{SS+t}, s[24:27], s45 offen sc1")
        E(f"buffer_store_dwordx4 {vr(RAW2 + 12*t + 4)}, v{SS+t}, s[24:27], s46 offen sc1")
        R.vm.extend(["xs"] * 3)
    def a_prologue(R):
        E = R.E
        for t in range(4):
            b_ = RAW2 + 12 * t
            E(f"buffer_load_dwordx4 {vr(b_)}, v{SO+2*t}, s[16:19], 0 offen")
            E(f"buffer_load_dwordx4 {vr(b_+4)}, v{SO+1+2*t}, s[16:19], 0 offen")
            E(f"buffer_load_dwordx4 {vr(b_+8)}, v{SO+1+2*t}, s[16:19], 0 offen offset:1024")
            R.vm.extend([("x2", t)] * 3)
        if R.mode == "emit":
            for l in ["s_cmp_lg_u32 s2, 0", "s_cbranch_scc1 L_nononce", "s_cmp_lg_u32 s30, 6", "s_cbranch_scc1 L_nononce",
                      "s_memrealtime s[46:47]", "s_waitcnt lgkmcnt(0)", "s_and_b32 s46, s46, 0xfffffff0", "s_or_b32 s46, s46, 16", "v_mov_b32 v7, s46",
                      "s_mov_b64 exec, 1", "global_store_dword v86, v7, s[12:13] sc1", "s_mov_b64 exec, -1"]: A(l)
            A.label("L_nononce")
            dstamp(A, 3, opt)
            if opt.dry:
                A("s_mov_b64 exec, 0")
                A("s_cmp_eq_u32 s30, 6")
                A("s_cbranch_scc1 L_cp10")
                A("s_branch L_cp13")
                A.label("L_adry_ret")
                A("s_mov_b64 exec, -1")
        if R.mode == "emit": dstamp(A, 6, opt)
        E("s_barrier")
        if R.mode == "emit": dstamp(A, 7, opt)
        for t in range(opt.nwin):
            R.site(("x2", t), ("x2", t))
            if R.mode == "emit": job_valu(A, RAW2 + 12 * t, 128 + 8 * t, 132 + 8 * t)
        if R.mode == "emit": dstamp(A, 9, opt)
    def a_body(R, kind, c):
        E = R.E
        for a in range(16):
            if kind == "first" and R.mode == "emit": dstamp(A, 32 + a, opt)
            E("s_barrier")
            if kind == "first" and R.mode == "emit": dstamp(A, 16 + a, opt)
            if opt.prefetch and kind != "last" and a == opt.pf_a:
                E("buffer_load_dword v119, v82, s[20:23], s90 offen")
                E("s_add_u32 s90, s90, 32768")
                R.vm.append("pf")
            if opt.prefetch and kind == "first" and a == 12:
                E("global_load_dword v118, v83, s[8:9]")
                R.vm.append("pf")
            if kind == "first":
                rem = [(t, d) for t in range(opt.nwin, 4) for d in range(4)]
                for (t, d) in rem[2*a:2*a+2]:
                    if d == 0: R.site(("x2", t), ("x2", t))
                    if R.mode == "emit": job_valu(A, RAW2 + 12 * t, 128 + 8 * t, 132 + 8 * t, [d])
                st_at = {0: opt.st0, 1: opt.st0 + 2, 2: opt.st0 + 4, 3: opt.st0 + 6}
                for t in range(4):
                    if a == st_at[t]: xstores(R, t)
                if a == opt.sig_a - 2:
                    E("global_load_dword v87, v86, s[12:13] sc1")
                    R.vm.append("nonce")
                if a == opt.sig_a - 1:
                    R.site(("nonce",), "nonce")
                    E("v_readfirstlane_b32 s47, v87")
                    E("s_cmp_lg_u32 s47, 0")
                    E("s_cbranch_scc1 L_nok")
                    spin(R, "n", "global_load_dword v87, v86, s[12:13] sc1", (["v_readfirstlane_b32 s47, v87"], ["s_cmp_eq_u32 s47, 0"]), "s_cbranch_scc1")
                    R.site(("sig",), "xs")
                if a == opt.sig_a:
                    E("s_cmp_lg_u32 s30, 6")
                    E("s_cbranch_scc1 L_nosig")
                    E("s_or_b32 s44, s47, s93")
                    E("v_mov_b32 v11, s44")
                    E("s_mov_b64 exec, 1")
                    E("global_store_dword v84, v11, s[14:15] sc1")
                    E("s_mov_b64 exec, -1")
                    if R.mode == "emit": A.label("L_nosig")
                if a == opt.poll_a - 2:
                    E("global_load_dword v87, v85, s[14:15] sc1")
                    R.vm.append("poll")
                if a == opt.poll_a - 1:
                    R.site(("poll",), "poll")
                    E("v_and_b32 v12, -16, v87")
                    E("v_cmp_eq_u32 vcc, s47, v12")
                    E("s_nop 1")
                    E("s_cmp_eq_u64 vcc, -1")
                    E("s_cbranch_scc1 L_xok")
                    spin(R, "x", "global_load_dword v87, v85, s[14:15] sc1", (["v_and_b32 v12, -16, v87", "v_cmp_eq_u32 vcc, s47, v12"], ["s_cmp_eq_u64 vcc, -1"]), "s_cbranch_scc0")
                    E("s_or_b32 s44, s47, s93")
                    E("v_cmp_eq_u32 vcc, s44, v87")
                    E("s_mov_b32 s94, 0")
                    E("s_nop 0")
                    E("s_cmp_eq_u64 vcc, -1")
                    E("s_cselect_b32 s94, 1, 0")
                    if opt.slowmode: E("s_mov_b32 s94, 0")
                    E("v_mov_b32 v12, s94")
                    E("v_mov_b32 v13, s47")
                    E(f"v_mov_b32 v14, {MODE_LDS}")
                    E("ds_write_b64 v14, v[12:13]")
                    E("s_waitcnt lgkmcnt(0)")
            elif kind == "mid":
                if 1 <= a <= 8:
                    for k in range(2):
                        kk = 2 * (a - 1) + k
                        if kk < 15: xdma(R, c + 1, kk)
                if a == 13: R.site(("xl",), ("x", c + 1))
                if opt.otouch and a == 14:
                    E("s_cmp_lg_u32 s38, %d" % opt.otouch)
                    E("s_cbranch_scc1 L_noot")
                    E("s_add_u32 s60, s10, s35"); E("s_addc_u32 s61, s11, 0"); E("s_mov_b32 s62, 2048000"); E("s_mov_b32 s63, 0x20000")
                    E("buffer_load_dword v115, v77, s[60:63], 0 offen")
                    if R.mode == "emit": A.label("L_noot")
                if opt.wtouch and a in opt.wt_a:
                    E("s_cmp_gt_u32 s38, %d" % opt.wt_it)
                    E(f"s_cbranch_scc1 L_nowt{a}")
                    E("buffer_load_dword v117, v76, s[24:27], s95 offen")
                    E("s_add_u32 s95, s95, 32768")
                    if R.mode == "emit": A.label(f"L_nowt{a}")
                if a == 15:
                    E("s_add_u32 s57, s57, 32768")
                    E(f"s_xor_b32 s58, s58, {XBUF}")
            elif kind == "last":
                if opt.tailpf >= 0 and a == opt.tailpf and R.mode == "emit":
                    A("s_getpc_b64 s[44:45]")
                    A.label("L_pcref2")
                    A(f"s_sub_u32 s44, s44, L_pcref2-{MAIN}")
                    A("s_subb_u32 s45, s45, 0")
                    A("v_lshlrev_b32 v11, 6, v5")
                    A(f"v_add_u32 v12, L_cepi-{MAIN}, v11")
                    A(f"v_add_u32 v13, L_store_p-{MAIN}, v11")
                    A("s_cmp_eq_u32 s30, 6")
                    A("s_cselect_b64 vcc, -1, 0")
                    A("v_cndmask_b32 v11, v13, v12, vcc")
                    A(f"v_min_u32 v11, L_end-{MAIN}, v11")
                    A("global_load_dword v114, v11, s[44:45]")
                wo_sched(R, a)
    def a_all(R, loop):
        a_prologue(R)
        a_body(R, "first", 0)
        if loop:
            A("s_mov_b32 s38, 6"); A.label("L_aloop")
            a_body(R, "mid", 1)
            A("s_sub_u32 s38, s38, 1"); A("s_cmp_lg_u32 s38, 0"); A("s_cbranch_scc1 L_aloop")
        else:
            for c in range(1, 7): a_body(R, "mid", c)
        wo_setup(R.E)
        a_body(R, "last", 7)
    a_all(RA, False)
    RA.vm = []; RA.mode = "emit"; RA.E = A
    a_all(RA, True)

    A.label("L_store_p")
    dstamp(A, 50, opt)
    A("v_and_b32 v1, 7, v5")
    A("v_lshrrev_b32 v2, 3, v5")
    A("s_and_b32 s40, s30, 3")
    A("s_lshl_b32 s41, s40, 3")
    A("v_add_u32 v2, s41, v2")
    A("v_and_b32 v3, 7, v2")
    A("v_xor_b32 v3, v3, v1")
    A("v_lshlrev_b32 v3, 4, v3")
    A("v_lshl_add_u32 v3, v2, 7, v3")
    A(f"v_add_u32 v3, {HST}, v3")
    A("v_lshlrev_b32 v4, 7, v2")
    A("v_lshl_add_u32 v4, v1, 4, v4")
    A("s_lshl_b32 s39, s29, 18")
    A("s_lshl_b32 s40, s28, 12")
    A("s_add_u32 s39, s39, s40")
    halves = [range(0, 4), range(4, 8)] if opt.half2 else [range(0, 8)]
    for hi_, blk in enumerate(halves):
        if hi_ == len(halves) - 1:
            A("s_waitcnt vmcnt(%d)" % (14 if opt.half2 else 10))
        dstamp(A, 51, opt) if hi_ == 0 else None
        gbar(A, opt)
        dstamp(A, 52, opt) if hi_ == len(halves) - 1 else None
        n = len(blk)
        for i in blk: A(f"ds_read_b128 {vr(16+4*i)}, v3 offset:{i*32*128}")
        A("s_cmp_eq_u32 s94, 1")
        A(f"s_cbranch_scc1 L_hfast{hi_}")
        for fl, lab in (("sc1", None), (opt.fastflags, f"L_hfast{hi_}")):
            if lab: A.label(lab)
            g = guard_begin(A, opt)
            for k, i in enumerate(blk):
                A(f"s_waitcnt lgkmcnt({n-1-k})")
                A(f"s_add_u32 s41, s39, {i*32768}")
                A(f"buffer_store_dwordx4 {vr(16+4*i)}, v4, s[24:27], s41 offen {fl}")
            guard_end(A, g)
            if not lab: A(f"s_branch L_hs{hi_}")
        A.label(f"L_hs{hi_}")
    def afrags(kaps):
        for kap in kaps:
            for hf in range(2):
                off = kap * 32 * 512 + 8 * hf
                areg = 10 if kap < 4 else 12
                off -= 0 if kap < 4 else 65536
                d = 128 + 8 * kap + 4 * hf
                A(f"ds_read_b64_tr_b16 {vr(d,2)}, v{areg} offset:{off}")
                A(f"ds_read_b64_tr_b16 {vr(d+2,2)}, v{areg} offset:{off+2048}")
    def tail_setup(kaps):
        A("v_and_b32 v6, 15, v5")
        A("v_lshrrev_b32 v7, 4, v5")
        A("v_lshrrev_b32 v8, 2, v6")
        A("v_and_b32 v13, 3, v6")
        A("s_lshl_b32 s44, s30, 2")
        A("v_add_u32 v10, s44, v13")
        A("v_lshlrev_b32 v11, 2, v8")
        A("v_xor_b32 v10, v10, v11")
        A("v_lshlrev_b32 v10, 4, v10")
        A("v_lshl_add_u32 v11, v7, 3, v8")
        A("v_lshl_add_u32 v10, v11, 9, v10")
        A("v_add_u32 v12, 0x10000, v10")
        afrags(kaps)
        A("s_add_u32 s96, s10, s35")
        A("s_addc_u32 s97, s11, 0")
        A("s_mov_b32 s98, 2048000")
        A("s_mov_b32 s99, 0x20000")
        A("v_lshrrev_b32 v2, 4, v0")
        A("v_and_b32 v3, 15, v0")
        A("v_lshrrev_b32 v4, 3, v3")
        A("v_lshlrev_b32 v4, 12, v4")
        A("v_lshl_add_u32 v4, v2, 7, v4")
        A("v_and_b32 v14, 7, v3")
        A("v_lshl_add_u32 v4, v14, 4, v4")
        A("s_lshl_b32 s88, s29, 18")
        A("s_lshl_b32 s89, s28, 15")
        A("s_add_u32 s88, s88, s89")
        A("s_add_u32 s89, s88, 8192")
        A("s_add_u32 s91, s88, 16384")
        A("s_add_u32 s92, s88, 24576")
        A("s_mov_b32 s48, 0xc038aa3b")
        A("s_mov_b32 s49, 0xc038aa3b")
        A("s_mov_b32 s50, 0xbfb8aa3b")
        A("s_mov_b32 s51, 0xbfb8aa3b")
        A("s_mov_b32 s52, 1.0")
        A("s_mov_b32 s53, 1.0")
        A("s_mov_b32 s43, 0x42700000")
        A(f"v_mul_u32_u24 v9, {ZP}, v2")
        A("v_lshl_add_u32 v9, v3, 4, v9")
        A(f"v_add_u32 v9, {HST}, v9")
        A(f"v_mul_u32_u24 v11, {ZP}, v6")
        A("v_lshl_add_u32 v11, v7, 4, v11")
        A(f"v_add_u32 v11, {HST}, v11")
        A("v_lshlrev_b32 v8, 3, v6")
        A("s_add_u32 s44, s31, s28")
        A("v_add_u32 v8, s44, v8")
        A("v_lshlrev_b32 v8, 11, v8")
        A("s_lshl_b32 s44, s33, 9")
        A("s_lshl_b32 s45, s30, 6")
        A("s_add_u32 s44, s44, s45")
        A("v_add_u32 v8, s44, v8")
        A("v_lshl_add_u32 v8, v7, 4, v8")
        A("v_mov_b32 v14, 0xc2700000")
    A("s_waitcnt vmcnt(0)")
    dstamp(A, 55, opt)
    A("s_barrier")
    dstamp(A, 56, opt)
    tail_setup(range(8))
    dstamp(A, 54, opt)
    A("s_branch L_hwait")
    A.label("L_store")
    A("s_barrier")
    dstamp(A, 52, opt)
    A("v_readfirstlane_b32 s94, v246")
    A("v_readfirstlane_b32 s47, v247")
    tail_setup([0, 1, 4, 5, 6])
    A("s_lshl_b32 s44, s29, 3")
    A("s_add_u32 s44, s44, s28")
    A("s_lshl_b32 s44, s44, 7")
    A(f"s_add_u32 s44, s44, {WS_FLAGS + 65536}")
    A("v_mov_b32 v84, s44")
    A("v_and_b32 v85, 7, v5")
    A("s_lshl_b32 s44, s29, 10")
    A(f"s_add_u32 s44, s44, {WS_FLAGS + 65536}")
    A("v_lshl_add_u32 v85, v85, 7, s44")
    A("v_mov_b32 v15, s47")
    dstamp(A, 54, opt)
    A("s_barrier")
    dstamp(A, 56, opt)
    stamp(A, 3, opt)
    A("s_cmp_lg_u32 s30, 0")
    A("s_cbranch_scc1 L_nofl")
    A("s_mov_b64 exec, 1")
    A("s_cmp_eq_u32 s94, 1")
    A("s_cbranch_scc1 L_ffast")
    A("global_store_dword v84, v15, s[14:15] sc1")
    A("s_branch L_fdone")
    A.label("L_ffast")
    A("global_store_dword v84, v15, s[14:15]")
    A.label("L_fdone")
    A("s_mov_b64 exec, -1")
    A.label("L_nofl")
    afrags([2, 3, 7])
    A("s_cmp_lg_u32 s30, 0")
    A("s_cbranch_scc1 L_hwait")
    A("s_mov_b32 s46, 0x100000")
    A.label("L_hspin")
    A("global_load_dword v87, v85, s[14:15] sc1")
    A("s_waitcnt vmcnt(0)")
    A("v_cmp_eq_u32 vcc, s47, v87")
    A("s_sub_u32 s46, s46, 1")
    A("s_cmp_eq_u32 s46, 0")
    A("s_cbranch_scc1 L_hwait")
    A("s_cmp_eq_u64 vcc, -1")
    A("s_cbranch_scc0 L_hspin")
    A.label("L_hwait")
    A("s_waitcnt lgkmcnt(0)")
    gbar(A, opt)
    dstamp(A, 57, opt)
    stamp(A, 4, opt)
    g = guard_begin(A, opt)
    A(f"buffer_load_dwordx4 {vr(16)}, v4, s[24:27], s88 offen {opt.hload}")
    A(f"buffer_load_dwordx4 {vr(20)}, v4, s[24:27], s91 offen {opt.hload}")
    A(f"buffer_load_dwordx4 {vr(24)}, v4, s[24:27], s89 offen {opt.hload}")
    A(f"buffer_load_dwordx4 {vr(28)}, v4, s[24:27], s92 offen {opt.hload}")
    guard_end(A, g)
    for half in range(2):
        A(f"s_waitcnt vmcnt({2 if half == 0 else 0})")
        dstamp(A, 58 + half, opt)
        fb, gb = 16 + 8 * half, 20 + 8 * half
        zb = 32 + 4 * half
        for d0 in range(0, 4, 2):
            TT = [(40, d0), (52, d0 + 1)]
            for t, d in TT:
                A(f"v_lshlrev_b32 v{t}, 16, v{fb+d}"); A(f"v_and_b32 v{t+1}, s36, v{fb+d}")
                A(f"v_lshlrev_b32 v{t+2}, 16, v{gb+d}"); A(f"v_and_b32 v{t+3}, s36, v{gb+d}")
            for t, d in TT:
                A(f"v_pk_mul_f32 {vr(t,2)}, {vr(t,2)}, s[48:49]")
                A(f"v_pk_mul_f32 {vr(t+2,2)}, {vr(t+2,2)}, s[50:51]")
            for t, d in TT:
                A(f"v_med3_f32 v{t}, v{t}, s43, v14"); A(f"v_med3_f32 v{t+1}, v{t+1}, s43, v14")
            for t, d in TT:
                A(f"v_exp_f32 v{t+2}, v{t+2}"); A(f"v_exp_f32 v{t+3}, v{t+3}")
            for t, d in TT:
                A(f"v_exp_f32 v{t}, v{t}"); A(f"v_exp_f32 v{t+1}, v{t+1}")
            for t, d in TT:
                A(f"v_pk_add_f32 {vr(t+2,2)}, {vr(t+2,2)}, s[52:53]")
            for t, d in TT:
                A(f"v_pk_add_f32 {vr(t+4,2)}, {vr(t,2)}, s[52:53]")
                A(f"v_pk_add_f32 {vr(t,2)}, {vr(t,2)}, s[52:53] neg_lo:[1,0] neg_hi:[1,0]")
            for t, d in TT:
                A(f"v_pk_mul_f32 {vr(t+4,2)}, {vr(t+4,2)}, {vr(t+2,2)}")
            for t, d in TT:
                A(f"v_rcp_f32 v{t+4}, v{t+4}"); A(f"v_rcp_f32 v{t+5}, v{t+5}")
            A("s_nop 0")
            for t, d in TT:
                A(f"v_pk_mul_f32 {vr(t,2)}, {vr(t,2)}, {vr(t+4,2)}")
            for t, d in TT:
                A(f"v_cvt_pk_bf16_f32 v{zb+d}, v{t}, v{t+1}")
        A(f"ds_write_b128 v9, {vr(zb)} offset:{256*half}")
    A("s_waitcnt lgkmcnt(0)")
    dstamp(A, 60, opt)
    gbar(A, opt)
    dstamp(A, 61, opt)
    tr = LdsTracker()
    AF = 128
    ACC2 = 64
    BF = 192
    ops = []
    for kap in range(8):
        for tau in range(2):
            d = BF + 8 * (kap % 4) + 4 * tau
            if kap < 4: ops.append(("lds", f"ds_read_b128 {vr(d)}, v11 offset:{tau*16*ZP + kap*64}", rng(d, 4), []))
    for kap in range(8):
        for hf in range(2):
            for tau in range(2):
                acc = ACC2 + 4 * (2 * tau + hf)
                af = AF + 8 * kap + 4 * hf
                bf = BF + 8 * (kap % 4) + 4 * tau
                c = vr(acc) if kap > 0 else "0"
                ops.append(("mfma", f"v_mfma_f32_16x16x32_bf16 {vr(acc)}, {vr(af)}, {vr(bf)}, {c}", [], rng(bf, 4)))
        if kap < 4:
            for tau in range(2):
                d = BF + 8 * (kap % 4) + 4 * tau
                ops.append(("lds", f"ds_read_b128 {vr(d)}, v11 offset:{tau*16*ZP + (kap+4)*64}", rng(d, 4), []))
    emit_with_waits(A, ops, tr)
    A("s_nop 7")
    A("s_nop 1")
    dstamp(A, 62, opt)
    for tau in range(2):
        a_ = ACC2 + 8 * tau
        t = 16 + 4 * tau
        A(f"v_cvt_pk_bf16_f32 v{t}, v{a_}, v{a_+1}")
        A(f"v_cvt_pk_bf16_f32 v{t+1}, v{a_+2}, v{a_+3}")
        A(f"v_cvt_pk_bf16_f32 v{t+2}, v{a_+4}, v{a_+5}")
        A(f"v_cvt_pk_bf16_f32 v{t+3}, v{a_+6}, v{a_+7}")
    if opt.tdry: A("s_cbranch_execz L_tdry_ret")
    for tau in range(2):
        t = 16 + 4 * tau
        A(f"buffer_store_dwordx4 {vr(t)}, v8, s[96:99], 0 offen offset:{1024*tau} {opt.outflags}")
    if opt.stamps and not opt.dbgat:
        A("s_waitcnt vmcnt(0)")
        dstamp(A, 63, opt)
        stamp(A, 5, opt)
        A("s_waitcnt lgkmcnt(0)")
        if opt.dstamps:
            A("s_and_b32 s50, s30, 1")
            A("s_cmp_lg_u32 s50, 0")
            A("s_cbranch_scc1 L_nods")
            A("s_lshl_b32 s50, s2, 10")
            A("s_lshr_b32 s51, s30, 1")
            A("s_lshl_b32 s51, s51, 8")
            A("s_add_u32 s50, s50, s51")
            A(f"s_add_u32 s50, s50, {STAMP_OFF + 131072}")
            A("v_lshl_add_u32 v1, v5, 2, s50")
            A("global_store_dword v1, v245, s[14:15]")
            A.label("L_nods")
        if opt.cstamps:
            A("v_cmp_gt_u32 vcc, 16, v0")
            A("s_and_saveexec_b64 s[48:49], vcc")
            A("s_cbranch_execz L_nocs")
            A("s_lshl_b32 s50, s2, 6")
            A(f"s_add_u32 s50, s50, {STAMP_OFF + 65536}")
            A("v_lshl_add_u32 v1, v0, 2, s50")
            A("global_store_dword v1, v244, s[14:15]")
            A.label("L_nocs")
            A("s_mov_b64 exec, s[48:49]")
        A("v_cmp_eq_u32 vcc, 0, v0")
        A("s_and_saveexec_b64 s[48:49], vcc")
        A("s_cbranch_execz L_end")
        A("s_lshl_b32 s50, s2, 6")
        A(f"s_add_u32 s50, s50, {STAMP_OFF}")
        A("v_mov_b32 v1, s50")
        order = [60, 61, 80, 81, 62, 63, 82, 83, 64, 65, 68, 69, 72, 73, 76, 77]
        for i in range(0, 16, 4):
            for k in range(4): A(f"v_mov_b32 v{4+k}, s{order[i+k]}")
            A(f"global_store_dwordx4 v1, v[4:7], s[14:15] offset:{i*4}")
            A("s_nop 1")
    if opt.dbgat:
        A("s_waitcnt vmcnt(0)")
        stamp(A, 5, opt)
        A("s_waitcnt lgkmcnt(0)")
        A("v_cmp_eq_u32 vcc, 0, v0")
        A("s_and_saveexec_b64 s[48:49], vcc")
        A("s_cbranch_execz L_end")
        A("v_mov_b32 v1, 0")
        def amax(word, expr):
            for l in expr: A(l)
            A("v_mov_b32 v2, s50")
            A(f"global_atomic_umax v1, v2, s[12:13] offset:{4*word}")
        amax(4, ["s_mov_b32 s50, s82"])
        amax(5, ["s_not_b32 s50, s62"])
        amax(6, ["s_sub_u32 s50, s80, s60"])
        amax(7, ["s_sub_u32 s50, s64, s60"])
        amax(8, ["s_sub_u32 s50, s68, s60"])
        amax(9, ["s_sub_u32 s50, s72, s60"])
        amax(10, ["s_sub_u32 s50, s76, s60"])
        amax(11, ["s_sub_u32 s50, s82, s62"])
        A("s_waitcnt vmcnt(0)")
    A.label("L_end")
    A("s_endpgm")
    return A.text()


ST2 = "wavenet_stage2_kernel"
def map_ids(A, opt):
    if opt.map == "n8":
        A("s_and_b32 s28, s2, 7"); A("s_lshr_b32 s29, s2, 3")
    elif opt.map == "m4":
        for l in ["s_and_b32 s29, s2, 7", "s_lshl_b32 s29, s29, 2", "s_lshr_b32 s28, s2, 3", "s_lshr_b32 s35, s28, 3",
                  "s_add_u32 s29, s29, s35", "s_and_b32 s28, s28, 7"]: A(l)
    else:
        for l in ["s_lshr_b32 s35, s2, 3", "s_and_b32 s28, s2, 1", "s_lshl_b32 s28, s28, 2", "s_and_b32 s29, s35, 3",
                  "s_add_u32 s28, s28, s29", "s_lshr_b32 s29, s2, 1", "s_and_b32 s29, s29, 3", "s_lshl_b32 s29, s29, 3",
                  "s_lshr_b32 s35, s35, 2", "s_add_u32 s29, s29, s35"]: A(l)

def gating(A):
    A("v_mov_b32 v14, 0xc2700000")
    for half in range(2):
        fb, gb = 16 + 8 * half, 20 + 8 * half
        zb = 32 + 4 * half
        yield half
        for d0 in range(0, 4, 2):
            TT = [(40, d0), (52, d0 + 1)]
            for t, d in TT:
                A(f"v_lshlrev_b32 v{t}, 16, v{fb+d}"); A(f"v_and_b32 v{t+1}, s36, v{fb+d}")
                A(f"v_lshlrev_b32 v{t+2}, 16, v{gb+d}"); A(f"v_and_b32 v{t+3}, s36, v{gb+d}")
            for t, d in TT:
                A(f"v_pk_mul_f32 {vr(t,2)}, {vr(t,2)}, s[48:49]")
                A(f"v_pk_mul_f32 {vr(t+2,2)}, {vr(t+2,2)}, s[50:51]")
            for t, d in TT:
                A(f"v_med3_f32 v{t}, v{t}, s43, v14"); A(f"v_med3_f32 v{t+1}, v{t+1}, s43, v14")
            for t, d in TT:
                A(f"v_exp_f32 v{t+2}, v{t+2}"); A(f"v_exp_f32 v{t+3}, v{t+3}")
            for t, d in TT:
                A(f"v_exp_f32 v{t}, v{t}"); A(f"v_exp_f32 v{t+1}, v{t+1}")
            for t, d in TT:
                A(f"v_pk_add_f32 {vr(t+2,2)}, {vr(t+2,2)}, s[52:53]")
            for t, d in TT:
                A(f"v_pk_add_f32 {vr(t+4,2)}, {vr(t,2)}, s[52:53]")
                A(f"v_pk_add_f32 {vr(t,2)}, {vr(t,2)}, s[52:53] neg_lo:[1,0] neg_hi:[1,0]")
            for t, d in TT:
                A(f"v_pk_mul_f32 {vr(t+4,2)}, {vr(t+4,2)}, {vr(t+2,2)}")
            for t, d in TT:
                A(f"v_rcp_f32 v{t+4}, v{t+4}"); A(f"v_rcp_f32 v{t+5}, v{t+5}")
            A("s_nop 0")
            for t, d in TT:
                A(f"v_pk_mul_f32 {vr(t,2)}, {vr(t,2)}, {vr(t+4,2)}")
            for t, d in TT:
                A(f"v_cvt_pk_bf16_f32 v{zb+d}, v{t}, v{t+1}")
        A(f"ds_write_b128 v9, {vr(zb)} offset:{256*half}")

def gen_stage2(opt):
    A = Asm()
    A.raw(f".globl {ST2}\n.p2align 8\n.type {ST2},@function\n{ST2}:")
    A("s_cmp_ge_u32 s2, 256")
    A("s_cbranch_scc1 L2_end")
    A("s_load_dwordx4 s[8:11], s[0:1], 16")
    A("s_load_dwordx2 s[14:15], s[0:1], 40")
    A("v_lshrrev_b32 v1, 6, v0")
    A("v_and_b32 v5, 63, v0")
    map_ids(A, opt)
    A("v_readfirstlane_b32 s30, v1")
    A("s_and_b32 s31, s29, 7")
    A("s_lshl_b32 s31, s31, 7")
    A("s_lshr_b32 s32, s29, 3")
    A("s_and_b32 s33, s32, 1")
    A("s_lshr_b32 s34, s32, 1")
    A("s_mul_i32 s35, s34, 2048000")
    A("s_mov_b32 s36, 0xffff0000")
    A("v_lshrrev_b32 v2, 4, v0")
    A("v_and_b32 v3, 15, v0")
    A("v_lshrrev_b32 v4, 3, v3")
    A("v_lshlrev_b32 v4, 12, v4")
    A("v_lshl_add_u32 v4, v2, 7, v4")
    A("v_and_b32 v14, 7, v3")
    A("v_lshl_add_u32 v4, v14, 4, v4")
    A("s_lshl_b32 s39, s29, 18")
    A("s_lshl_b32 s40, s28, 15")
    A("s_add_u32 s39, s39, s40")
    A("s_add_u32 s40, s39, 8192")
    A("s_add_u32 s41, s39, 16384")
    A("s_add_u32 s42, s39, 24576")
    A("v_lshrrev_b32 v12, 5, v5")
    A("s_and_b32 s44, s30, 1")
    A("s_lshl_b32 s44, s44, 1")
    A("v_add_u32 v13, s44, v12")
    A("v_lshlrev_b32 v13, 2, v13")
    A("v_and_b32 v15, 31, v5")
    A("v_xor_b32 v15, v15, v13")
    A("v_lshlrev_b32 v15, 4, v15")
    A("v_lshl_add_u32 v15, v12, 9, v15")
    A("s_lshl_b32 s56, s30, 10")
    A("s_waitcnt lgkmcnt(0)")
    for l in ["s_mov_b32 s24, s14", "s_mov_b32 s25, s15", f"s_mov_b32 s26, {WS_BYTES}", "s_mov_b32 s27, 0x20000"]: A(l)
    A(f"buffer_load_dwordx4 {vr(16)}, v4, s[24:27], s39 offen")
    A(f"buffer_load_dwordx4 {vr(20)}, v4, s[24:27], s41 offen")
    A(f"buffer_load_dwordx4 {vr(24)}, v4, s[24:27], s40 offen")
    A(f"buffer_load_dwordx4 {vr(28)}, v4, s[24:27], s42 offen")
    for l in ["s_mov_b32 s52, s8", "s_mov_b32 s53, s9", "s_mov_b32 s54, 131072", "s_mov_b32 s55, 0x20000"]: A(l)
    for k in range(16):
        A(f"s_add_u32 m0, s56, {k*8192}")
        A(f"s_add_u32 s45, s56, {k*8192}")
        A("buffer_load_dwordx4 v15, s[52:55], s45 offen lds")
    A("s_add_u32 s20, s10, s35")
    A("s_addc_u32 s21, s11, 0")
    A("s_mov_b32 s22, 2048000")
    A("s_mov_b32 s23, 0x20000")
    A("v_and_b32 v6, 15, v5")
    A("v_lshrrev_b32 v7, 4, v5")
    A("v_lshrrev_b32 v8, 2, v6")
    A("v_and_b32 v13, 3, v6")
    A("s_lshl_b32 s44, s30, 2")
    A("v_add_u32 v10, s44, v13")
    A("v_lshlrev_b32 v11, 2, v8")
    A("v_xor_b32 v10, v10, v11")
    A("v_lshlrev_b32 v10, 4, v10")
    A("v_lshl_add_u32 v11, v7, 3, v8")
    A("v_lshl_add_u32 v10, v11, 9, v10")
    A("v_add_u32 v12, 0x10000, v10")
    A("s_mov_b32 s48, 0xc038aa3b"); A("s_mov_b32 s49, 0xc038aa3b")
    A("s_mov_b32 s50, 0xbfb8aa3b"); A("s_mov_b32 s51, 0xbfb8aa3b")
    A("s_mov_b32 s58, 1.0"); A("s_mov_b32 s59, 1.0")
    A("s_mov_b32 s43, 0x42700000")
    A(f"v_mul_u32_u24 v9, {ZP}, v2")
    A("v_lshl_add_u32 v9, v3, 4, v9")
    A(f"v_add_u32 v9, {HST}, v9")
    A(f"v_mul_u32_u24 v11, {ZP}, v6")
    A("v_lshl_add_u32 v11, v7, 4, v11")
    A(f"v_add_u32 v11, {HST}, v11")
    A("v_lshlrev_b32 v8, 3, v6")
    A("s_add_u32 s44, s31, s28")
    A("v_add_u32 v8, s44, v8")
    A("v_lshlrev_b32 v8, 11, v8")
    A("s_lshl_b32 s44, s33, 9")
    A("s_lshl_b32 s45, s30, 6")
    A("s_add_u32 s44, s44, s45")
    A("v_add_u32 v8, s44, v8")
    A("v_lshl_add_u32 v8, v7, 4, v8")
    B = Asm()
    for half in gating(B):
        B(f"s_waitcnt vmcnt({18 if half == 0 else 16})")
    A.lines += [l.replace("s[52:53]", "s[58:59]") for l in B.lines]
    A("s_waitcnt vmcnt(0) lgkmcnt(0)")
    A("s_barrier")
    AF, BF, ACC2 = 64, 128, 160
    tr = LdsTracker()
    ops = []
    def rdA(kap):
        o = []
        for hf in range(2):
            off = kap * 32 * 512 + 8 * hf
            areg = 10 if kap < 4 else 12
            off -= 0 if kap < 4 else 65536
            d = AF + 8 * kap + 4 * hf
            o.append(("lds", f"ds_read_b64_tr_b16 {vr(d,2)}, v{areg} offset:{off}", rng(d, 2), []))
            o.append(("lds", f"ds_read_b64_tr_b16 {vr(d+2,2)}, v{areg} offset:{off+2048}", rng(d+2, 2), []))
        for tau in range(2):
            d = BF + 8 * (kap % 4) + 4 * tau
            o.append(("lds", f"ds_read_b128 {vr(d)}, v11 offset:{tau*16*ZP + kap*64}", rng(d, 4), []))
        return o
    ops += rdA(0) + rdA(1)
    for kap in range(8):
        if kap + 2 < 8: ops += rdA(kap + 2)
        for hf in range(2):
            for tau in range(2):
                acc = ACC2 + 4 * (2 * tau + hf)
                af = AF + 8 * kap + 4 * hf
                bf = BF + 8 * (kap % 4) + 4 * tau
                c = vr(acc) if kap > 0 else "0"
                ops.append(("mfma", f"v_mfma_f32_16x16x32_bf16 {vr(acc)}, {vr(af)}, {vr(bf)}, {c}", [], rng(bf, 4) + rng(af, 4)))
    emit_with_waits(A, ops, tr)
    A("s_nop 7"); A("s_nop 1")
    for tau in range(2):
        a_ = ACC2 + 8 * tau
        t = 16 + 4 * tau
        A(f"v_cvt_pk_bf16_f32 v{t}, v{a_}, v{a_+1}")
        A(f"v_cvt_pk_bf16_f32 v{t+1}, v{a_+2}, v{a_+3}")
        A(f"v_cvt_pk_bf16_f32 v{t+2}, v{a_+4}, v{a_+5}")
        A(f"v_cvt_pk_bf16_f32 v{t+3}, v{a_+6}, v{a_+7}")
        A(f"buffer_store_dwordx4 {vr(t)}, v8, s[20:23], 0 offen offset:{1024*tau} {opt.outflags}")
    A.label("L2_end")
    A("s_endpgm")
    return A.text()

def kd(name, nv, ns=102):
    return f""".amdhsa_kernel {name}
  .amdhsa_next_free_vgpr {nv}
  .amdhsa_next_free_sgpr {ns}
  .amdhsa_accum_offset {(nv + 3) // 4 * 4}
  .amdhsa_group_segment_fixed_size 0
  .amdhsa_kernarg_size 48
  .amdhsa_user_sgpr_count 2
  .amdhsa_user_sgpr_kernarg_segment_ptr 1
  .amdhsa_system_sgpr_workgroup_id_x 1
.end_amdhsa_kernel
"""

HEADER = """; Kernarg layout for this problem (48 bytes, ptrs only, base s[0:1]):
"""

def main():
    ap = argparse.ArgumentParser()
    ap.add_argument("-o", default="standalone__autoregressive_conv_wavenet__speech.s")
    ap.add_argument("--stamps", action="store_true")
    ap.add_argument("--cap", type=int, default=2)
    ap.add_argument("--outflags", default="")
    ap.add_argument("--cstamps", action="store_true")
    ap.add_argument("--dstamps", action="store_true")
    ap.add_argument("--xplain", action="store_true")
    ap.add_argument("--align", action="store_true")
    ap.add_argument("--no-prefetch", dest="prefetch", action="store_false")
    ap.add_argument("--pf_a", type=int, default=3)
    ap.add_argument("--st0", type=int, default=0)
    ap.add_argument("--nwin", type=int, default=3)
    ap.add_argument("--w_early", type=int, default=4)
    ap.add_argument("--map", default="m4")
    ap.add_argument("--sig_a", type=int, default=11)
    ap.add_argument("--poll_a", type=int, default=16)
    ap.add_argument("--wo_gaps", type=lambda s: [int(x) for x in s.split(",")], default=[9, 10])
    ap.add_argument("--we_gaps", type=lambda s: [int(x) for x in s.split(",")], default=[17, 18])
    ap.add_argument("--bar_after", type=int, default=1)
    ap.add_argument("--e64", action="store_true")
    ap.add_argument("--novalu", action="store_true")
    ap.add_argument("--no-epk", dest="epk", action="store_false")
    ap.add_argument("--tdry", action="store_true")
    ap.add_argument("--dry", action="store_true")
    ap.add_argument("--otouch", type=int, default=0)
    ap.add_argument("--ptouch", action="store_true")
    ap.add_argument("--no-half2", dest="half2", action="store_false")
    ap.add_argument("--tailpf", type=int, default=-1)
    ap.add_argument("--hload", default="sc1")
    ap.add_argument("--fastflags", default="")
    ap.add_argument("--no-wtouch", dest="wtouch", action="store_false")
    ap.add_argument("--wt_a", type=lambda s: [int(x) for x in s.split(",")], default=[9, 14])
    ap.add_argument("--wt_it", type=int, default=2)
    ap.add_argument("--slowmode", action="store_true")
    ap.add_argument("--codepf", type=int, default=1)
    ap.add_argument("--split", action="store_true")
    ap.add_argument("--hflags", default="sc1")
    ap.add_argument("--dbgat", action="store_true")
    ap.add_argument("--dot2", action="store_true")
    ap.add_argument("--swap", action="store_true")
    opt = ap.parse_args()
    E64[0] = opt.e64; NOVALU[0] = opt.novalu; DOT2[0] = opt.dot2; SWAP[0] = opt.swap
    m = gen_main(opt)
    out = HEADER
    if opt.split:
        out += f"; @launch kernel={MAIN} grid=(256,1,1) block=(512,1,1) lds={HST + 32768}\n"
        out += f"; @launch kernel={ST2} grid=(256,1,1) block=(512,1,1) lds={HST + 32*ZP}\n"
    else:
        out += f"; @launch grid=(256,1,1) block=(512,1,1) lds={LDS_TOTAL}\n"
    out += '.amdgcn_target "amdgcn-amd-amdhsa--gfx950"\n.text\n'
    out += m
    out += '.section .rodata,"a"\n.p2align 6\n' + kd(MAIN, 251 if opt.codepf else NV + (2 if (opt.cstamps or opt.dstamps) else 0))
    if opt.split: out += ".p2align 6\n" + kd(ST2, 176)
    open(opt.o, "w").write(out)

if __name__ == "__main__":
    main()
```

```python
import sys, argparse

MAIN = "standalone__autoregressive_conv_wavenet__speech_kernel"

XROWG = 19
XARR = 152 * 64
XBUF = 32768
WRING = 65536
WSLOT = 8192
NSLOT = 8
HST = 131072
LDS_TOTAL = 163840
ZP = 528
WS_XIMG = 8 << 20
WS_BYTES = 16 << 20
MODE_LDS = 30720
STAMP_OFF = 16 << 20
WS_FLAGS = 17 << 20

class Asm:
    def __init__(self): self.lines = []
    def __call__(self, s): self.lines.append("    " + s)
    def label(self, s): self.lines.append(s + ":")
    def raw(self, s): self.lines.append(s)
    def text(self): return "\n".join(self.lines) + "\n"
class Null:
    def __call__(self, s): pass
    def label(self, s): pass
    def raw(self, s): pass

def vr(b, n=4): return f"v[{b}:{b+n-1}]"
def rng(b, n): return list(range(b, b + n))

V_XA0, V_XA1, V_XA2, V_WA = 1, 2, 3, 4
TMP = [8, 12]
WSET = {0: 16, 1: 28, 2: 232}
WIN = {"D1": 40, "D2": 72, "X0": 104}
ARR = {"D1": 0, "D2": 1, "X0": 2}
ACC = {"Q1": 136, "Q2": 168, "Q0": 200}
NV = 244

def wset(a):
    a %= 16
    return WSET[2] if a == 0 else WSET[a & 1]

class LdsTracker:
    def __init__(self): self.out = []
    def issue(self, regs): self.out.append(set(regs))
    def need(self, regs):
        regs = set(regs); p = -1
        for i, d in enumerate(self.out):
            if d & regs: p = i
        if p < 0: return None
        n = min(len(self.out) - p - 1, 15)
        self.out = self.out[len(self.out) - n:] if n > 0 else []
        return n
    def waitall(self): self.out = []

def x_read(arr, idx0, dst, nxt=False):
    q0, mp = idx0 >> 3, idx0 & 7
    areg = V_XA2 if nxt else (V_XA0 if q0 == 0 else V_XA1)
    assert (q0 == 2) if nxt else (q0 in (0, 1))
    off = ARR[arr] * XARR + (mp * XROWG + q0) * 64
    return ("lds", f"ds_read_b128 {vr(dst)}, v{areg} offset:{off}", rng(dst, 4), [])

def w_read(slot, tile, dst):
    off = (slot % NSLOT) * WSLOT + tile * 4096
    return [("lds", f"ds_read_b64_tr_b16 {vr(dst,2)}, v{V_WA} offset:{off}", rng(dst, 2), []),
            ("lds", f"ds_read_b64_tr_b16 {vr(dst+2,2)}, v{V_WA} offset:{off+512}", rng(dst + 2, 2), [])]

E64 = [False]
NOVALU = [False]
ONEWAIT = [False]
DOT2 = [False]
SWAP = [False]
def ws_valu(base):
    ops = []
    if NOVALU[0]: return ops
    if DOT2[0]:
        for d0 in (0, 2):
            seq = []
            for d in (d0, d0 + 1):
                o, e = base + d, base + 4 + d
                t = TMP[d & 1]
                seq.append([("valu", f"v_dot2_f32_bf16 v{t}, v{o}, s91, 0", [], [o]),
                            ("valu", f"v_dot2_f32_bf16 v{t+1}, v{o}, s92, 0", [], [o]),
                            ("valu", f"v_dot2_f32_bf16 v{t}, v{e}, s91, v{t}", [], [e]),
                            ("valu", f"v_dot2_f32_bf16 v{t+1}, v{e}, s92, v{t+1}", [], [e]),
                            ("valu", f"v_cvt_pk_bf16_f32 v{base+8+d}, v{t}, v{t+1}", [], [])])
            a_, b_ = seq
            ops += [a_[0], a_[1], a_[2], a_[3], b_[0], b_[1], b_[2], b_[3], a_[4], ("valu", "s_nop 0", [], []), b_[4]] if d0 == 2 else [a_[0], a_[1], a_[2], a_[3], b_[0], b_[1], b_[2], b_[3], a_[4]]
            if d0 == 0: pend = b_[4]
            else: ops.insert(len(ops) - 11 + 3, pend)
        return ops
    for d in range(4):
        o, e, s = base + d, base + 4 + d, base + 8 + d
        t = TMP[d & 1]
        x = "_e64" if E64[0] else ""
        ops += [("valu", f"v_lshlrev_b32{x} v{t}, 16, v{o}", [], [o]),
                ("valu", f"v_lshlrev_b32{x} v{t+1}, 16, v{e}", [], [e]),
                ("valu", f"v_and_b32{x} v{t+2}, s36, v{o}", [], [o]),
                ("valu", f"v_and_b32{x} v{t+3}, s36, v{e}", [], [e]),
                ("valu", f"v_add_f32{x} v{t}, v{t}, v{t+1}", [], []),
                ("valu", f"v_add_f32{x} v{t+2}, v{t+2}, v{t+3}", [], []),
                ("valu", f"v_cvt_pk_bf16_f32 v{s}, v{t}, v{t+2}", [], [])]
    if ONEWAIT[0]:
        k, tx, de, rd = ops[0]
        ops[0] = (k, tx, de, list(range(base, base + 8)))
    return ops

def gen_period(a, opt):
    cur = wset(a)
    if a <= 14: steps = [("Q1", cur + 0, "D1"), ("Q2", cur + 4, "D2"), ("Q0", cur + 8, "X0")]
    else: steps = [("Q2", cur + 8, "D2"), ("Q0", cur + 8, "X0")]
    ng = 8 * len(steps)
    fill = [[] for _ in range(ng)]
    mf = []
    last = {"D1": 14, "D2": 15, "X0": 15}
    for si, (q, wreg, arr) in enumerate(steps):
        for k in range(8):
            m = 7 - k
            sl = (m - a) % 8
            b = WIN[arr] + 4 * sl
            acc = ACC[q] + 4 * m
            if SWAP[0]: mf.append(("mfma", f"v_mfma_f32_16x16x32_bf16 {vr(acc)}, {vr(b)}, {vr(wreg)}, {vr(acc)}", [], rng(wreg, 4) + rng(b, 4)))
            else: mf.append(("mfma", f"v_mfma_f32_16x16x32_bf16 {vr(acc)}, {vr(wreg)}, {vr(b)}, {vr(acc)}", [], rng(wreg, 4) + rng(b, 4)))
            g = 8 * si + k
            if a == last[arr]: fill[g].append(x_read(arr, 16 + sl, b, nxt=True))
            elif k == 0: fill[g].append(x_read(arr, 15 - a, b))
    def place(ops, gaps):
        for o, g in zip(ops, gaps): fill[g].append(o)
    if a <= 12:
        nb = wset(a + 2)
        place(w_read(a + 2, 0, nb + 0), opt.wo_gaps)
        place(w_read(a + 2, 1, nb + 4), opt.we_gaps)
    elif a == 14:
        nb = wset(0)
        place(w_read(16, 0, nb + 0), [0, 1])
        place(w_read(16, 1, nb + 4), [2, 3])
        place(w_read(15, 1, wset(15) + 8), [4, 5])
    elif a == 15:
        nb = wset(1)
        place(w_read(17, 0, nb + 0), [1, 3])
        place(w_read(17, 1, nb + 4), [9, 11])
    if a == 2: fill[12].append(("lds", "ds_read_b64 v[246:247], v248", [246, 247], []))
    valu = []; g0 = 0
    if a <= 13: valu = ws_valu(wset(a + 1)); g0 = opt.vstart
    elif a == 14: valu = ws_valu(wset(0)); g0 = 9
    if a == 0: valu = [("valu", f"v_xor_b32 v{V_XA2}, s37, v{V_XA2}", [], [])] + valu
    if a == 15:
        fill[12].append(("valu", f"v_xor_b32 v{V_XA0}, s37, v{V_XA0}", [], []))
        fill[13].append(("valu", f"v_xor_b32 v{V_XA1}, s37, v{V_XA1}", [], []))
    if valu:
        gaps = list(range(g0, ng)); n = len(valu)
        cap = {g: (max(0, opt.cap - len(fill[g])) if not (opt.ldsalone and fill[g]) else 0) for g in gaps}
        if opt.g0free and 0 in cap: cap[0] = 0
        if sum(cap.values()) < n:
            for g in gaps: cap[g] = max(cap[g], 1)
        assert sum(cap.values()) >= n
        tot = sum(cap.values()); i = 0; accq = 0.0
        for g in gaps:
            accq += cap[g] * n / tot
            take = min(int(accq + 1e-9) - i, cap[g])
            for _ in range(take):
                fill[g].append(valu[i]); i += 1
        while i < n:
            fill[ng - 1].append(valu[i]); i += 1
    out = []
    for g in range(ng):
        out.append(mf[g]); out += fill[g]
    return out

def emit_with_waits(A, ops, tr):
    for kind, text, dests, reads in ops:
        if reads:
            n = tr.need(reads)
            if n is not None: A(f"s_waitcnt lgkmcnt({n})")
        if kind == "label": A.label(text)
        else: A(text)
        if kind == "lds": tr.issue(dests)

NST = 6
def dstamp(A, k, opt):
    if not opt.dstamps: return
    A("s_memtime s[86:87]")
    A("s_waitcnt lgkmcnt(0)")
    A(f"v_writelane_b32 v245, s86, {k}")
def stamp(A, idx, opt):
    if not opt.stamps: return
    A(f"s_memtime s[{60+4*idx}:{61+4*idx}]")
    A(f"s_memrealtime s[{62+4*idx}:{63+4*idx}]")

XO, XW = 110, 120
RAW = 16
PT = 88
PD1, PD2 = 100, 104
NPT = 5
BIG = 0x40000000

def pair_addr(A):
    A("v_lshrrev_b32 v11, 3, v5")
    A("v_and_b32 v12, 7, v5")
    A("s_lshl_b32 s44, s33, 9")
    A("s_lshl_b32 s42, s30, 3")
    A("s_add_u32 s42, s42, s31")
    A("s_sub_u32 s42, s42, 16")
    A("v_add_u32 v14, s42, v11")
    A("v_lshl_add_u32 v8, v12, 4, s44")
    A("v_lshl_add_u32 v15, v14, 11, v8")
    A("v_cmp_gt_i32 s[46:47], 0, v14")
    A("v_cmp_gt_i32 s[48:49], 1, v14")
    A("v_add_u32 v113, 0x10000, v15")
    A("v_add_u32 v10, 0xfffffc00, v15")
    A("v_mov_b32 v9, 0x40000000")
    A("v_add_u32 v112, 0xfc00, v15")
    A("v_cndmask_b32 v111, v15, v9, s[46:47]")
    A("v_cndmask_b32 v110, v10, v9, s[48:49]")
    A("v_and_b32 v7, 3, v12")
    A("v_lshrrev_b32 v6, 2, v12")
    A("v_lshlrev_b32 v6, 15, v6")
    A(f"v_mul_u32_u24 v10, {XROWG*64}, v11")
    A("s_lshl_b32 s41, s30, 6")
    A("v_add3_u32 v6, v6, v10, s41")
    A("v_lshl_add_u32 v120, v7, 4, v6")
    A("v_xor_b32 v7, 2, v7")
    A("v_lshl_add_u32 v121, v7, 4, v6")
    A("s_cmp_ge_u32 s30, 2")
    A(f"s_cselect_b32 s41, 0x40000000, {3*65536}")

def pair_loads(A):
    for t in range(NPT):
        b = RAW + 12 * t
        va, vb = (110, 111) if t == 0 else (112, 113)
        so = {0: "0", 1: "0", 2: "s42", 3: "s43", 4: "s41"}[t]
        if t == 2: A("s_mov_b32 s42, 0x10000")
        if t == 3: A("s_mov_b32 s43, 0x20000")
        A(f"buffer_load_dwordx4 {vr(b)}, v{va}, s[16:19], {so} offen")
        A(f"buffer_load_dwordx4 {vr(b+4)}, v{vb}, s[16:19], {so} offen")
        A(f"buffer_load_dwordx4 {vr(b+8)}, v{vb}, s[16:19], {so} offen offset:1024")

def job_loads(A, raw, offs, n):
    for t in range(n):
        b = raw + 12 * t
        A(f"buffer_load_dwordx4 {vr(b)}, v{offs+2*t}, s[16:19], 0 offen")
        A(f"buffer_load_dwordx4 {vr(b+4)}, v{offs+1+2*t}, s[16:19], 0 offen")
        A(f"buffer_load_dwordx4 {vr(b+8)}, v{offs+1+2*t}, s[16:19], 0 offen offset:1024")

def job_valu(A, b, pd1, pd2, ds=range(4)):
    for d in ds:
        m_, x0, x1 = b + d, b + 4 + d, b + 8 + d
        T = PT + 6 * (d & 1)
        A(f"v_lshlrev_b32 v{T}, 16, v{x0}")
        A(f"v_and_b32 v{T+1}, s36, v{x0}")
        A(f"v_lshlrev_b32 v{T+2}, 16, v{x1}")
        A(f"v_and_b32 v{T+3}, s36, v{x1}")
        A(f"v_lshlrev_b32 v{T+4}, 16, v{m_}")
        A(f"v_and_b32 v{T+5}, s36, v{m_}")
        A(f"v_sub_f32 v{T+2}, v{T+2}, v{T}")
        A(f"v_sub_f32 v{T+3}, v{T+3}, v{T+1}")
        A(f"v_sub_f32 v{T+4}, v{T+4}, v{T}")
        A(f"v_sub_f32 v{T+5}, v{T+5}, v{T+1}")
        A(f"v_cvt_pk_bf16_f32 v{pd2+d}, v{T+2}, v{T+3}")
        A(f"v_cvt_pk_bf16_f32 v{pd1+d}, v{T+4}, v{T+5}")

def pair_compute(A):
    for t in range(NPT):
        if t == NPT - 1:
            A("s_cmp_ge_u32 s30, 2")
            A("s_cbranch_scc1 L_pj")
        A(f"s_waitcnt vmcnt({3 * (NPT - 1 - t)})")
        b = RAW + 12 * t
        pd1, pd2 = PD1 + 28 * (t & 1), PD2 + 28 * (t & 1)
        job_valu(A, b, pd1, pd2)
        A(f"ds_write_b128 v{120 + (t & 1)}, {vr(pd1)} offset:{0*XARR + t*256}")
        A(f"ds_write_b128 v{120 + (t & 1)}, {vr(pd2)} offset:{1*XARR + t*256}")
        A(f"ds_write_b128 v{120 + (t & 1)}, {vr(b+4)} offset:{2*XARR + t*256}")
    A.label("L_pj")

RAW2, SO, SS = 16, 64, 72
def shared_addr(A):
    A("v_mov_b32 v83, 0x40000000")
    A("s_lshl_b32 s45, s33, 9")
    A("s_add_u32 s45, s45, 128")
    A("s_mul_i32 s46, s28, %d" % (XROWG * 64))
    A("s_lshl_b32 s44, s29, 18")
    A("s_add_u32 s46, s46, s44")
    A(f"s_add_u32 s46, s46, {WS_XIMG + 2*32768}")
    A("s_add_u32 s44, s31, s28")
    A("s_sub_u32 s44, s44, 16")
    A("s_movk_i32 s55, 911")
    A("v_and_b32 v10, 3, v5")
    for k in range(4):
        A(f"s_add_u32 s41, s40, {2*k}")
        A("s_lshl_b32 s41, s41, 6")
        A("v_add_u32 v11, s41, v5")
        A("v_mul_u32_u24 v12, s55, v11")
        A("v_lshrrev_b32 v12, 16, v12")
        A("v_mul_u32_u24 v13, 72, v12")
        A("v_sub_u32 v13, v11, v13")
        A("v_lshrrev_b32 v13, 2, v13")
        A("v_lshl_add_u32 v14, v13, 3, s44")
        A("v_lshlrev_b32 v15, 11, v14")
        A("v_lshl_add_u32 v15, v12, 6, v15")
        A("v_lshl_add_u32 v15, v10, 4, v15")
        A("v_add_u32 v15, s45, v15")
        A("v_add_u32 v82, 0xfffffc00, v15")
        A("v_cmp_gt_i32 s[48:49], 0, v14")
        A("v_cmp_gt_i32 s[50:51], 1, v14")
        A("v_cmp_le_u32 vcc, 0x1b0, v11")
        A("v_lshrrev_b32 v14, 1, v13")
        A("v_and_b32 v14, 2, v14")
        A("s_or_b64 s[48:49], s[48:49], vcc")
        A("s_or_b64 s[50:51], s[50:51], vcc")
        A("v_xor_b32 v14, v14, v10")
        A(f"v_cndmask_b32 v{SO+1+2*k}, v15, v83, s[48:49]")
        A(f"v_cndmask_b32 v{SO+2*k}, v82, v83, s[50:51]")
        A("v_lshlrev_b32 v14, 4, v14")
        A("v_lshl_add_u32 v14, v13, 6, v14")
        A("v_lshl_add_u32 v14, v12, 15, v14")
        A("v_add_u32 v14, s46, v14")
        A(f"v_cndmask_b32 v{SS+k}, v14, v83, vcc")

def wdma_addr(A):
    A("v_lshrrev_b32 v6, 3, v5")
    A("s_lshl_b32 s44, s40, 3")
    A("v_add_u32 v6, s44, v6")
    A("v_and_b32 v7, 7, v5")
    A("v_lshrrev_b32 v8, 1, v6")
    A("v_and_b32 v8, 1, v8")
    A("v_lshrrev_b32 v9, 2, v6")
    A("v_and_b32 v9, 2, v9")
    A("v_or_b32 v8, v9, v8")
    A("v_lshrrev_b32 v9, 1, v7")
    A("v_xor_b32 v8, v8, v9")
    A("v_lshlrev_b32 v8, 5, v8")
    A("v_and_b32 v9, 1, v7")
    A("v_lshl_add_u32 v8, v9, 4, v8")
    A("v_lshl_add_u32 v8, v6, 10, v8")
    A("s_lshl_b32 s44, s28, 7")
    A("v_add_u32 v1, s44, v8")
    A("s_lshl_b32 s42, s40, 10")
    A(f"s_add_u32 s42, s42, {WRING}")

def dma_text(sig, creg):
    out = []
    a = sig & 15
    for tile, tap in ((0, min(2 * a + 1, 30)), (1, 2 * a)):
        out.append(f"s_add_u32 m0, s42, {(sig % NSLOT) * WSLOT + tile * 4096}")
        if creg is None: out.append(f"s_mov_b32 s45, {tap * 262144}")
        else: out.append(f"s_add_u32 s45, {creg}, {tap * 262144}")
        out.append(f"buffer_load_dwordx4 v1, s[20:23], s45 offen lds")
    return out

_gid = [0]
def guard_begin(A, opt):
    if not opt.tdry: return None
    _gid[0] += 1
    lab = f"L_g{_gid[0]}"
    A(f"s_cbranch_execz {lab}")
    return lab
def guard_end(A, lab):
    if lab: A.label(lab)
def gbar(A, opt):
    g = guard_begin(A, opt); A("s_barrier"); guard_end(A, g)

def gen_main(opt):
    A = Asm()
    A.raw(f".globl {MAIN}\n.p2align 8\n.type {MAIN},@function\n{MAIN}:")
    A("s_cmp_ge_u32 s2, 256")
    A("s_cbranch_scc1 L_end")
    A("s_load_dwordx4 s[4:7], s[0:1], 0")
    A("s_load_dwordx4 s[8:11], s[0:1], 16")
    A("s_load_dwordx4 s[12:15], s[0:1], 32")
    if opt.codepf:
        A("s_getpc_b64 s[44:45]")
        A.label("L_pcref")
        A(f"s_sub_u32 s44, s44, L_pcref-{MAIN}")
        A("s_subb_u32 s45, s45, 0")
        A("v_lshlrev_b32 v11, 6, v0")
        A(f"v_min_u32 v11, L_end-{MAIN}, v11")
        A("global_load_dword v250, v11, s[44:45]")
    stamp(A, 0, opt)
    dstamp(A, 0, opt)
    A("v_lshrrev_b32 v1, 6, v0")
    A("v_and_b32 v5, 63, v0")
    A("v_readfirstlane_b32 s30, v1")
    if opt.map == "n8":
        A("s_and_b32 s28, s2, 7")
        A("s_lshr_b32 s29, s2, 3")
    elif opt.map == "m4":
        A("s_and_b32 s29, s2, 7")
        A("s_lshl_b32 s29, s29, 2")
        A("s_lshr_b32 s28, s2, 3")
        A("s_lshr_b32 s35, s28, 3")
        A("s_add_u32 s29, s29, s35")
        A("s_and_b32 s28, s28, 7")
    else:
        A("s_lshr_b32 s35, s2, 3")
        A("s_and_b32 s28, s2, 1")
        A("s_lshl_b32 s28, s28, 2")
        A("s_and_b32 s29, s35, 3")
        A("s_add_u32 s28, s28, s29")
        A("s_lshr_b32 s29, s2, 1")
        A("s_and_b32 s29, s29, 3")
        A("s_lshl_b32 s29, s29, 3")
        A("s_lshr_b32 s35, s35, 2")
        A("s_add_u32 s29, s29, s35")
    A("s_and_b32 s31, s29, 7")
    A("s_lshl_b32 s31, s31, 7")
    A("s_lshr_b32 s32, s29, 3")
    A("s_and_b32 s33, s32, 1")
    A("s_lshr_b32 s34, s32, 1")
    A("v_mov_b32 v84, 0")
    A("v_mov_b32 v85, 0")
    A("s_mov_b32 s36, 0xffff0000")
    A("s_mov_b32 s91, 0x00003f80")
    A("s_mov_b32 s92, 0x3f800000")
    A(f"s_mov_b32 s37, {XBUF}")
    A("s_mul_i32 s35, s34, 2048000")
    A("s_and_b32 s40, s30, 3")
    A("s_cmp_ge_u32 s30, 4")
    A("s_cbranch_scc1 L_prod")

    pair_addr(A)
    dstamp(A, 1, opt)
    A("s_waitcnt lgkmcnt(0)")
    A("s_add_u32 s16, s4, s35")
    A("s_addc_u32 s17, s5, 0")
    A("s_mov_b32 s18, 2048000")
    A("s_mov_b32 s19, 0x20000")
    pair_loads(A)
    A("s_mov_b32 s20, s6")
    A("s_mov_b32 s21, s7")
    A(f"s_mov_b32 s22, {31*256*512*2}")
    A("s_mov_b32 s23, 0x20000")
    A("s_mov_b32 s24, s14")
    A("s_mov_b32 s25, s15")
    A(f"s_mov_b32 s26, {WS_BYTES}")
    A("s_mov_b32 s27, 0x20000")
    dstamp(A, 2, opt)
    for q in ("Q1", "Q2", "Q0"):
        for i in range(32): A(f"v_mov_b32 v{ACC[q]+i}, 0")
    dstamp(A, 3, opt)
    if opt.dstamps:
        A(f"s_waitcnt vmcnt({3*(NPT-1)})")
        dstamp(A, 4, opt)
    pair_compute(A)
    dstamp(A, 5, opt)
    A("v_and_b32 v6, 15, v5")
    A("v_lshrrev_b32 v7, 4, v5")
    for q0, reg in ((0, V_XA0), (1, V_XA1), (2, V_XA2)):
        A(f"v_add_u32 v8, {q0}, v6")
        A("v_lshrrev_b32 v8, 1, v8")
        A("v_and_b32 v8, 2, v8")
        A("v_xor_b32 v8, v8, v7")
        A("v_lshlrev_b32 v8, 4, v8")
        A(f"v_lshl_add_u32 v{reg}, v6, 6, v8")
    A("v_lshrrev_b32 v8, 2, v6")
    A("v_and_b32 v9, 3, v6")
    A("v_lshrrev_b32 v10, 1, v8")
    A("v_and_b32 v10, 1, v10")
    A("v_and_b32 v11, 1, v7")
    A("v_lshl_or_b32 v10, v11, 1, v10")
    A("v_xor_b32 v10, s30, v10")
    A("v_lshlrev_b32 v10, 5, v10")
    A("v_lshl_add_u32 v11, v7, 3, v8")
    A("v_lshl_add_u32 v10, v11, 7, v10")
    A("v_lshl_add_u32 v10, v9, 3, v10")
    A(f"v_add_u32 v{V_WA}, {WRING}, v10")
    A(f"v_mov_b32 v248, {MODE_LDS}")
    A("s_waitcnt vmcnt(0) lgkmcnt(0)")
    dstamp(A, 6, opt)
    A("s_barrier")
    dstamp(A, 7, opt)
    stamp(A, 1, opt)
    tr = LdsTracker()
    pro = w_read(0, 0, wset(0)) + w_read(0, 1, wset(0) + 4)
    for jj in range(7, -1, -1): pro.append(x_read("D1", 16 + jj, WIN["D1"] + 4 * jj, nxt=True))
    pro += w_read(1, 0, wset(1)) + w_read(1, 1, wset(1) + 4)
    for arr in ("D2", "X0"):
        for jj in range(7, -1, -1): pro.append(x_read(arr, 16 + jj, WIN[arr] + 4 * jj, nxt=True))
    pro += ws_valu(wset(0))
    emit_with_waits(A, pro, tr)
    A("s_waitcnt lgkmcnt(0)")
    dstamp(A, 8, opt)
    tr.waitall()
    A("s_mov_b32 s38, 8")
    if opt.cstamps:
        A("s_memtime s[84:85]")
        A("s_waitcnt lgkmcnt(0)")
    DRY_EXIT = {5: "L_wdry_ret", 10: "L_wdry_ret", 13: "L_adry_ret"}
    def body(AA, tr):
        for a in range(16):
            if opt.dry:
                if a in DRY_EXIT: AA(f"s_cbranch_execz {DRY_EXIT[a]}")
                AA.label(f"L_cp{a}")
            if a == 15:
                AA("s_waitcnt lgkmcnt(0)"); tr.waitall()
            ops = gen_period(a, opt)
            bar = [("bar", "s_barrier", [], [])]
            if opt.dry: bar = [("bar", f"s_cbranch_execz L_nb{a}", [], []), ("bar", "s_barrier", [], []), ("label", f"L_nb{a}", [], [])]
            if opt.bar_after:
                k = opt.bar_after
                mi = [i for i, o in enumerate(ops) if o[0] == "mfma"]
                moved = [o for i, o in enumerate(ops[:mi[k-1]+1]) if o[0] == "lds"]
                keepv = [(i, o) for i, o in enumerate(ops[:mi[k-1]+1]) if o[0] != "lds"]
                ops = [o for i, o in keepv] + bar + moved + ops[mi[k-1]+1:]
            else:
                ops = bar + ops
            emit_with_waits(AA, ops, tr)
        if opt.dry: AA("s_cbranch_execz L_adry_ret")
    body(Null(), tr)
    if opt.align: A.raw(".p2align 6")
    A.label("L_cloop")
    body(A, tr)
    if opt.cstamps:
        A("s_mov_b32 m0, s38")
        A("s_nop 0")
        A("v_writelane_b32 v244, s84, m0")
        A("s_memtime s[84:85]")
    A("s_sub_u32 s38, s38, 1")
    A("s_cmp_lg_u32 s38, 0")
    A("s_cbranch_scc1 L_cloop")
    if opt.cstamps:
        A("s_waitcnt lgkmcnt(0)")
        A("v_writelane_b32 v244, s84, 0")
    A.label("L_cepi")
    stamp(A, 2, opt)
    dstamp(A, 50, opt)
    A("v_and_b32 v6, 15, v5")
    A("v_lshrrev_b32 v7, 4, v5")
    A("s_lshl_b32 s39, s30, 2")
    A("v_add_u32 v8, s39, v7")
    A("v_and_b32 v9, 7, v6")
    A("v_lshlrev_b32 v9, 1, v9")
    A("v_xor_b32 v8, v8, v9")
    A("v_lshlrev_b32 v8, 3, v8")
    A("v_lshl_add_u32 v1, v6, 7, v8")
    A(f"v_add_u32 v1, {HST}, v1")
    A("s_nop 4")
    A("s_waitcnt lgkmcnt(0)")
    dstamp(A, 40, opt)
    for hb in range(2):
        blocks = [(m, q) for m in range(4 * hb, 4 * hb + 4) for q in range(2)]
        for (m, q) in blocks:
            a0 = ACC["Q0"] + 4 * m; a1 = ACC["Q1" if q == 0 else "Q2"] + 4 * m
            if opt.epk:
                A(f"v_pk_add_f32 {vr(a1,2)}, {vr(a0,2)}, {vr(a1,2)}")
                A(f"v_pk_add_f32 {vr(a1+2,2)}, {vr(a0+2,2)}, {vr(a1+2,2)}")
            else:
                for i in range(4): A(f"v_add_f32 v{a1+i}, v{a0+i}, v{a1+i}")
        for k, (m, q) in enumerate(blocks):
            a1 = ACC["Q1" if q == 0 else "Q2"] + 4 * m
            t = 8 + 2 * k + 16 * hb
            A(f"v_cvt_pk_bf16_f32 v{t}, v{a1}, v{a1+1}")
            A(f"v_cvt_pk_bf16_f32 v{t+1}, v{a1+2}, v{a1+3}")
        for k, (m, q) in enumerate(blocks):
            t = 8 + 2 * k + 16 * hb
            A(f"ds_write_b64 v1, {vr(t,2)} offset:{(2*m+q)*16*128}")
        if hb == 0 and opt.half2:
            dstamp(A, 41, opt)
            A("s_waitcnt lgkmcnt(0)")
            dstamp(A, 42, opt)
            gbar(A, opt)
            dstamp(A, 43, opt)
    A("s_waitcnt lgkmcnt(0)")
    dstamp(A, 51, opt)
    if opt.tdry: A("s_cbranch_execz L_store_p")
    A("s_branch L_store")

    srd_x = ["s_add_u32 s16, s4, s35", "s_addc_u32 s17, s5, 0", "s_mov_b32 s18, 2048000", "s_mov_b32 s19, 0x20000"]
    srd_w = ["s_mov_b32 s20, s6", "s_mov_b32 s21, s7", f"s_mov_b32 s22, {31*256*512*2}", "s_mov_b32 s23, 0x20000"]
    srd_s = ["s_mov_b32 s24, s14", "s_mov_b32 s25, s15", f"s_mov_b32 s26, {WS_BYTES}", "s_mov_b32 s27, 0x20000"]
    class Role:
        def __init__(self): self.vm = []; self.waits = {}; self.mode = "sim"; self.E = Null()
        def cnt(self, tag):
            l = [i for i, x in enumerate(self.vm) if x == tag]
            if not l: return 63
            return len(self.vm) - max(l) - 1
        def site(self, key, tag, extra=""):
            if self.mode == "sim": self.waits[key] = min(self.waits.get(key, 63), self.cnt(tag), 63)
            else: self.E(f"s_waitcnt vmcnt({self.waits[key]}){extra}")
    def wodma(R, i0):
        R.E(f"s_add_u32 m0, s56, {i0*1024}")
        R.E(f"s_add_u32 s45, s56, {i0*1024}")
        R.E(f"buffer_load_dwordx4 v8, s[52:55], s45 offen lds")
        R.vm.append("wo")
    def wo_setup(E):
        for l in ["s_mov_b32 s52, s8", "s_mov_b32 s53, s9", "s_mov_b32 s54, 131072", "s_mov_b32 s55, 0x20000",
                  "s_and_b32 s40, s30, 3", "s_lshl_b32 s56, s40, 10",
                  "v_lshrrev_b32 v12, 5, v5", "s_and_b32 s44, s40, 1", "s_lshl_b32 s44, s44, 1", "v_add_u32 v13, s44, v12",
                  "v_lshlrev_b32 v13, 2, v13", "v_and_b32 v8, 31, v5", "v_xor_b32 v8, v8, v13", "v_lshlrev_b32 v8, 4, v8",
                  "v_lshl_add_u32 v8, v12, 9, v8"]: E(l)
    def wo_sched(R, a):
        if opt.split: return
        if a < 8: wodma(R, 4 * a)
        else:
            for k in range(2): wodma(R, 64 + 8 * (a - 8) + 4 * k)
        if a == 15:
            for k in range(8): wodma(R, 32 + 4 * k)

    A.label("L_prod")
    A("s_cmp_ge_u32 s30, 6")
    A("s_cbranch_scc1 L_aux")
    RW = Role()
    def wdma(R, sig, creg):
        a = sig & 15
        for tile, tap in ((0, min(2 * a + 1, 30)), (1, 2 * a)):
            for h in range(2):
                R.E(f"s_add_u32 m0, s42, {(sig % NSLOT) * WSLOT + tile * 4096 + h * 2048}")
                if creg is None: R.E(f"s_mov_b32 s45, {tap * 262144 + h * 16384}")
                else: R.E(f"s_add_u32 s45, {creg}, {tap * 262144 + h * 16384}")
                R.E(f"buffer_load_dwordx4 v1, s[20:23], s45 offen lds")
                R.vm.append(("w", sig))
    def w_prologue(R):
        E = R.E
        for sg in range(opt.w_early): wdma(R, sg, None)
        if opt.tdry and R.mode == "emit":
            A("s_mov_b32 s94, 1")
            A("s_mov_b64 exec, 0")
            A("s_cmp_eq_u32 s30, 4")
            A("s_cbranch_scc1 L_cepi")
            A("s_branch L_hst")
            A.label("L_tdry_ret")
            A("s_mov_b64 exec, -1")
        E("s_mov_b32 s50, 0"); E("s_mov_b32 s51, 32768")
        if opt.dry and R.mode == "emit":
            A("s_mov_b64 exec, 0")
            A("s_cmp_eq_u32 s30, 4")
            A("s_cbranch_scc1 L_cp0")
            A("s_branch L_cp5")
            A.label("L_wdry_ret")
            A("s_mov_b64 exec, -1")
        R.site(("p1",), ("w", 1))
        if R.mode == "emit": dstamp(A, 6, opt)
        E("s_barrier")
        if R.mode == "emit": dstamp(A, 7, opt)
        for sg in range(opt.w_early, 8): wdma(R, sg, None)
        R.site(("p2",), ("w", 2))
        if R.mode == "emit": dstamp(A, 9, opt)
    def w_body(R, kind, c):
        E = R.E
        for a in range(16):
            s = 16 * c + a
            if kind == "first" and R.mode == "emit": dstamp(A, 32 + a, opt)
            E("s_barrier")
            if kind == "first" and R.mode == "emit": dstamp(A, 16 + a, opt)
            sig = s + 8
            if sig < 128: wdma(R, sig, "s51" if a >= 8 else "s50")
            if kind == "last": wo_sched(R, a)
            if a == 15 and kind != "last":
                E("s_mov_b32 s50, s51"); E("s_add_u32 s51, s51, 32768")
            if s + 3 < 128: R.site(("w", kind, a), ("w", s + 3))
    def w_all(R, loop):
        w_prologue(R)
        w_body(R, "first", 0)
        if loop:
            A("s_mov_b32 s38, 6"); A.label("L_wloop")
            w_body(R, "mid", 1)
            A("s_sub_u32 s38, s38, 1"); A("s_cmp_lg_u32 s38, 0"); A("s_cbranch_scc1 L_wloop")
        else:
            for c in range(1, 7): w_body(R, "mid", c)
        R.E(f"v_mov_b32 v13, {MODE_LDS}")
        R.E("ds_read_b32 v12, v13")
        R.E("s_waitcnt lgkmcnt(0)")
        R.E("v_readfirstlane_b32 s94, v12")
        wo_setup(R.E)
        w_body(R, "last", 7)
    wdma_addr(A)
    dstamp(A, 1, opt)
    A("s_waitcnt lgkmcnt(0)")
    for l in srd_w + srd_s + srd_x: A(l)
    if opt.pf0:
        A("v_and_b32 v11, 15, v5")
        A("s_lshl_b32 s44, s40, 4")
        A("v_add_u32 v11, s44, v11")
        A("v_lshlrev_b32 v11, 10, v11")
        A("s_lshl_b32 s44, s28, 7")
        A("v_add_u32 v11, s44, v11")
        A("s_mul_i32 s44, s29, 262144")
        A("buffer_load_dword v12, v11, s[20:23], s44 offen")
    if opt.ptouch:
        A("s_lshr_b32 s44, s2, 3")
        A("s_lshl_b32 s44, s44, 1")
        A("s_add_u32 s44, s44, s40")
        A("v_lshlrev_b32 v11, 16, v5")
        A("s_cmp_eq_u32 s44, 0"); A("s_cbranch_scc0 L_pt1")
        A("buffer_load_dword v12, v11, s[20:23], 0 offen"); A("s_branch L_ptd")
        A.label("L_pt1"); A("s_cmp_eq_u32 s44, 1"); A("s_cbranch_scc0 L_pt2")
        A("s_mov_b32 s45, 0x400000"); A("buffer_load_dword v12, v11, s[20:23], s45 offen"); A("s_branch L_ptd")
        A.label("L_pt2"); A("s_cmp_eq_u32 s44, 2"); A("s_cbranch_scc0 L_pt4")
        A("v_min_u32 v11, 0x3e7ffc, v11"); A("global_load_dword v12, v11, s[10:11]"); A("s_branch L_ptd")
        A.label("L_pt4"); A("s_cmp_eq_u32 s44, 3"); A("s_cbranch_scc0 L_ptd")
        A("v_min_u32 v11, 0x3e7ffc, v11"); A("global_load_dword v12, v11, s[4:5]")
        A.label("L_ptd")
    w_all(RW, False)
    RW.vm = []; RW.mode = "emit"; RW.E = A
    w_all(RW, True)
    A("s_branch L_store_p")

    A.label("L_aux")
    RA = Role()
    A("s_and_b32 s40, s30, 1")
    shared_addr(A)
    A("v_and_b32 v11, 15, v5")
    A("s_lshl_b32 s44, s40, 4")
    A("v_add_u32 v11, s44, v11")
    A("v_lshlrev_b32 v11, 10, v11")
    A("s_lshl_b32 s44, s28, 7")
    A("v_add_u32 v11, s44, v11")
    A("s_mul_i32 s44, s29, 262144")
    A("v_add_u32 v82, s44, v11")
    A("s_mov_b32 s90, 32768")
    A("s_and_b32 s44, s29, 15")
    A("s_lshl_b32 s44, s44, 1")
    A("s_add_u32 s44, s44, s40")
    A("s_lshl_b32 s44, s44, 5")
    A("v_and_b32 v83, 31, v5")
    A("v_add_u32 v83, s44, v83")
    A("v_lshlrev_b32 v83, 7, v83")
    A("v_lshlrev_b32 v2, 4, v5")
    A("s_lshl_b32 s56, s40, 10")
    A("s_lshl_b32 s57, s29, 18")
    A("s_add_u32 s57, s57, s56")
    A(f"s_add_u32 s57, s57, {WS_XIMG + 2*32768}")
    A("s_mov_b32 s58, s56")
    A("s_getreg_b32 s93, hwreg(HW_REG_XCC_ID)")
    A("s_and_b32 s93, s93, 15")
    A("v_mov_b32 v86, 0")
    A("s_lshl_b32 s59, s29, 3")
    A("s_add_u32 s59, s59, s28")
    A("s_lshl_b32 s59, s59, 7")
    A(f"s_add_u32 s59, s59, {WS_FLAGS}")
    A("v_mov_b32 v84, s59")
    A("v_and_b32 v85, 7, v5")
    A("s_lshl_b32 s59, s29, 10")
    A(f"s_add_u32 s59, s59, {WS_FLAGS}")
    A("v_lshl_add_u32 v85, v85, 7, s59")
    if opt.wtouch:
        A("v_and_b32 v11, 31, v5")
        A("v_lshlrev_b32 v11, 7, v11")
        A("s_lshl_b32 s44, s29, 18")
        A("s_lshl_b32 s45, s28, 12")
        A("s_add_u32 s44, s44, s45")
        A("s_lshl_b32 s45, s40, 17")
        A("s_add_u32 s44, s44, s45")
        A("v_add_u32 v76, s44, v11")
        A("s_mov_b32 s95, 0")
        A("v_lshrrev_b32 v11, 2, v5")
        A("v_lshlrev_b32 v11, 3, v11")
        A("s_add_u32 s44, s31, s28")
        A("v_add_u32 v11, s44, v11")
        A("v_lshlrev_b32 v11, 11, v11")
        A("v_and_b32 v12, 3, v5")
        A("v_lshl_add_u32 v11, v12, 7, v11")
        A("s_lshl_b32 s44, s33, 9")
        A("s_lshl_b32 s45, s40, 10")
        A("s_add_u32 s44, s44, s45")
        A("v_add_u32 v77, s44, v11")
    dstamp(A, 1, opt)
    A("s_waitcnt lgkmcnt(0)")
    for l in srd_x + srd_w + srd_s: A(l)
    def xdma(R, c1, k):
        R.E(f"s_add_u32 m0, s58, {k*2048}")
        R.E(f"s_add_u32 s45, s57, {k*2048}")
        R.E(f"buffer_load_dwordx4 v2, s[24:27], s45 offen {'' if opt.xplain else 'sc1 '}lds")
        R.vm.append(("x", c1))
    def spin(R, name, load, check, fail_branch):
        E = R.E
        E("s_mov_b32 s46, 0x100000")
        if R.mode == "emit": A.label(f"L_{name}spin")
        E("s_sleep 2"); E(load); E("s_waitcnt vmcnt(0)")
        for l in check[0]: E(l)
        E("s_sub_u32 s46, s46, 1"); E("s_cmp_eq_u32 s46, 0"); E(f"s_cbranch_scc1 L_{name}ok")
        for l in check[1]: E(l)
        E(f"{fail_branch} L_{name}spin")
        if R.mode == "emit": A.label(f"L_{name}ok")
    def xstores(R, t):
        E = R.E
        E(f"s_mov_b32 s45, {XARR}")
        E(f"s_mov_b32 s46, {2*XARR}")
        E(f"buffer_store_dwordx4 {vr(128 + 8*t)}, v{SS+t}, s[24:27], 0 offen sc1")
        E(f"buffer_store_dwordx4 {vr(132 + 8*t)}, v{SS+t}, s[24:27], s45 offen sc1")
        E(f"buffer_store_dwordx4 {vr(RAW2 + 12*t + 4)}, v{SS+t}, s[24:27], s46 offen sc1")
        R.vm.extend(["xs"] * 3)
    def a_prologue(R):
        E = R.E
        for t in range(4):
            b_ = RAW2 + 12 * t
            E(f"buffer_load_dwordx4 {vr(b_)}, v{SO+2*t}, s[16:19], 0 offen")
            E(f"buffer_load_dwordx4 {vr(b_+4)}, v{SO+1+2*t}, s[16:19], 0 offen")
            E(f"buffer_load_dwordx4 {vr(b_+8)}, v{SO+1+2*t}, s[16:19], 0 offen offset:1024")
            R.vm.extend([("x2", t)] * 3)
        if R.mode == "emit":
            for l in ["s_cmp_lg_u32 s2, 0", "s_cbranch_scc1 L_nononce", "s_cmp_lg_u32 s30, 6", "s_cbranch_scc1 L_nononce",
                      "s_memrealtime s[46:47]", "s_waitcnt lgkmcnt(0)", "s_and_b32 s46, s46, 0xfffffff0", "s_or_b32 s46, s46, 16", "v_mov_b32 v7, s46",
                      "s_mov_b64 exec, 1", "global_store_dword v86, v7, s[12:13] sc1", "s_mov_b64 exec, -1"]: A(l)
            A.label("L_nononce")
            dstamp(A, 3, opt)
            if opt.dry:
                A("s_mov_b64 exec, 0")
                A("s_cmp_eq_u32 s30, 6")
                A("s_cbranch_scc1 L_cp10")
                A("s_branch L_cp13")
                A.label("L_adry_ret")
                A("s_mov_b64 exec, -1")
        if R.mode == "emit": dstamp(A, 6, opt)
        E("s_barrier")
        if R.mode == "emit": dstamp(A, 7, opt)
        for t in range(opt.nwin):
            R.site(("x2", t), ("x2", t))
            if R.mode == "emit": job_valu(A, RAW2 + 12 * t, 128 + 8 * t, 132 + 8 * t)
        if R.mode == "emit": dstamp(A, 9, opt)
    def a_body(R, kind, c):
        E = R.E
        for a in range(16):
            if kind == "first" and R.mode == "emit": dstamp(A, 32 + a, opt)
            E("s_barrier")
            if kind == "first" and R.mode == "emit": dstamp(A, 16 + a, opt)
            if opt.prefetch and kind != "last" and a == opt.pf_a:
                E("buffer_load_dword v119, v82, s[20:23], s90 offen")
                E("s_add_u32 s90, s90, 32768")
                R.vm.append("pf")
            if opt.prefetch and kind == "first" and a == 12:
                E("global_load_dword v118, v83, s[8:9]")
                R.vm.append("pf")
            if kind == "first":
                rem = [(t, d) for t in range(opt.nwin, 4) for d in range(4)]
                for (t, d) in rem[2*a:2*a+2]:
                    if d == 0: R.site(("x2", t), ("x2", t))
                    if R.mode == "emit": job_valu(A, RAW2 + 12 * t, 128 + 8 * t, 132 + 8 * t, [d])
                st_at = {0: opt.st0, 1: opt.st0 + 2, 2: opt.st0 + 4, 3: opt.st0 + 6}
                for t in range(4):
                    if a == st_at[t]: xstores(R, t)
                if a == opt.sig_a - 2:
                    E("global_load_dword v87, v86, s[12:13] sc1")
                    R.vm.append("nonce")
                if a == opt.sig_a - 1:
                    R.site(("nonce",), "nonce")
                    E("v_readfirstlane_b32 s47, v87")
                    E("s_cmp_lg_u32 s47, 0")
                    E("s_cbranch_scc1 L_nok")
                    spin(R, "n", "global_load_dword v87, v86, s[12:13] sc1", (["v_readfirstlane_b32 s47, v87"], ["s_cmp_eq_u32 s47, 0"]), "s_cbranch_scc1")
                    R.site(("sig",), "xs")
                if a == opt.sig_a:
                    E("s_cmp_lg_u32 s30, 6")
                    E("s_cbranch_scc1 L_nosig")
                    E("s_or_b32 s44, s47, s93")
                    E("v_mov_b32 v11, s44")
                    E("s_mov_b64 exec, 1")
                    E("global_store_dword v84, v11, s[14:15] sc1")
                    E("s_mov_b64 exec, -1")
                    if R.mode == "emit": A.label("L_nosig")
                if a == opt.poll_a - 2:
                    E("global_load_dword v87, v85, s[14:15] sc1")
                    R.vm.append("poll")
                if a == opt.poll_a - 1:
                    R.site(("poll",), "poll")
                    E("v_and_b32 v12, -16, v87")
                    E("v_cmp_eq_u32 vcc, s47, v12")
                    E("s_nop 1")
                    E("s_cmp_eq_u64 vcc, -1")
                    E("s_cbranch_scc1 L_xok")
                    spin(R, "x", "global_load_dword v87, v85, s[14:15] sc1", (["v_and_b32 v12, -16, v87", "v_cmp_eq_u32 vcc, s47, v12"], ["s_cmp_eq_u64 vcc, -1"]), "s_cbranch_scc0")
                    E("s_or_b32 s44, s47, s93")
                    E("v_cmp_eq_u32 vcc, s44, v87")
                    E("s_mov_b32 s94, 0")
                    E("s_nop 0")
                    E("s_cmp_eq_u64 vcc, -1")
                    E("s_cselect_b32 s94, 1, 0")
                    if opt.slowmode: E("s_mov_b32 s94, 0")
                    E("v_mov_b32 v12, s94")
                    E("v_mov_b32 v13, s47")
                    E(f"v_mov_b32 v14, {MODE_LDS}")
                    E("ds_write_b64 v14, v[12:13]")
                    E("s_waitcnt lgkmcnt(0)")
            elif kind == "mid":
                if 1 <= a <= 8:
                    for k in range(2):
                        kk = 2 * (a - 1) + k
                        if kk < 15: xdma(R, c + 1, kk)
                if a == 13: R.site(("xl",), ("x", c + 1))
                if opt.otouch and a == 14:
                    E("s_cmp_lg_u32 s38, %d" % opt.otouch)
                    E("s_cbranch_scc1 L_noot")
                    E("s_add_u32 s60, s10, s35"); E("s_addc_u32 s61, s11, 0"); E("s_mov_b32 s62, 2048000"); E("s_mov_b32 s63, 0x20000")
                    E("buffer_load_dword v115, v77, s[60:63], 0 offen")
                    if R.mode == "emit": A.label("L_noot")
                if opt.wtouch and a in opt.wt_a:
                    E("s_cmp_gt_u32 s38, %d" % opt.wt_it)
                    E(f"s_cbranch_scc1 L_nowt{a}")
                    E("buffer_load_dword v117, v76, s[24:27], s95 offen")
                    E("s_add_u32 s95, s95, 32768")
                    if R.mode == "emit": A.label(f"L_nowt{a}")
                if a == 15:
                    E("s_add_u32 s57, s57, 32768")
                    E(f"s_xor_b32 s58, s58, {XBUF}")
            elif kind == "last":
                if opt.tailpf >= 0 and a == opt.tailpf and R.mode == "emit":
                    A("s_getpc_b64 s[44:45]")
                    A.label("L_pcref2")
                    A(f"s_sub_u32 s44, s44, L_pcref2-{MAIN}")
                    A("s_subb_u32 s45, s45, 0")
                    A("v_lshlrev_b32 v11, 6, v5")
                    A(f"v_add_u32 v12, L_cepi-{MAIN}, v11")
                    A(f"v_add_u32 v13, L_store_p-{MAIN}, v11")
                    A("s_cmp_eq_u32 s30, 6")
                    A("s_cselect_b64 vcc, -1, 0")
                    A("v_cndmask_b32 v11, v13, v12, vcc")
                    A(f"v_min_u32 v11, L_end-{MAIN}, v11")
                    A("global_load_dword v114, v11, s[44:45]")
                wo_sched(R, a)
    def a_all(R, loop):
        a_prologue(R)
        a_body(R, "first", 0)
        if loop:
            A("s_mov_b32 s38, 6"); A.label("L_aloop")
            a_body(R, "mid", 1)
            A("s_sub_u32 s38, s38, 1"); A("s_cmp_lg_u32 s38, 0"); A("s_cbranch_scc1 L_aloop")
        else:
            for c in range(1, 7): a_body(R, "mid", c)
        wo_setup(R.E)
        a_body(R, "last", 7)
    a_all(RA, False)
    RA.vm = []; RA.mode = "emit"; RA.E = A
    a_all(RA, True)

    A.label("L_store_p")
    dstamp(A, 50, opt)
    A("v_and_b32 v1, 7, v5")
    A("v_lshrrev_b32 v2, 3, v5")
    A("s_and_b32 s40, s30, 3")
    A("s_lshl_b32 s41, s40, 3")
    A("v_add_u32 v2, s41, v2")
    A("v_and_b32 v3, 7, v2")
    A("v_xor_b32 v3, v3, v1")
    A("v_lshlrev_b32 v3, 4, v3")
    A("v_lshl_add_u32 v3, v2, 7, v3")
    A(f"v_add_u32 v3, {HST}, v3")
    A("v_lshlrev_b32 v4, 7, v2")
    A("v_lshl_add_u32 v4, v1, 4, v4")
    A("s_lshl_b32 s39, s29, 18")
    A("s_lshl_b32 s40, s28, 12")
    A("s_add_u32 s39, s39, s40")
    halves = [range(0, 4), range(4, 8)] if opt.half2 else [range(0, 8)]
    for hi_, blk in enumerate(halves):
        if hi_ == len(halves) - 1:
            A("s_waitcnt vmcnt(%d)" % (14 if opt.half2 else 10))
        dstamp(A, 51, opt) if hi_ == 0 else None
        gbar(A, opt)
        dstamp(A, 52, opt) if hi_ == len(halves) - 1 else None
        n = len(blk)
        for i in blk: A(f"ds_read_b128 {vr(16+4*i)}, v3 offset:{i*32*128}")
        A("s_cmp_eq_u32 s94, 1")
        A(f"s_cbranch_scc1 L_hfast{hi_}")
        for fl, lab in (("sc1", None), (opt.fastflags, f"L_hfast{hi_}")):
            if lab: A.label(lab)
            g = guard_begin(A, opt)
            for k, i in enumerate(blk):
                A(f"s_waitcnt lgkmcnt({n-1-k})")
                A(f"s_add_u32 s41, s39, {i*32768}")
                A(f"buffer_store_dwordx4 {vr(16+4*i)}, v4, s[24:27], s41 offen {fl}")
            guard_end(A, g)
            if not lab: A(f"s_branch L_hs{hi_}")
        A.label(f"L_hs{hi_}")
    def afrags(kaps):
        for kap in kaps:
            for hf in range(2):
                off = kap * 32 * 512 + 8 * hf
                areg = 10 if kap < 4 else 12
                off -= 0 if kap < 4 else 65536
                d = 128 + 8 * kap + 4 * hf
                A(f"ds_read_b64_tr_b16 {vr(d,2)}, v{areg} offset:{off}")
                A(f"ds_read_b64_tr_b16 {vr(d+2,2)}, v{areg} offset:{off+2048}")
    def tail_setup(kaps):
        A("v_and_b32 v6, 15, v5")
        A("v_lshrrev_b32 v7, 4, v5")
        A("v_lshrrev_b32 v8, 2, v6")
        A("v_and_b32 v13, 3, v6")
        A("s_lshl_b32 s44, s30, 2")
        A("v_add_u32 v10, s44, v13")
        A("v_lshlrev_b32 v11, 2, v8")
        A("v_xor_b32 v10, v10, v11")
        A("v_lshlrev_b32 v10, 4, v10")
        A("v_lshl_add_u32 v11, v7, 3, v8")
        A("v_lshl_add_u32 v10, v11, 9, v10")
        A("v_add_u32 v12, 0x10000, v10")
        afrags(kaps)
        A("s_add_u32 s96, s10, s35")
        A("s_addc_u32 s97, s11, 0")
        A("s_mov_b32 s98, 2048000")
        A("s_mov_b32 s99, 0x20000")
        A("v_lshrrev_b32 v2, 4, v0")
        A("v_and_b32 v3, 15, v0")
        A("v_lshrrev_b32 v4, 3, v3")
        A("v_lshlrev_b32 v4, 12, v4")
        A("v_lshl_add_u32 v4, v2, 7, v4")
        A("v_and_b32 v14, 7, v3")
        A("v_lshl_add_u32 v4, v14, 4, v4")
        A("s_lshl_b32 s88, s29, 18")
        A("s_lshl_b32 s89, s28, 15")
        A("s_add_u32 s88, s88, s89")
        A("s_add_u32 s89, s88, 8192")
        A("s_add_u32 s91, s88, 16384")
        A("s_add_u32 s92, s88, 24576")
        A("s_mov_b32 s48, 0xc038aa3b")
        A("s_mov_b32 s49, 0xc038aa3b")
        A("s_mov_b32 s50, 0xbfb8aa3b")
        A("s_mov_b32 s51, 0xbfb8aa3b")
        A("s_mov_b32 s52, 1.0")
        A("s_mov_b32 s53, 1.0")
        A("s_mov_b32 s43, 0x42700000")
        A(f"v_mul_u32_u24 v9, {ZP}, v2")
        A("v_lshl_add_u32 v9, v3, 4, v9")
        A(f"v_add_u32 v9, {HST}, v9")
        A(f"v_mul_u32_u24 v11, {ZP}, v6")
        A("v_lshl_add_u32 v11, v7, 4, v11")
        A(f"v_add_u32 v11, {HST}, v11")
        A("v_lshlrev_b32 v8, 3, v6")
        A("s_add_u32 s44, s31, s28")
        A("v_add_u32 v8, s44, v8")
        A("v_lshlrev_b32 v8, 11, v8")
        A("s_lshl_b32 s44, s33, 9")
        A("s_lshl_b32 s45, s30, 6")
        A("s_add_u32 s44, s44, s45")
        A("v_add_u32 v8, s44, v8")
        A("v_lshl_add_u32 v8, v7, 4, v8")
        A("v_mov_b32 v14, 0xc2700000")
    A("s_waitcnt vmcnt(0)")
    dstamp(A, 55, opt)
    A("s_barrier")
    dstamp(A, 56, opt)
    tail_setup(range(8))
    dstamp(A, 54, opt)
    A("s_branch L_hwait")
    A.label("L_store")
    A("s_barrier")
    dstamp(A, 52, opt)
    A("v_readfirstlane_b32 s94, v246")
    A("v_readfirstlane_b32 s47, v247")
    tail_setup([0, 1, 4, 5, 6])
    A("s_lshl_b32 s44, s29, 3")
    A("s_add_u32 s44, s44, s28")
    A("s_lshl_b32 s44, s44, 7")
    A(f"s_add_u32 s44, s44, {WS_FLAGS + 65536}")
    A("v_mov_b32 v84, s44")
    A("v_and_b32 v85, 7, v5")
    A("s_lshl_b32 s44, s29, 10")
    A(f"s_add_u32 s44, s44, {WS_FLAGS + 65536}")
    A("v_lshl_add_u32 v85, v85, 7, s44")
    A("v_mov_b32 v15, s47")
    dstamp(A, 54, opt)
    A("s_barrier")
    dstamp(A, 56, opt)
    stamp(A, 3, opt)
    A("s_cmp_lg_u32 s30, 0")
    A("s_cbranch_scc1 L_nofl")
    A("s_mov_b64 exec, 1")
    A("s_cmp_eq_u32 s94, 1")
    A("s_cbranch_scc1 L_ffast")
    A("global_store_dword v84, v15, s[14:15] sc1")
    A("s_branch L_fdone")
    A.label("L_ffast")
    A("global_store_dword v84, v15, s[14:15]")
    A.label("L_fdone")
    A("s_mov_b64 exec, -1")
    A.label("L_nofl")
    afrags([2, 3, 7])
    A("s_cmp_lg_u32 s30, 0")
    A("s_cbranch_scc1 L_hwait")
    A("s_mov_b32 s46, 0x100000")
    A.label("L_hspin")
    A("global_load_dword v87, v85, s[14:15] sc1")
    A("s_waitcnt vmcnt(0)")
    A("v_cmp_eq_u32 vcc, s47, v87")
    A("s_sub_u32 s46, s46, 1")
    A("s_cmp_eq_u32 s46, 0")
    A("s_cbranch_scc1 L_hwait")
    A("s_cmp_eq_u64 vcc, -1")
    A("s_cbranch_scc0 L_hspin")
    A.label("L_hwait")
    A("s_waitcnt lgkmcnt(0)")
    gbar(A, opt)
    dstamp(A, 57, opt)
    stamp(A, 4, opt)
    g = guard_begin(A, opt)
    A(f"buffer_load_dwordx4 {vr(16)}, v4, s[24:27], s88 offen {opt.hload}")
    A(f"buffer_load_dwordx4 {vr(20)}, v4, s[24:27], s91 offen {opt.hload}")
    A(f"buffer_load_dwordx4 {vr(24)}, v4, s[24:27], s89 offen {opt.hload}")
    A(f"buffer_load_dwordx4 {vr(28)}, v4, s[24:27], s92 offen {opt.hload}")
    guard_end(A, g)
    for half in range(2):
        A(f"s_waitcnt vmcnt({2 if half == 0 else 0})")
        dstamp(A, 58 + half, opt)
        fb, gb = 16 + 8 * half, 20 + 8 * half
        zb = 32 + 4 * half
        for d0 in range(0, 4, 2):
            TT = [(40, d0), (52, d0 + 1)]
            for t, d in TT:
                A(f"v_lshlrev_b32 v{t}, 16, v{fb+d}"); A(f"v_and_b32 v{t+1}, s36, v{fb+d}")
                A(f"v_lshlrev_b32 v{t+2}, 16, v{gb+d}"); A(f"v_and_b32 v{t+3}, s36, v{gb+d}")
            for t, d in TT:
                A(f"v_pk_mul_f32 {vr(t,2)}, {vr(t,2)}, s[48:49]")
                A(f"v_pk_mul_f32 {vr(t+2,2)}, {vr(t+2,2)}, s[50:51]")
            for t, d in TT:
                A(f"v_med3_f32 v{t}, v{t}, s43, v14"); A(f"v_med3_f32 v{t+1}, v{t+1}, s43, v14")
            for t, d in TT:
                A(f"v_exp_f32 v{t+2}, v{t+2}"); A(f"v_exp_f32 v{t+3}, v{t+3}")
            for t, d in TT:
                A(f"v_exp_f32 v{t}, v{t}"); A(f"v_exp_f32 v{t+1}, v{t+1}")
            for t, d in TT:
                A(f"v_pk_add_f32 {vr(t+2,2)}, {vr(t+2,2)}, s[52:53]")
            for t, d in TT:
                A(f"v_pk_add_f32 {vr(t+4,2)}, {vr(t,2)}, s[52:53]")
                A(f"v_pk_add_f32 {vr(t,2)}, {vr(t,2)}, s[52:53] neg_lo:[1,0] neg_hi:[1,0]")
            for t, d in TT:
                A(f"v_pk_mul_f32 {vr(t+4,2)}, {vr(t+4,2)}, {vr(t+2,2)}")
            for t, d in TT:
                A(f"v_rcp_f32 v{t+4}, v{t+4}"); A(f"v_rcp_f32 v{t+5}, v{t+5}")
            A("s_nop 0")
            for t, d in TT:
                A(f"v_pk_mul_f32 {vr(t,2)}, {vr(t,2)}, {vr(t+4,2)}")
            for t, d in TT:
                A(f"v_cvt_pk_bf16_f32 v{zb+d}, v{t}, v{t+1}")
        A(f"ds_write_b128 v9, {vr(zb)} offset:{256*half}")
    A("s_waitcnt lgkmcnt(0)")
    dstamp(A, 60, opt)
    gbar(A, opt)
    dstamp(A, 61, opt)
    tr = LdsTracker()
    AF = 128
    ACC2 = 64
    BF = 192
    ops = []
    for kap in range(8):
        for tau in range(2):
            d = BF + 8 * (kap % 4) + 4 * tau
            if kap < 4: ops.append(("lds", f"ds_read_b128 {vr(d)}, v11 offset:{tau*16*ZP + kap*64}", rng(d, 4), []))
    for kap in range(8):
        for hf in range(2):
            for tau in range(2):
                acc = ACC2 + 4 * (2 * tau + hf)
                af = AF + 8 * kap + 4 * hf
                bf = BF + 8 * (kap % 4) + 4 * tau
                c = vr(acc) if kap > 0 else "0"
                ops.append(("mfma", f"v_mfma_f32_16x16x32_bf16 {vr(acc)}, {vr(af)}, {vr(bf)}, {c}", [], rng(bf, 4)))
        if kap < 4:
            for tau in range(2):
                d = BF + 8 * (kap % 4) + 4 * tau
                ops.append(("lds", f"ds_read_b128 {vr(d)}, v11 offset:{tau*16*ZP + (kap+4)*64}", rng(d, 4), []))
    emit_with_waits(A, ops, tr)
    A("s_nop 7")
    A("s_nop 1")
    dstamp(A, 62, opt)
    for tau in range(2):
        a_ = ACC2 + 8 * tau
        t = 16 + 4 * tau
        A(f"v_cvt_pk_bf16_f32 v{t}, v{a_}, v{a_+1}")
        A(f"v_cvt_pk_bf16_f32 v{t+1}, v{a_+2}, v{a_+3}")
        A(f"v_cvt_pk_bf16_f32 v{t+2}, v{a_+4}, v{a_+5}")
        A(f"v_cvt_pk_bf16_f32 v{t+3}, v{a_+6}, v{a_+7}")
    if opt.tdry: A("s_cbranch_execz L_tdry_ret")
    for tau in range(2):
        t = 16 + 4 * tau
        A(f"buffer_store_dwordx4 {vr(t)}, v8, s[96:99], 0 offen offset:{1024*tau} {opt.outflags}")
    if opt.stamps and not opt.dbgat:
        A("s_waitcnt vmcnt(0)")
        dstamp(A, 63, opt)
        stamp(A, 5, opt)
        A("s_waitcnt lgkmcnt(0)")
        if opt.dstamps:
            A("s_and_b32 s50, s30, 1")
            A("s_cmp_lg_u32 s50, 0")
            A("s_cbranch_scc1 L_nods")
            A("s_lshl_b32 s50, s2, 10")
            A("s_lshr_b32 s51, s30, 1")
            A("s_lshl_b32 s51, s51, 8")
            A("s_add_u32 s50, s50, s51")
            A(f"s_add_u32 s50, s50, {STAMP_OFF + 131072}")
            A("v_lshl_add_u32 v1, v5, 2, s50")
            A("global_store_dword v1, v245, s[14:15]")
            A.label("L_nods")
        if opt.cstamps:
            A("v_cmp_gt_u32 vcc, 16, v0")
            A("s_and_saveexec_b64 s[48:49], vcc")
            A("s_cbranch_execz L_nocs")
            A("s_lshl_b32 s50, s2, 6")
            A(f"s_add_u32 s50, s50, {STAMP_OFF + 65536}")
            A("v_lshl_add_u32 v1, v0, 2, s50")
            A("global_store_dword v1, v244, s[14:15]")
            A.label("L_nocs")
            A("s_mov_b64 exec, s[48:49]")
        A("v_cmp_eq_u32 vcc, 0, v0")
        A("s_and_saveexec_b64 s[48:49], vcc")
        A("s_cbranch_execz L_end")
        A("s_lshl_b32 s50, s2, 6")
        A(f"s_add_u32 s50, s50, {STAMP_OFF}")
        A("v_mov_b32 v1, s50")
        order = [60, 61, 80, 81, 62, 63, 82, 83, 64, 65, 68, 69, 66, 70, 76, 77] if opt.looprt else [60, 61, 80, 81, 62, 63, 82, 83, 64, 65, 68, 69, 72, 73, 76, 77]
        for i in range(0, 16, 4):
            for k in range(4): A(f"v_mov_b32 v{4+k}, s{order[i+k]}")
            A(f"global_store_dwordx4 v1, v[4:7], s[14:15] offset:{i*4}")
            A("s_nop 1")
    if opt.dbgat:
        A("s_waitcnt vmcnt(0)")
        stamp(A, 5, opt)
        A("s_waitcnt lgkmcnt(0)")
        A("v_cmp_eq_u32 vcc, 0, v0")
        A("s_and_saveexec_b64 s[48:49], vcc")
        A("s_cbranch_execz L_end")
        A("v_mov_b32 v1, 0")
        def amax(word, expr):
            for l in expr: A(l)
            A("v_mov_b32 v2, s50")
            A(f"global_atomic_umax v1, v2, s[12:13] offset:{4*word}")
        amax(4, ["s_mov_b32 s50, s82"])
        amax(5, ["s_not_b32 s50, s62"])
        amax(6, ["s_sub_u32 s50, s80, s60"])
        amax(7, ["s_sub_u32 s50, s64, s60"])
        amax(8, ["s_sub_u32 s50, s68, s60"])
        amax(9, ["s_sub_u32 s50, s72, s60"])
        amax(10, ["s_sub_u32 s50, s76, s60"])
        amax(11, ["s_sub_u32 s50, s82, s62"])
        A("s_waitcnt vmcnt(0)")
    A.label("L_end")
    A("s_endpgm")
    return A.text()


ST2 = "wavenet_stage2_kernel"
def map_ids(A, opt):
    if opt.map == "n8":
        A("s_and_b32 s28, s2, 7"); A("s_lshr_b32 s29, s2, 3")
    elif opt.map == "m4":
        for l in ["s_and_b32 s29, s2, 7", "s_lshl_b32 s29, s29, 2", "s_lshr_b32 s28, s2, 3", "s_lshr_b32 s35, s28, 3",
                  "s_add_u32 s29, s29, s35", "s_and_b32 s28, s28, 7"]: A(l)
    else:
        for l in ["s_lshr_b32 s35, s2, 3", "s_and_b32 s28, s2, 1", "s_lshl_b32 s28, s28, 2", "s_and_b32 s29, s35, 3",
                  "s_add_u32 s28, s28, s29", "s_lshr_b32 s29, s2, 1", "s_and_b32 s29, s29, 3", "s_lshl_b32 s29, s29, 3",
                  "s_lshr_b32 s35, s35, 2", "s_add_u32 s29, s29, s35"]: A(l)

def gating(A):
    A("v_mov_b32 v14, 0xc2700000")
    for half in range(2):
        fb, gb = 16 + 8 * half, 20 + 8 * half
        zb = 32 + 4 * half
        yield half
        for d0 in range(0, 4, 2):
            TT = [(40, d0), (52, d0 + 1)]
            for t, d in TT:
                A(f"v_lshlrev_b32 v{t}, 16, v{fb+d}"); A(f"v_and_b32 v{t+1}, s36, v{fb+d}")
                A(f"v_lshlrev_b32 v{t+2}, 16, v{gb+d}"); A(f"v_and_b32 v{t+3}, s36, v{gb+d}")
            for t, d in TT:
                A(f"v_pk_mul_f32 {vr(t,2)}, {vr(t,2)}, s[48:49]")
                A(f"v_pk_mul_f32 {vr(t+2,2)}, {vr(t+2,2)}, s[50:51]")
            for t, d in TT:
                A(f"v_med3_f32 v{t}, v{t}, s43, v14"); A(f"v_med3_f32 v{t+1}, v{t+1}, s43, v14")
            for t, d in TT:
                A(f"v_exp_f32 v{t+2}, v{t+2}"); A(f"v_exp_f32 v{t+3}, v{t+3}")
            for t, d in TT:
                A(f"v_exp_f32 v{t}, v{t}"); A(f"v_exp_f32 v{t+1}, v{t+1}")
            for t, d in TT:
                A(f"v_pk_add_f32 {vr(t+2,2)}, {vr(t+2,2)}, s[52:53]")
            for t, d in TT:
                A(f"v_pk_add_f32 {vr(t+4,2)}, {vr(t,2)}, s[52:53]")
                A(f"v_pk_add_f32 {vr(t,2)}, {vr(t,2)}, s[52:53] neg_lo:[1,0] neg_hi:[1,0]")
            for t, d in TT:
                A(f"v_pk_mul_f32 {vr(t+4,2)}, {vr(t+4,2)}, {vr(t+2,2)}")
            for t, d in TT:
                A(f"v_rcp_f32 v{t+4}, v{t+4}"); A(f"v_rcp_f32 v{t+5}, v{t+5}")
            A("s_nop 0")
            for t, d in TT:
                A(f"v_pk_mul_f32 {vr(t,2)}, {vr(t,2)}, {vr(t+4,2)}")
            for t, d in TT:
                A(f"v_cvt_pk_bf16_f32 v{zb+d}, v{t}, v{t+1}")
        A(f"ds_write_b128 v9, {vr(zb)} offset:{256*half}")

def gen_stage2(opt):
    A = Asm()
    A.raw(f".globl {ST2}\n.p2align 8\n.type {ST2},@function\n{ST2}:")
    A("s_cmp_ge_u32 s2, 256")
    A("s_cbranch_scc1 L2_end")
    A("s_load_dwordx4 s[8:11], s[0:1], 16")
    A("s_load_dwordx2 s[14:15], s[0:1], 40")
    A("v_lshrrev_b32 v1, 6, v0")
    A("v_and_b32 v5, 63, v0")
    map_ids(A, opt)
    A("v_readfirstlane_b32 s30, v1")
    A("s_and_b32 s31, s29, 7")
    A("s_lshl_b32 s31, s31, 7")
    A("s_lshr_b32 s32, s29, 3")
    A("s_and_b32 s33, s32, 1")
    A("s_lshr_b32 s34, s32, 1")
    A("s_mul_i32 s35, s34, 2048000")
    A("s_mov_b32 s36, 0xffff0000")
    A("v_lshrrev_b32 v2, 4, v0")
    A("v_and_b32 v3, 15, v0")
    A("v_lshrrev_b32 v4, 3, v3")
    A("v_lshlrev_b32 v4, 12, v4")
    A("v_lshl_add_u32 v4, v2, 7, v4")
    A("v_and_b32 v14, 7, v3")
    A("v_lshl_add_u32 v4, v14, 4, v4")
    A("s_lshl_b32 s39, s29, 18")
    A("s_lshl_b32 s40, s28, 15")
    A("s_add_u32 s39, s39, s40")
    A("s_add_u32 s40, s39, 8192")
    A("s_add_u32 s41, s39, 16384")
    A("s_add_u32 s42, s39, 24576")
    A("v_lshrrev_b32 v12, 5, v5")
    A("s_and_b32 s44, s30, 1")
    A("s_lshl_b32 s44, s44, 1")
    A("v_add_u32 v13, s44, v12")
    A("v_lshlrev_b32 v13, 2, v13")
    A("v_and_b32 v15, 31, v5")
    A("v_xor_b32 v15, v15, v13")
    A("v_lshlrev_b32 v15, 4, v15")
    A("v_lshl_add_u32 v15, v12, 9, v15")
    A("s_lshl_b32 s56, s30, 10")
    A("s_waitcnt lgkmcnt(0)")
    for l in ["s_mov_b32 s24, s14", "s_mov_b32 s25, s15", f"s_mov_b32 s26, {WS_BYTES}", "s_mov_b32 s27, 0x20000"]: A(l)
    A(f"buffer_load_dwordx4 {vr(16)}, v4, s[24:27], s39 offen")
    A(f"buffer_load_dwordx4 {vr(20)}, v4, s[24:27], s41 offen")
    A(f"buffer_load_dwordx4 {vr(24)}, v4, s[24:27], s40 offen")
    A(f"buffer_load_dwordx4 {vr(28)}, v4, s[24:27], s42 offen")
    for l in ["s_mov_b32 s52, s8", "s_mov_b32 s53, s9", "s_mov_b32 s54, 131072", "s_mov_b32 s55, 0x20000"]: A(l)
    for k in range(16):
        A(f"s_add_u32 m0, s56, {k*8192}")
        A(f"s_add_u32 s45, s56, {k*8192}")
        A("buffer_load_dwordx4 v15, s[52:55], s45 offen lds")
    A("s_add_u32 s20, s10, s35")
    A("s_addc_u32 s21, s11, 0")
    A("s_mov_b32 s22, 2048000")
    A("s_mov_b32 s23, 0x20000")
    A("v_and_b32 v6, 15, v5")
    A("v_lshrrev_b32 v7, 4, v5")
    A("v_lshrrev_b32 v8, 2, v6")
    A("v_and_b32 v13, 3, v6")
    A("s_lshl_b32 s44, s30, 2")
    A("v_add_u32 v10, s44, v13")
    A("v_lshlrev_b32 v11, 2, v8")
    A("v_xor_b32 v10, v10, v11")
    A("v_lshlrev_b32 v10, 4, v10")
    A("v_lshl_add_u32 v11, v7, 3, v8")
    A("v_lshl_add_u32 v10, v11, 9, v10")
    A("v_add_u32 v12, 0x10000, v10")
    A("s_mov_b32 s48, 0xc038aa3b"); A("s_mov_b32 s49, 0xc038aa3b")
    A("s_mov_b32 s50, 0xbfb8aa3b"); A("s_mov_b32 s51, 0xbfb8aa3b")
    A("s_mov_b32 s58, 1.0"); A("s_mov_b32 s59, 1.0")
    A("s_mov_b32 s43, 0x42700000")
    A(f"v_mul_u32_u24 v9, {ZP}, v2")
    A("v_lshl_add_u32 v9, v3, 4, v9")
    A(f"v_add_u32 v9, {HST}, v9")
    A(f"v_mul_u32_u24 v11, {ZP}, v6")
    A("v_lshl_add_u32 v11, v7, 4, v11")
    A(f"v_add_u32 v11, {HST}, v11")
    A("v_lshlrev_b32 v8, 3, v6")
    A("s_add_u32 s44, s31, s28")
    A("v_add_u32 v8, s44, v8")
    A("v_lshlrev_b32 v8, 11, v8")
    A("s_lshl_b32 s44, s33, 9")
    A("s_lshl_b32 s45, s30, 6")
    A("s_add_u32 s44, s44, s45")
    A("v_add_u32 v8, s44, v8")
    A("v_lshl_add_u32 v8, v7, 4, v8")
    B = Asm()
    for half in gating(B):
        B(f"s_waitcnt vmcnt({18 if half == 0 else 16})")
    A.lines += [l.replace("s[52:53]", "s[58:59]") for l in B.lines]
    A("s_waitcnt vmcnt(0) lgkmcnt(0)")
    A("s_barrier")
    AF, BF, ACC2 = 64, 128, 160
    tr = LdsTracker()
    ops = []
    def rdA(kap):
        o = []
        for hf in range(2):
            off = kap * 32 * 512 + 8 * hf
            areg = 10 if kap < 4 else 12
            off -= 0 if kap < 4 else 65536
            d = AF + 8 * kap + 4 * hf
            o.append(("lds", f"ds_read_b64_tr_b16 {vr(d,2)}, v{areg} offset:{off}", rng(d, 2), []))
            o.append(("lds", f"ds_read_b64_tr_b16 {vr(d+2,2)}, v{areg} offset:{off+2048}", rng(d+2, 2), []))
        for tau in range(2):
            d = BF + 8 * (kap % 4) + 4 * tau
            o.append(("lds", f"ds_read_b128 {vr(d)}, v11 offset:{tau*16*ZP + kap*64}", rng(d, 4), []))
        return o
    ops += rdA(0) + rdA(1)
    for kap in range(8):
        if kap + 2 < 8: ops += rdA(kap + 2)
        for hf in range(2):
            for tau in range(2):
                acc = ACC2 + 4 * (2 * tau + hf)
                af = AF + 8 * kap + 4 * hf
                bf = BF + 8 * (kap % 4) + 4 * tau
                c = vr(acc) if kap > 0 else "0"
                ops.append(("mfma", f"v_mfma_f32_16x16x32_bf16 {vr(acc)}, {vr(af)}, {vr(bf)}, {c}", [], rng(bf, 4) + rng(af, 4)))
    emit_with_waits(A, ops, tr)
    A("s_nop 7"); A("s_nop 1")
    for tau in range(2):
        a_ = ACC2 + 8 * tau
        t = 16 + 4 * tau
        A(f"v_cvt_pk_bf16_f32 v{t}, v{a_}, v{a_+1}")
        A(f"v_cvt_pk_bf16_f32 v{t+1}, v{a_+2}, v{a_+3}")
        A(f"v_cvt_pk_bf16_f32 v{t+2}, v{a_+4}, v{a_+5}")
        A(f"v_cvt_pk_bf16_f32 v{t+3}, v{a_+6}, v{a_+7}")
        A(f"buffer_store_dwordx4 {vr(t)}, v8, s[20:23], 0 offen offset:{1024*tau} {opt.outflags}")
    A.label("L2_end")
    A("s_endpgm")
    return A.text()

def kd(name, nv, ns=102):
    return f""".amdhsa_kernel {name}
  .amdhsa_next_free_vgpr {nv}
  .amdhsa_next_free_sgpr {ns}
  .amdhsa_accum_offset {(nv + 3) // 4 * 4}
  .amdhsa_group_segment_fixed_size 0
  .amdhsa_kernarg_size 48
  .amdhsa_user_sgpr_count 2
  .amdhsa_user_sgpr_kernarg_segment_ptr 1
  .amdhsa_system_sgpr_workgroup_id_x 1
.end_amdhsa_kernel
"""

HEADER = """; Kernarg layout for this problem (48 bytes, ptrs only, base s[0:1]):
"""

def main():
    ap = argparse.ArgumentParser()
    ap.add_argument("-o", default="standalone__autoregressive_conv_wavenet__speech.s")
    ap.add_argument("--stamps", action="store_true")
    ap.add_argument("--cap", type=int, default=2)
    ap.add_argument("--outflags", default="nt")
    ap.add_argument("--cstamps", action="store_true")
    ap.add_argument("--dstamps", action="store_true")
    ap.add_argument("--xplain", action="store_true")
    ap.add_argument("--align", action="store_true")
    ap.add_argument("--no-prefetch", dest="prefetch", action="store_false")
    ap.add_argument("--pf_a", type=int, default=3)
    ap.add_argument("--st0", type=int, default=0)
    ap.add_argument("--nwin", type=int, default=3)
    ap.add_argument("--w_early", type=int, default=4)
    ap.add_argument("--map", default="m4")
    ap.add_argument("--sig_a", type=int, default=11)
    ap.add_argument("--poll_a", type=int, default=16)
    ap.add_argument("--wo_gaps", type=lambda s: [int(x) for x in s.split(",")], default=[9, 10])
    ap.add_argument("--we_gaps", type=lambda s: [int(x) for x in s.split(",")], default=[17, 18])
    ap.add_argument("--bar_after", type=int, default=1)
    ap.add_argument("--e64", action="store_true")
    ap.add_argument("--novalu", action="store_true")
    ap.add_argument("--no-pf0", dest="pf0", action="store_false")
    ap.add_argument("--ldsalone", action="store_true")
    ap.add_argument("--g0free", action="store_true")
    ap.add_argument("--no-onewait", dest="onewait", action="store_false")
    ap.add_argument("--vstart", type=int, default=0)
    ap.add_argument("--looprt", action="store_true")
    ap.add_argument("--no-epk", dest="epk", action="store_false")
    ap.add_argument("--tdry", action="store_true")
    ap.add_argument("--dry", action="store_true")
    ap.add_argument("--otouch", type=int, default=0)
    ap.add_argument("--ptouch", action="store_true")
    ap.add_argument("--no-half2", dest="half2", action="store_false")
    ap.add_argument("--tailpf", type=int, default=-1)
    ap.add_argument("--hload", default="sc1")
    ap.add_argument("--fastflags", default="nt")
    ap.add_argument("--no-wtouch", dest="wtouch", action="store_false")
    ap.add_argument("--wt_a", type=lambda s: [int(x) for x in s.split(",")], default=[9, 14])
    ap.add_argument("--wt_it", type=int, default=2)
    ap.add_argument("--slowmode", action="store_true")
    ap.add_argument("--codepf", type=int, default=1)
    ap.add_argument("--split", action="store_true")
    ap.add_argument("--hflags", default="sc1")
    ap.add_argument("--dbgat", action="store_true")
    ap.add_argument("--dot2", action="store_true")
    ap.add_argument("--swap", action="store_true")
    opt = ap.parse_args()
    ONEWAIT[0] = opt.onewait
    E64[0] = opt.e64; NOVALU[0] = opt.novalu; DOT2[0] = opt.dot2; SWAP[0] = opt.swap
    m = gen_main(opt)
    out = HEADER
    if opt.split:
        out += f"; @launch kernel={MAIN} grid=(256,1,1) block=(512,1,1) lds={HST + 32768}\n"
        out += f"; @launch kernel={ST2} grid=(256,1,1) block=(512,1,1) lds={HST + 32*ZP}\n"
    else:
        out += f"; @launch grid=(256,1,1) block=(512,1,1) lds={LDS_TOTAL}\n"
    out += '.amdgcn_target "amdgcn-amd-amdhsa--gfx950"\n.text\n'
    out += m
    out += '.section .rodata,"a"\n.p2align 6\n' + kd(MAIN, 251 if opt.codepf else NV + (2 if (opt.cstamps or opt.dstamps) else 0))
    if opt.split: out += ".p2align 6\n" + kd(ST2, 176)
    open(opt.o, "w").write(out)

if __name__ == "__main__":
    main()
```

```python
import sys, argparse

MAIN = "standalone__autoregressive_conv_wavenet__speech_kernel"

XROWG = 19
XARR = 152 * 64
XBUF = 32768
WRING = 65536
WSLOT = 8192
NSLOT = 8
HST = 131072
LDS_TOTAL = 163840
ZP = 528
WS_XIMG = 8 << 20
WS_BYTES = 16 << 20
MODE_LDS = 30720
STAMP_OFF = 16 << 20
WS_FLAGS = 17 << 20

class Asm:
    def __init__(self): self.lines = []
    def __call__(self, s): self.lines.append("    " + s)
    def label(self, s): self.lines.append(s + ":")
    def raw(self, s): self.lines.append(s)
    def text(self): return "\n".join(self.lines) + "\n"
class Null:
    def __call__(self, s): pass
    def label(self, s): pass
    def raw(self, s): pass

def vr(b, n=4): return f"v[{b}:{b+n-1}]"
def rng(b, n): return list(range(b, b + n))

V_XA0, V_XA1, V_XA2, V_WA = 1, 2, 3, 4
TMP = [8, 12]
WSET = {0: 16, 1: 28, 2: 232}
WIN = {"D1": 40, "D2": 72, "X0": 104}
ARR = {"D1": 0, "D2": 1, "X0": 2}
ACC = {"Q1": 136, "Q2": 168, "Q0": 200}
NV = 244

def wset(a):
    a %= 16
    return WSET[2] if a == 0 else WSET[a & 1]

class LdsTracker:
    def __init__(self): self.out = []
    def issue(self, regs): self.out.append(set(regs))
    def need(self, regs):
        regs = set(regs); p = -1
        for i, d in enumerate(self.out):
            if d & regs: p = i
        if p < 0: return None
        n = min(len(self.out) - p - 1, 15)
        self.out = self.out[len(self.out) - n:] if n > 0 else []
        return n
    def waitall(self): self.out = []

def x_read(arr, idx0, dst, nxt=False):
    q0, mp = idx0 >> 3, idx0 & 7
    areg = V_XA2 if nxt else (V_XA0 if q0 == 0 else V_XA1)
    assert (q0 == 2) if nxt else (q0 in (0, 1))
    off = ARR[arr] * XARR + (mp * XROWG + q0) * 64
    return ("lds", f"ds_read_b128 {vr(dst)}, v{areg} offset:{off}", rng(dst, 4), [])

def w_read(slot, tile, dst):
    off = (slot % NSLOT) * WSLOT + tile * 4096
    return [("lds", f"ds_read_b64_tr_b16 {vr(dst,2)}, v{V_WA} offset:{off}", rng(dst, 2), []),
            ("lds", f"ds_read_b64_tr_b16 {vr(dst+2,2)}, v{V_WA} offset:{off+512}", rng(dst + 2, 2), [])]

E64 = [False]
NOVALU = [False]
ONEWAIT = [False]
DOT2 = [False]
SWAP = [False]
def ws_valu(base):
    ops = []
    if NOVALU[0]: return ops
    if DOT2[0]:
        for d0 in (0, 2):
            seq = []
            for d in (d0, d0 + 1):
                o, e = base + d, base + 4 + d
                t = TMP[d & 1]
                seq.append([("valu", f"v_dot2_f32_bf16 v{t}, v{o}, s91, 0", [], [o]),
                            ("valu", f"v_dot2_f32_bf16 v{t+1}, v{o}, s92, 0", [], [o]),
                            ("valu", f"v_dot2_f32_bf16 v{t}, v{e}, s91, v{t}", [], [e]),
                            ("valu", f"v_dot2_f32_bf16 v{t+1}, v{e}, s92, v{t+1}", [], [e]),
                            ("valu", f"v_cvt_pk_bf16_f32 v{base+8+d}, v{t}, v{t+1}", [], [])])
            a_, b_ = seq
            ops += [a_[0], a_[1], a_[2], a_[3], b_[0], b_[1], b_[2], b_[3], a_[4], ("valu", "s_nop 0", [], []), b_[4]] if d0 == 2 else [a_[0], a_[1], a_[2], a_[3], b_[0], b_[1], b_[2], b_[3], a_[4]]
            if d0 == 0: pend = b_[4]
            else: ops.insert(len(ops) - 11 + 3, pend)
        return ops
    for d in range(4):
        o, e, s = base + d, base + 4 + d, base + 8 + d
        t = TMP[d & 1]
        x = "_e64" if E64[0] else ""
        ops += [("valu", f"v_lshlrev_b32{x} v{t}, 16, v{o}", [], [o]),
                ("valu", f"v_lshlrev_b32{x} v{t+1}, 16, v{e}", [], [e]),
                ("valu", f"v_and_b32{x} v{t+2}, s36, v{o}", [], [o]),
                ("valu", f"v_and_b32{x} v{t+3}, s36, v{e}", [], [e]),
                ("valu", f"v_add_f32{x} v{t}, v{t}, v{t+1}", [], []),
                ("valu", f"v_add_f32{x} v{t+2}, v{t+2}, v{t+3}", [], []),
                ("valu", f"v_cvt_pk_bf16_f32 v{s}, v{t}, v{t+2}", [], [])]
    if ONEWAIT[0]:
        k, tx, de, rd = ops[0]
        ops[0] = (k, tx, de, list(range(base, base + 8)))
    return ops

def gen_period(a, opt):
    cur = wset(a)
    if a <= 14: steps = [("Q1", cur + 0, "D1"), ("Q2", cur + 4, "D2"), ("Q0", cur + 8, "X0")]
    else: steps = [("Q2", cur + 8, "D2"), ("Q0", cur + 8, "X0")]
    ng = 8 * len(steps)
    fill = [[] for _ in range(ng)]
    mf = []
    last = {"D1": 14, "D2": 15, "X0": 15}
    for si, (q, wreg, arr) in enumerate(steps):
        for k in range(8):
            m = 7 - k
            sl = (m - a) % 8
            b = WIN[arr] + 4 * sl
            acc = ACC[q] + 4 * m
            if SWAP[0]: mf.append(("mfma", f"v_mfma_f32_16x16x32_bf16 {vr(acc)}, {vr(b)}, {vr(wreg)}, {vr(acc)}", [], rng(wreg, 4) + rng(b, 4)))
            else: mf.append(("mfma", f"v_mfma_f32_16x16x32_bf16 {vr(acc)}, {vr(wreg)}, {vr(b)}, {vr(acc)}", [], rng(wreg, 4) + rng(b, 4)))
            g = 8 * si + k
            if a == last[arr]: fill[g].append(x_read(arr, 16 + sl, b, nxt=True))
            elif k == 0: fill[g].append(x_read(arr, 15 - a, b))
    def place(ops, gaps):
        for o, g in zip(ops, gaps): fill[g].append(o)
    if a <= 12:
        nb = wset(a + 2)
        place(w_read(a + 2, 0, nb + 0), opt.wo_gaps)
        place(w_read(a + 2, 1, nb + 4), opt.we_gaps)
    elif a == 14:
        nb = wset(0)
        place(w_read(16, 0, nb + 0), [0, 1])
        place(w_read(16, 1, nb + 4), [2, 3])
        place(w_read(15, 1, wset(15) + 8), [4, 5])
    elif a == 15:
        nb = wset(1)
        place(w_read(17, 0, nb + 0), [1, 3])
        place(w_read(17, 1, nb + 4), [9, 11])
    if a == 2: fill[12].append(("lds", "ds_read_b64 v[246:247], v248", [246, 247], []))
    valu = []; g0 = 0
    if a <= 13: valu = ws_valu(wset(a + 1)); g0 = opt.vstart
    elif a == 14: valu = ws_valu(wset(0)); g0 = 9
    if a == 0: valu = [("valu", f"v_xor_b32 v{V_XA2}, s37, v{V_XA2}", [], [])] + valu
    if a == 15:
        fill[12].append(("valu", f"v_xor_b32 v{V_XA0}, s37, v{V_XA0}", [], []))
        fill[13].append(("valu", f"v_xor_b32 v{V_XA1}, s37, v{V_XA1}", [], []))
    if valu:
        gaps = list(range(g0, ng)); n = len(valu)
        cap = {g: (max(0, opt.cap - len(fill[g])) if not (opt.ldsalone and fill[g]) else 0) for g in gaps}
        if opt.g0free and 0 in cap: cap[0] = 0
        if sum(cap.values()) < n:
            for g in gaps: cap[g] = max(cap[g], 1)
        assert sum(cap.values()) >= n
        tot = sum(cap.values()); i = 0; accq = 0.0
        for g in gaps:
            accq += cap[g] * n / tot
            take = min(int(accq + 1e-9) - i, cap[g])
            for _ in range(take):
                fill[g].append(valu[i]); i += 1
        while i < n:
            fill[ng - 1].append(valu[i]); i += 1
    out = []
    for g in range(ng):
        out.append(mf[g]); out += fill[g]
    return out

def emit_with_waits(A, ops, tr):
    for kind, text, dests, reads in ops:
        if reads:
            n = tr.need(reads)
            if n is not None: A(f"s_waitcnt lgkmcnt({n})")
        if kind == "label": A.label(text)
        else: A(text)
        if kind == "lds": tr.issue(dests)

NST = 6
def dstamp(A, k, opt):
    if not opt.dstamps: return
    A("s_memtime s[86:87]")
    A("s_waitcnt lgkmcnt(0)")
    A(f"v_writelane_b32 v245, s86, {k}")
def stamp(A, idx, opt):
    if not opt.stamps: return
    A(f"s_memtime s[{60+4*idx}:{61+4*idx}]")
    A(f"s_memrealtime s[{62+4*idx}:{63+4*idx}]")

XO, XW = 110, 120
RAW = 16
PT = 88
PD1, PD2 = 100, 104
NPT = 5
WHELP = [False]
BIG = 0x40000000

def pair_addr(A):
    A("v_lshrrev_b32 v11, 3, v5")
    A("v_and_b32 v12, 7, v5")
    A("s_lshl_b32 s44, s33, 9")
    A("s_lshl_b32 s42, s30, 3")
    A("s_add_u32 s42, s42, s31")
    A("s_sub_u32 s42, s42, 16")
    A("v_add_u32 v14, s42, v11")
    A("v_lshl_add_u32 v8, v12, 4, s44")
    A("v_lshl_add_u32 v15, v14, 11, v8")
    A("v_cmp_gt_i32 s[46:47], 0, v14")
    A("v_cmp_gt_i32 s[48:49], 1, v14")
    A("v_add_u32 v113, 0x10000, v15")
    A("v_add_u32 v10, 0xfffffc00, v15")
    A("v_mov_b32 v9, 0x40000000")
    A("v_add_u32 v112, 0xfc00, v15")
    A("v_cndmask_b32 v111, v15, v9, s[46:47]")
    A("v_cndmask_b32 v110, v10, v9, s[48:49]")
    A("v_and_b32 v7, 3, v12")
    A("v_lshrrev_b32 v6, 2, v12")
    A("v_lshlrev_b32 v6, 15, v6")
    A(f"v_mul_u32_u24 v10, {XROWG*64}, v11")
    A("s_lshl_b32 s41, s30, 6")
    A("v_add3_u32 v6, v6, v10, s41")
    A("v_lshl_add_u32 v120, v7, 4, v6")
    A("v_xor_b32 v7, 2, v7")
    A("v_lshl_add_u32 v121, v7, 4, v6")
    A("s_cmp_ge_u32 s30, 2")
    A(f"s_cselect_b32 s41, 0x40000000, {3*65536}")

def npt(): return 3 if WHELP[0] else NPT
def pair_loads(A):
    for t in range(npt()):
        b = RAW + 12 * t
        va, vb = (110, 111) if t == 0 else (112, 113)
        so = {0: "0", 1: "0", 2: "s42", 3: "s43", 4: "s41"}[t]
        if t == 2: A("s_mov_b32 s42, 0x10000")
        if t == 3: A("s_mov_b32 s43, 0x20000")
        A(f"buffer_load_dwordx4 {vr(b)}, v{va}, s[16:19], {so} offen")
        A(f"buffer_load_dwordx4 {vr(b+4)}, v{vb}, s[16:19], {so} offen")
        A(f"buffer_load_dwordx4 {vr(b+8)}, v{vb}, s[16:19], {so} offen offset:1024")

def job_loads(A, raw, offs, n):
    for t in range(n):
        b = raw + 12 * t
        A(f"buffer_load_dwordx4 {vr(b)}, v{offs+2*t}, s[16:19], 0 offen")
        A(f"buffer_load_dwordx4 {vr(b+4)}, v{offs+1+2*t}, s[16:19], 0 offen")
        A(f"buffer_load_dwordx4 {vr(b+8)}, v{offs+1+2*t}, s[16:19], 0 offen offset:1024")

def job_valu(A, b, pd1, pd2, ds=range(4)):
    for d in ds:
        m_, x0, x1 = b + d, b + 4 + d, b + 8 + d
        T = PT + 6 * (d & 1)
        A(f"v_lshlrev_b32 v{T}, 16, v{x0}")
        A(f"v_and_b32 v{T+1}, s36, v{x0}")
        A(f"v_lshlrev_b32 v{T+2}, 16, v{x1}")
        A(f"v_and_b32 v{T+3}, s36, v{x1}")
        A(f"v_lshlrev_b32 v{T+4}, 16, v{m_}")
        A(f"v_and_b32 v{T+5}, s36, v{m_}")
        A(f"v_sub_f32 v{T+2}, v{T+2}, v{T}")
        A(f"v_sub_f32 v{T+3}, v{T+3}, v{T+1}")
        A(f"v_sub_f32 v{T+4}, v{T+4}, v{T}")
        A(f"v_sub_f32 v{T+5}, v{T+5}, v{T+1}")
        A(f"v_cvt_pk_bf16_f32 v{pd2+d}, v{T+2}, v{T+3}")
        A(f"v_cvt_pk_bf16_f32 v{pd1+d}, v{T+4}, v{T+5}")

def pair_compute(A):
    for t in range(npt()):
        if t == 4:
            A("s_cmp_ge_u32 s30, 2")
            A("s_cbranch_scc1 L_pj")
        A(f"s_waitcnt vmcnt({3 * (npt() - 1 - t)})")
        b = RAW + 12 * t
        pd1, pd2 = PD1 + 28 * (t & 1), PD2 + 28 * (t & 1)
        job_valu(A, b, pd1, pd2)
        A(f"ds_write_b128 v{120 + (t & 1)}, {vr(pd1)} offset:{0*XARR + t*256}")
        A(f"ds_write_b128 v{120 + (t & 1)}, {vr(pd2)} offset:{1*XARR + t*256}")
        A(f"ds_write_b128 v{120 + (t & 1)}, {vr(b+4)} offset:{2*XARR + t*256}")
    A.label("L_pj")

RAW2, SO, SS = 16, 64, 72
def shared_addr(A):
    A("v_mov_b32 v83, 0x40000000")
    A("s_lshl_b32 s45, s33, 9")
    A("s_add_u32 s45, s45, 128")
    A("s_mul_i32 s46, s28, %d" % (XROWG * 64))
    A("s_lshl_b32 s44, s29, 18")
    A("s_add_u32 s46, s46, s44")
    A(f"s_add_u32 s46, s46, {WS_XIMG + 2*32768}")
    A("s_add_u32 s44, s31, s28")
    A("s_sub_u32 s44, s44, 16")
    A("s_movk_i32 s55, 911")
    A("v_and_b32 v10, 3, v5")
    for k in range(4):
        A(f"s_add_u32 s41, s40, {2*k}")
        A("s_lshl_b32 s41, s41, 6")
        A("v_add_u32 v11, s41, v5")
        A("v_mul_u32_u24 v12, s55, v11")
        A("v_lshrrev_b32 v12, 16, v12")
        A("v_mul_u32_u24 v13, 72, v12")
        A("v_sub_u32 v13, v11, v13")
        A("v_lshrrev_b32 v13, 2, v13")
        A("v_lshl_add_u32 v14, v13, 3, s44")
        A("v_lshlrev_b32 v15, 11, v14")
        A("v_lshl_add_u32 v15, v12, 6, v15")
        A("v_lshl_add_u32 v15, v10, 4, v15")
        A("v_add_u32 v15, s45, v15")
        A("v_add_u32 v82, 0xfffffc00, v15")
        A("v_cmp_gt_i32 s[48:49], 0, v14")
        A("v_cmp_gt_i32 s[50:51], 1, v14")
        A("v_cmp_le_u32 vcc, 0x1b0, v11")
        A("v_lshrrev_b32 v14, 1, v13")
        A("v_and_b32 v14, 2, v14")
        A("s_or_b64 s[48:49], s[48:49], vcc")
        A("s_or_b64 s[50:51], s[50:51], vcc")
        A("v_xor_b32 v14, v14, v10")
        A(f"v_cndmask_b32 v{SO+1+2*k}, v15, v83, s[48:49]")
        A(f"v_cndmask_b32 v{SO+2*k}, v82, v83, s[50:51]")
        A("v_lshlrev_b32 v14, 4, v14")
        A("v_lshl_add_u32 v14, v13, 6, v14")
        A("v_lshl_add_u32 v14, v12, 15, v14")
        A("v_add_u32 v14, s46, v14")
        A(f"v_cndmask_b32 v{SS+k}, v14, v83, vcc")

def wdma_addr(A):
    A("v_lshrrev_b32 v6, 3, v5")
    A("s_lshl_b32 s44, s40, 3")
    A("v_add_u32 v6, s44, v6")
    A("v_and_b32 v7, 7, v5")
    A("v_lshrrev_b32 v8, 1, v6")
    A("v_and_b32 v8, 1, v8")
    A("v_lshrrev_b32 v9, 2, v6")
    A("v_and_b32 v9, 2, v9")
    A("v_or_b32 v8, v9, v8")
    A("v_lshrrev_b32 v9, 1, v7")
    A("v_xor_b32 v8, v8, v9")
    A("v_lshlrev_b32 v8, 5, v8")
    A("v_and_b32 v9, 1, v7")
    A("v_lshl_add_u32 v8, v9, 4, v8")
    A("v_lshl_add_u32 v8, v6, 10, v8")
    A("s_lshl_b32 s44, s28, 7")
    A("v_add_u32 v1, s44, v8")
    A("s_lshl_b32 s42, s40, 10")
    A(f"s_add_u32 s42, s42, {WRING}")

def dma_text(sig, creg):
    out = []
    a = sig & 15
    for tile, tap in ((0, min(2 * a + 1, 30)), (1, 2 * a)):
        out.append(f"s_add_u32 m0, s42, {(sig % NSLOT) * WSLOT + tile * 4096}")
        if creg is None: out.append(f"s_mov_b32 s45, {tap * 262144}")
        else: out.append(f"s_add_u32 s45, {creg}, {tap * 262144}")
        out.append(f"buffer_load_dwordx4 v1, s[20:23], s45 offen lds")
    return out

_gid = [0]
def guard_begin(A, opt):
    if not opt.tdry: return None
    _gid[0] += 1
    lab = f"L_g{_gid[0]}"
    A(f"s_cbranch_execz {lab}")
    return lab
def guard_end(A, lab):
    if lab: A.label(lab)
def gbar(A, opt):
    g = guard_begin(A, opt); A("s_barrier"); guard_end(A, g)

def gen_main(opt):
    A = Asm()
    A.raw(f".globl {MAIN}\n.p2align 8\n.type {MAIN},@function\n{MAIN}:")
    A("s_cmp_ge_u32 s2, 256")
    A("s_cbranch_scc1 L_end")
    A("s_load_dwordx4 s[4:7], s[0:1], 0")
    A("s_load_dwordx4 s[8:11], s[0:1], 16")
    A("s_load_dwordx4 s[12:15], s[0:1], 32")
    if opt.codepf:
        A("s_getpc_b64 s[44:45]")
        A.label("L_pcref")
        A(f"s_sub_u32 s44, s44, L_pcref-{MAIN}")
        A("s_subb_u32 s45, s45, 0")
        A("v_lshlrev_b32 v11, 6, v0")
        A(f"v_min_u32 v11, L_end-{MAIN}, v11")
        A("global_load_dword v250, v11, s[44:45]")
    stamp(A, 0, opt)
    dstamp(A, 0, opt)
    A("v_lshrrev_b32 v1, 6, v0")
    A("v_and_b32 v5, 63, v0")
    A("v_readfirstlane_b32 s30, v1")
    if opt.map == "n8":
        A("s_and_b32 s28, s2, 7")
        A("s_lshr_b32 s29, s2, 3")
    elif opt.map == "m4":
        A("s_and_b32 s29, s2, 7")
        A("s_lshl_b32 s29, s29, 2")
        A("s_lshr_b32 s28, s2, 3")
        A("s_lshr_b32 s35, s28, 3")
        A("s_add_u32 s29, s29, s35")
        A("s_and_b32 s28, s28, 7")
    else:
        A("s_lshr_b32 s35, s2, 3")
        A("s_and_b32 s28, s2, 1")
        A("s_lshl_b32 s28, s28, 2")
        A("s_and_b32 s29, s35, 3")
        A("s_add_u32 s28, s28, s29")
        A("s_lshr_b32 s29, s2, 1")
        A("s_and_b32 s29, s29, 3")
        A("s_lshl_b32 s29, s29, 3")
        A("s_lshr_b32 s35, s35, 2")
        A("s_add_u32 s29, s29, s35")
    A("s_and_b32 s31, s29, 7")
    A("s_lshl_b32 s31, s31, 7")
    A("s_lshr_b32 s32, s29, 3")
    A("s_and_b32 s33, s32, 1")
    A("s_lshr_b32 s34, s32, 1")
    A("v_mov_b32 v84, 0")
    A("v_mov_b32 v85, 0")
    A("s_mov_b32 s36, 0xffff0000")
    A("s_mov_b32 s91, 0x00003f80")
    A("s_mov_b32 s92, 0x3f800000")
    A(f"s_mov_b32 s37, {XBUF}")
    A("s_mul_i32 s35, s34, 2048000")
    A("s_and_b32 s40, s30, 3")
    A("s_cmp_ge_u32 s30, 4")
    A("s_cbranch_scc1 L_prod")

    pair_addr(A)
    dstamp(A, 1, opt)
    A("s_waitcnt lgkmcnt(0)")
    A("s_add_u32 s16, s4, s35")
    A("s_addc_u32 s17, s5, 0")
    A("s_mov_b32 s18, 2048000")
    A("s_mov_b32 s19, 0x20000")
    pair_loads(A)
    A("s_mov_b32 s20, s6")
    A("s_mov_b32 s21, s7")
    A(f"s_mov_b32 s22, {31*256*512*2}")
    A("s_mov_b32 s23, 0x20000")
    A("s_mov_b32 s24, s14")
    A("s_mov_b32 s25, s15")
    A(f"s_mov_b32 s26, {WS_BYTES}")
    A("s_mov_b32 s27, 0x20000")
    dstamp(A, 2, opt)
    for q in ("Q1", "Q2", "Q0"):
        for i in range(32): A(f"v_mov_b32 v{ACC[q]+i}, 0")
    dstamp(A, 3, opt)
    if opt.dstamps:
        A(f"s_waitcnt vmcnt({3*(npt()-1)})")
        dstamp(A, 4, opt)
    pair_compute(A)
    dstamp(A, 5, opt)
    A("v_and_b32 v6, 15, v5")
    A("v_lshrrev_b32 v7, 4, v5")
    for q0, reg in ((0, V_XA0), (1, V_XA1), (2, V_XA2)):
        A(f"v_add_u32 v8, {q0}, v6")
        A("v_lshrrev_b32 v8, 1, v8")
        A("v_and_b32 v8, 2, v8")
        A("v_xor_b32 v8, v8, v7")
        A("v_lshlrev_b32 v8, 4, v8")
        A(f"v_lshl_add_u32 v{reg}, v6, 6, v8")
    A("v_lshrrev_b32 v8, 2, v6")
    A("v_and_b32 v9, 3, v6")
    A("v_lshrrev_b32 v10, 1, v8")
    A("v_and_b32 v10, 1, v10")
    A("v_and_b32 v11, 1, v7")
    A("v_lshl_or_b32 v10, v11, 1, v10")
    A("v_xor_b32 v10, s30, v10")
    A("v_lshlrev_b32 v10, 5, v10")
    A("v_lshl_add_u32 v11, v7, 3, v8")
    A("v_lshl_add_u32 v10, v11, 7, v10")
    A("v_lshl_add_u32 v10, v9, 3, v10")
    A(f"v_add_u32 v{V_WA}, {WRING}, v10")
    A(f"v_mov_b32 v248, {MODE_LDS}")
    A("s_waitcnt vmcnt(0) lgkmcnt(0)")
    dstamp(A, 6, opt)
    A("s_barrier")
    dstamp(A, 7, opt)
    stamp(A, 1, opt)
    tr = LdsTracker()
    pro = w_read(0, 0, wset(0)) + w_read(0, 1, wset(0) + 4)
    for jj in range(7, -1, -1): pro.append(x_read("D1", 16 + jj, WIN["D1"] + 4 * jj, nxt=True))
    pro += w_read(1, 0, wset(1)) + w_read(1, 1, wset(1) + 4)
    for arr in ("D2", "X0"):
        for jj in range(7, -1, -1): pro.append(x_read(arr, 16 + jj, WIN[arr] + 4 * jj, nxt=True))
    pro += ws_valu(wset(0))
    emit_with_waits(A, pro, tr)
    A("s_waitcnt lgkmcnt(0)")
    dstamp(A, 8, opt)
    tr.waitall()
    A("s_mov_b32 s38, 8")
    if opt.cstamps:
        A("s_memtime s[84:85]")
        A("s_waitcnt lgkmcnt(0)")
    DRY_EXIT = {5: "L_wdry_ret", 10: "L_wdry_ret", 13: "L_adry_ret"}
    def body(AA, tr):
        for a in range(16):
            if opt.dry:
                if a in DRY_EXIT: AA(f"s_cbranch_execz {DRY_EXIT[a]}")
                AA.label(f"L_cp{a}")
            if a == 15:
                AA("s_waitcnt lgkmcnt(0)"); tr.waitall()
            ops = gen_period(a, opt)
            bar = [("bar", "s_barrier", [], [])]
            if opt.dry: bar = [("bar", f"s_cbranch_execz L_nb{a}", [], []), ("bar", "s_barrier", [], []), ("label", f"L_nb{a}", [], [])]
            if opt.bar_after:
                k = opt.bar_after
                mi = [i for i, o in enumerate(ops) if o[0] == "mfma"]
                moved = [o for i, o in enumerate(ops[:mi[k-1]+1]) if o[0] == "lds"]
                keepv = [(i, o) for i, o in enumerate(ops[:mi[k-1]+1]) if o[0] != "lds"]
                ops = [o for i, o in keepv] + bar + moved + ops[mi[k-1]+1:]
            else:
                ops = bar + ops
            emit_with_waits(AA, ops, tr)
        if opt.dry: AA("s_cbranch_execz L_adry_ret")
    body(Null(), tr)
    if opt.align: A.raw(".p2align 6")
    A.label("L_cloop")
    body(A, tr)
    if opt.cstamps:
        A("s_mov_b32 m0, s38")
        A("s_nop 0")
        A("v_writelane_b32 v244, s84, m0")
        A("s_memtime s[84:85]")
    A("s_sub_u32 s38, s38, 1")
    A("s_cmp_lg_u32 s38, 0")
    A("s_cbranch_scc1 L_cloop")
    if opt.cstamps:
        A("s_waitcnt lgkmcnt(0)")
        A("v_writelane_b32 v244, s84, 0")
    A.label("L_cepi")
    stamp(A, 2, opt)
    dstamp(A, 50, opt)
    A("v_and_b32 v6, 15, v5")
    A("v_lshrrev_b32 v7, 4, v5")
    A("s_lshl_b32 s39, s30, 2")
    A("v_add_u32 v8, s39, v7")
    A("v_and_b32 v9, 7, v6")
    A("v_lshlrev_b32 v9, 1, v9")
    A("v_xor_b32 v8, v8, v9")
    A("v_lshlrev_b32 v8, 3, v8")
    A("v_lshl_add_u32 v1, v6, 7, v8")
    A(f"v_add_u32 v1, {HST}, v1")
    if opt.st128:
        A("v_lshrrev_b32 v8, 1, v7")
        A("s_lshl_b32 s39, s30, 1")
        A("v_add_u32 v8, s39, v8")
        A("v_and_b32 v9, 7, v6")
        A("v_xor_b32 v8, v8, v9")
        A("v_lshlrev_b32 v8, 4, v8")
        A("v_lshl_add_u32 v8, v6, 7, v8")
        A("v_and_b32 v9, 1, v7")
        A("v_lshl_add_u32 v8, v9, 11, v8")
        A(f"v_add_u32 v1, {HST}, v8")
    A("s_nop 4")
    A("s_waitcnt lgkmcnt(0)")
    dstamp(A, 40, opt)
    for hb in range(2):
        blocks = [(m, q) for m in range(4 * hb, 4 * hb + 4) for q in range(2)]
        for (m, q) in blocks:
            a0 = ACC["Q0"] + 4 * m; a1 = ACC["Q1" if q == 0 else "Q2"] + 4 * m
            if opt.epk:
                A(f"v_pk_add_f32 {vr(a1,2)}, {vr(a0,2)}, {vr(a1,2)}")
                A(f"v_pk_add_f32 {vr(a1+2,2)}, {vr(a0+2,2)}, {vr(a1+2,2)}")
            else:
                for i in range(4): A(f"v_add_f32 v{a1+i}, v{a0+i}, v{a1+i}")
        for k, (m, q) in enumerate(blocks):
            a1 = ACC["Q1" if q == 0 else "Q2"] + 4 * m
            t = 8 + 2 * k + 16 * hb
            A(f"v_cvt_pk_bf16_f32 v{t}, v{a1}, v{a1+1}")
            A(f"v_cvt_pk_bf16_f32 v{t+1}, v{a1+2}, v{a1+3}")
        if opt.st128:
            for k in range(0, 8, 2):
                t = 8 + 2 * k + 16 * hb
                A(f"v_permlane16_swap_b32 v{t}, v{t+2}")
                A(f"v_permlane16_swap_b32 v{t+1}, v{t+3}")
            for k in range(0, 8, 2):
                t = 8 + 2 * k + 16 * hb
                A(f"ds_write_b128 v1, {vr(t)} offset:{blocks[k][0]*4096}")
        else:
            for k, (m, q) in enumerate(blocks):
                t = 8 + 2 * k + 16 * hb
                A(f"ds_write_b64 v1, {vr(t,2)} offset:{(2*m+q)*16*128}")
        if hb == 0 and opt.half2:
            dstamp(A, 41, opt)
            A("s_waitcnt lgkmcnt(0)")
            dstamp(A, 42, opt)
            gbar(A, opt)
            dstamp(A, 43, opt)
    A("s_waitcnt lgkmcnt(0)")
    dstamp(A, 51, opt)
    if opt.tdry: A("s_cbranch_execz L_store_p")
    A("s_branch L_store")

    srd_x = ["s_add_u32 s16, s4, s35", "s_addc_u32 s17, s5, 0", "s_mov_b32 s18, 2048000", "s_mov_b32 s19, 0x20000"]
    srd_w = ["s_mov_b32 s20, s6", "s_mov_b32 s21, s7", f"s_mov_b32 s22, {31*256*512*2}", "s_mov_b32 s23, 0x20000"]
    srd_s = ["s_mov_b32 s24, s14", "s_mov_b32 s25, s15", f"s_mov_b32 s26, {WS_BYTES}", "s_mov_b32 s27, 0x20000"]
    class Role:
        def __init__(self): self.vm = []; self.waits = {}; self.mode = "sim"; self.E = Null()
        def cnt(self, tag):
            l = [i for i, x in enumerate(self.vm) if x == tag]
            if not l: return 63
            return len(self.vm) - max(l) - 1
        def site(self, key, tag, extra=""):
            if self.mode == "sim": self.waits[key] = min(self.waits.get(key, 63), self.cnt(tag), 63)
            else: self.E(f"s_waitcnt vmcnt({self.waits[key]}){extra}")
    def wodma(R, i0):
        R.E(f"s_add_u32 m0, s56, {i0*1024}")
        R.E(f"s_add_u32 s45, s56, {i0*1024}")
        R.E(f"buffer_load_dwordx4 v8, s[52:55], s45 offen lds")
        R.vm.append("wo")
    def wo_setup(E):
        for l in ["s_mov_b32 s52, s8", "s_mov_b32 s53, s9", "s_mov_b32 s54, 131072", "s_mov_b32 s55, 0x20000",
                  "s_and_b32 s40, s30, 3", "s_lshl_b32 s56, s40, 10",
                  "v_lshrrev_b32 v12, 5, v5", "s_and_b32 s44, s40, 1", "s_lshl_b32 s44, s44, 1", "v_add_u32 v13, s44, v12",
                  "v_lshlrev_b32 v13, 2, v13", "v_and_b32 v8, 31, v5", "v_xor_b32 v8, v8, v13", "v_lshlrev_b32 v8, 4, v8",
                  "v_lshl_add_u32 v8, v12, 9, v8"]: E(l)
    def wo_sched(R, a):
        if opt.split: return
        if a < 8: wodma(R, 4 * a)
        else:
            for k in range(2): wodma(R, 64 + 8 * (a - 8) + 4 * k)
        if a == 15:
            for k in range(8): wodma(R, 32 + 4 * k)

    A.label("L_prod")
    A("s_cmp_ge_u32 s30, 6")
    A("s_cbranch_scc1 L_aux")
    RW = Role()
    def wdma(R, sig, creg):
        a = sig & 15
        for tile, tap in ((0, min(2 * a + 1, 30)), (1, 2 * a)):
            for h in range(2):
                R.E(f"s_add_u32 m0, s42, {(sig % NSLOT) * WSLOT + tile * 4096 + h * 2048}")
                if creg is None: R.E(f"s_mov_b32 s45, {tap * 262144 + h * 16384}")
                else: R.E(f"s_add_u32 s45, {creg}, {tap * 262144 + h * 16384}")
                R.E(f"buffer_load_dwordx4 v1, s[20:23], s45 offen lds")
                R.vm.append(("w", sig))
    def w_pair_addr():
        A("v_lshrrev_b32 v11, 3, v5")
        A("v_and_b32 v12, 7, v5")
        A("s_lshl_b32 s44, s33, 9")
        A("s_add_u32 s45, s40, 12")
        A("s_lshl_b32 s45, s45, 3")
        A("s_add_u32 s45, s45, s31")
        A("s_sub_u32 s45, s45, 16")
        A("v_add_u32 v14, s45, v11")
        A("v_lshl_add_u32 v8, v12, 4, s44")
        A("v_lshl_add_u32 v113, v14, 11, v8")
        A("v_add_u32 v112, 0xfffffc00, v113")
        A("v_and_b32 v7, 3, v12")
        A("v_lshrrev_b32 v6, 2, v12")
        A("v_lshlrev_b32 v6, 15, v6")
        A(f"v_mul_u32_u24 v10, {XROWG*64}, v11")
        A("s_add_u32 s45, s40, 12")
        A("s_lshl_b32 s45, s45, 6")
        A("v_add3_u32 v6, v6, v10, s45")
        A("v_lshl_add_u32 v120, v7, 4, v6")
        A("v_xor_b32 v7, 2, v7")
        A("v_lshl_add_u32 v121, v7, 4, v6")
    def w_prologue(R):
        E = R.E
        if opt.whelp:
            for sg in range(2): wdma(R, sg, None)
            for t in range(3):
                b_ = RAW + 12 * t
                E(f"s_mov_b32 s45, {t*32768}")
                E(f"buffer_load_dwordx4 {vr(b_)}, v112, s[16:19], s45 offen")
                E(f"buffer_load_dwordx4 {vr(b_+4)}, v113, s[16:19], s45 offen")
                E(f"buffer_load_dwordx4 {vr(b_+8)}, v113, s[16:19], s45 offen offset:1024")
                R.vm.extend([("xp", t)] * 3)
            for sg in range(2, opt.w_early): wdma(R, sg, None)
            for t in range(3):
                R.site(("xp", t), ("xp", t))
                if R.mode == "emit":
                    b_ = RAW + 12 * t
                    pd1, pd2 = PD1 + 28 * (t & 1), PD2 + 28 * (t & 1)
                    job_valu(A, b_, pd1, pd2)
                    ar = 121 if t < 2 else 120
                    A(f"ds_write_b128 v{ar}, {vr(pd1)} offset:{0*XARR + t*128}")
                    A(f"ds_write_b128 v{ar}, {vr(pd2)} offset:{1*XARR + t*128}")
                    A(f"ds_write_b128 v{ar}, {vr(b_+4)} offset:{2*XARR + t*128}")
            E("s_waitcnt lgkmcnt(0)")
        else:
            for sg in range(opt.w_early): wdma(R, sg, None)
        if opt.tdry and R.mode == "emit":
            A("s_mov_b32 s94, 1")
            A("s_mov_b64 exec, 0")
            A("s_cmp_eq_u32 s30, 4")
            A("s_cbranch_scc1 L_cepi")
            A("s_branch L_hst")
            A.label("L_tdry_ret")
            A("s_mov_b64 exec, -1")
        if R.mode == "emit":
            dstamp(A, 3, opt)
            if opt.dstamps and not opt.whelp:
                A(f"s_waitcnt vmcnt({4*opt.w_early - 2})"); dstamp(A, 4, opt)
                A(f"s_waitcnt vmcnt({4*(opt.w_early-1)})"); dstamp(A, 5, opt)
        E("s_mov_b32 s50, 0"); E("s_mov_b32 s51, 32768")
        if opt.dry and R.mode == "emit":
            A("s_mov_b64 exec, 0")
            A("s_cmp_eq_u32 s30, 4")
            A("s_cbranch_scc1 L_cp0")
            A("s_branch L_cp5")
            A.label("L_wdry_ret")
            A("s_mov_b64 exec, -1")
        R.site(("p1",), ("w", 1))
        if R.mode == "emit": dstamp(A, 6, opt)
        E("s_barrier")
        if R.mode == "emit": dstamp(A, 7, opt)
        for sg in range(opt.w_early, 8): wdma(R, sg, None)
        R.site(("p2",), ("w", 2))
        if R.mode == "emit": dstamp(A, 9, opt)
    def w_body(R, kind, c):
        E = R.E
        for a in range(16):
            s = 16 * c + a
            if kind == "first" and R.mode == "emit": dstamp(A, 32 + a, opt)
            E("s_barrier")
            if kind == "first" and R.mode == "emit": dstamp(A, 16 + a, opt)
            sig = s + 8
            if sig < 128: wdma(R, sig, "s51" if a >= 8 else "s50")
            if kind == "last": wo_sched(R, a)
            if a == 15 and kind != "last":
                E("s_mov_b32 s50, s51"); E("s_add_u32 s51, s51, 32768")
            if s + 3 < 128: R.site(("w", kind, a), ("w", s + 3))
    def w_all(R, loop):
        w_prologue(R)
        w_body(R, "first", 0)
        if loop:
            A("s_mov_b32 s38, 6"); A.label("L_wloop")
            w_body(R, "mid", 1)
            A("s_sub_u32 s38, s38, 1"); A("s_cmp_lg_u32 s38, 0"); A("s_cbranch_scc1 L_wloop")
        else:
            for c in range(1, 7): w_body(R, "mid", c)
        R.E(f"v_mov_b32 v13, {MODE_LDS}")
        R.E("ds_read_b32 v12, v13")
        R.E("s_waitcnt lgkmcnt(0)")
        R.E("v_readfirstlane_b32 s94, v12")
        wo_setup(R.E)
        w_body(R, "last", 7)
    wdma_addr(A)
    if opt.whelp: w_pair_addr()
    dstamp(A, 1, opt)
    A("s_waitcnt lgkmcnt(0)")
    for l in srd_w + srd_s + srd_x: A(l)
    if opt.pf0:
        A("v_and_b32 v11, 15, v5")
        A("s_lshl_b32 s44, s40, 4")
        A("v_add_u32 v11, s44, v11")
        A("v_lshlrev_b32 v11, 10, v11")
        A("s_lshl_b32 s44, s28, 7")
        A("v_add_u32 v11, s44, v11")
        A("s_mul_i32 s44, s29, 262144")
        A("buffer_load_dword v12, v11, s[20:23], s44 offen")
    if opt.ptouch:
        A("s_lshr_b32 s44, s2, 3")
        A("s_lshl_b32 s44, s44, 1")
        A("s_add_u32 s44, s44, s40")
        A("v_lshlrev_b32 v11, 16, v5")
        A("s_cmp_eq_u32 s44, 0"); A("s_cbranch_scc0 L_pt1")
        A("buffer_load_dword v12, v11, s[20:23], 0 offen"); A("s_branch L_ptd")
        A.label("L_pt1"); A("s_cmp_eq_u32 s44, 1"); A("s_cbranch_scc0 L_pt2")
        A("s_mov_b32 s45, 0x400000"); A("buffer_load_dword v12, v11, s[20:23], s45 offen"); A("s_branch L_ptd")
        A.label("L_pt2"); A("s_cmp_eq_u32 s44, 2"); A("s_cbranch_scc0 L_pt4")
        A("v_min_u32 v11, 0x3e7ffc, v11"); A("global_load_dword v12, v11, s[10:11]"); A("s_branch L_ptd")
        A.label("L_pt4"); A("s_cmp_eq_u32 s44, 3"); A("s_cbranch_scc0 L_ptd")
        A("v_min_u32 v11, 0x3e7ffc, v11"); A("global_load_dword v12, v11, s[4:5]")
        A.label("L_ptd")
    w_all(RW, False)
    RW.vm = []; RW.mode = "emit"; RW.E = A
    w_all(RW, True)
    A("s_branch L_store_p")

    A.label("L_aux")
    RA = Role()
    A("s_and_b32 s40, s30, 1")
    shared_addr(A)
    A("v_and_b32 v11, 15, v5")
    A("s_lshl_b32 s44, s40, 4")
    A("v_add_u32 v11, s44, v11")
    A("v_lshlrev_b32 v11, 10, v11")
    A("s_lshl_b32 s44, s28, 7")
    A("v_add_u32 v11, s44, v11")
    A("s_mul_i32 s44, s29, 262144")
    A("v_add_u32 v82, s44, v11")
    A("s_mov_b32 s90, 32768")
    A("s_and_b32 s44, s29, 15")
    A("s_lshl_b32 s44, s44, 1")
    A("s_add_u32 s44, s44, s40")
    A("s_lshl_b32 s44, s44, 5")
    A("v_and_b32 v83, 31, v5")
    A("v_add_u32 v83, s44, v83")
    A("v_lshlrev_b32 v83, 7, v83")
    A("v_lshlrev_b32 v2, 4, v5")
    A("s_lshl_b32 s56, s40, 10")
    A("s_lshl_b32 s57, s29, 18")
    A("s_add_u32 s57, s57, s56")
    A(f"s_add_u32 s57, s57, {WS_XIMG + 2*32768}")
    A("s_mov_b32 s58, s56")
    A("s_getreg_b32 s93, hwreg(HW_REG_XCC_ID)")
    A("s_and_b32 s93, s93, 15")
    A("v_mov_b32 v86, 0")
    A("s_lshl_b32 s59, s29, 3")
    A("s_add_u32 s59, s59, s28")
    A("s_lshl_b32 s59, s59, 7")
    A(f"s_add_u32 s59, s59, {WS_FLAGS}")
    A("v_mov_b32 v84, s59")
    A("v_and_b32 v85, 7, v5")
    A("s_lshl_b32 s59, s29, 10")
    A(f"s_add_u32 s59, s59, {WS_FLAGS}")
    A("v_lshl_add_u32 v85, v85, 7, s59")
    if opt.wtouch:
        A("v_and_b32 v11, 31, v5")
        A("v_lshlrev_b32 v11, 7, v11")
        A("s_lshl_b32 s44, s29, 18")
        A("s_lshl_b32 s45, s28, 12")
        A("s_add_u32 s44, s44, s45")
        A("s_lshl_b32 s45, s40, 17")
        A("s_add_u32 s44, s44, s45")
        A("v_add_u32 v76, s44, v11")
        A("s_mov_b32 s95, 0")
        A("v_lshrrev_b32 v11, 2, v5")
        A("v_lshlrev_b32 v11, 3, v11")
        A("s_add_u32 s44, s31, s28")
        A("v_add_u32 v11, s44, v11")
        A("v_lshlrev_b32 v11, 11, v11")
        A("v_and_b32 v12, 3, v5")
        A("v_lshl_add_u32 v11, v12, 7, v11")
        A("s_lshl_b32 s44, s33, 9")
        A("s_lshl_b32 s45, s40, 10")
        A("s_add_u32 s44, s44, s45")
        A("v_add_u32 v77, s44, v11")
    dstamp(A, 1, opt)
    A("s_waitcnt lgkmcnt(0)")
    for l in srd_x + srd_w + srd_s: A(l)
    def xdma(R, c1, k):
        R.E(f"s_add_u32 m0, s58, {k*2048}")
        R.E(f"s_add_u32 s45, s57, {k*2048}")
        R.E(f"buffer_load_dwordx4 v2, s[24:27], s45 offen {'' if opt.xplain else 'sc1 '}lds")
        R.vm.append(("x", c1))
    def spin(R, name, load, check, fail_branch):
        E = R.E
        E("s_mov_b32 s46, 0x100000")
        if R.mode == "emit": A.label(f"L_{name}spin")
        E("s_sleep 2"); E(load); E("s_waitcnt vmcnt(0)")
        for l in check[0]: E(l)
        E("s_sub_u32 s46, s46, 1"); E("s_cmp_eq_u32 s46, 0"); E(f"s_cbranch_scc1 L_{name}ok")
        for l in check[1]: E(l)
        E(f"{fail_branch} L_{name}spin")
        if R.mode == "emit": A.label(f"L_{name}ok")
    def xstores(R, t):
        E = R.E
        E(f"s_mov_b32 s45, {XARR}")
        E(f"s_mov_b32 s46, {2*XARR}")
        E(f"buffer_store_dwordx4 {vr(128 + 8*t)}, v{SS+t}, s[24:27], 0 offen sc1")
        E(f"buffer_store_dwordx4 {vr(132 + 8*t)}, v{SS+t}, s[24:27], s45 offen sc1")
        E(f"buffer_store_dwordx4 {vr(RAW2 + 12*t + 4)}, v{SS+t}, s[24:27], s46 offen sc1")
        R.vm.extend(["xs"] * 3)
    def a_loads(R):
        E = R.E
        for t in range(4):
            b_ = RAW2 + 12 * t
            E(f"buffer_load_dwordx4 {vr(b_)}, v{SO+2*t}, s[16:19], 0 offen")
            E(f"buffer_load_dwordx4 {vr(b_+4)}, v{SO+1+2*t}, s[16:19], 0 offen")
            E(f"buffer_load_dwordx4 {vr(b_+8)}, v{SO+1+2*t}, s[16:19], 0 offen offset:1024")
            R.vm.extend([("x2", t)] * 3)
    def a_prologue(R):
        E = R.E
        if not opt.late: a_loads(R)
        if R.mode == "emit":
            for l in ["s_cmp_lg_u32 s2, 0", "s_cbranch_scc1 L_nononce", "s_cmp_lg_u32 s30, 6", "s_cbranch_scc1 L_nononce",
                      "s_memrealtime s[46:47]", "s_waitcnt lgkmcnt(0)", "s_and_b32 s46, s46, 0xfffffff0", "s_or_b32 s46, s46, 16", "v_mov_b32 v7, s46",
                      "s_mov_b64 exec, 1", "global_store_dword v86, v7, s[12:13] sc1", "s_mov_b64 exec, -1"]: A(l)
            A.label("L_nononce")
            dstamp(A, 3, opt)
            if opt.dry:
                A("s_mov_b64 exec, 0")
                A("s_cmp_eq_u32 s30, 6")
                A("s_cbranch_scc1 L_cp10")
                A("s_branch L_cp13")
                A.label("L_adry_ret")
                A("s_mov_b64 exec, -1")
        if R.mode == "emit": dstamp(A, 6, opt)
        E("s_barrier")
        if R.mode == "emit": dstamp(A, 7, opt)
        if opt.late: a_loads(R)
        for t in range(opt.nwin):
            R.site(("x2", t), ("x2", t))
            if R.mode == "emit": job_valu(A, RAW2 + 12 * t, 128 + 8 * t, 132 + 8 * t)
        if R.mode == "emit": dstamp(A, 9, opt)
    def a_body(R, kind, c):
        E = R.E
        for a in range(16):
            if kind == "first" and R.mode == "emit": dstamp(A, 32 + a, opt)
            E("s_barrier")
            if kind == "first" and R.mode == "emit": dstamp(A, 16 + a, opt)
            if opt.prefetch and kind != "last" and a == opt.pf_a:
                E("buffer_load_dword v119, v82, s[20:23], s90 offen")
                E("s_add_u32 s90, s90, 32768")
                R.vm.append("pf")
            if opt.prefetch and kind == "first" and a == 12:
                E("global_load_dword v118, v83, s[8:9]")
                R.vm.append("pf")
            if kind == "first":
                rem = [(t, d) for t in range(opt.nwin, 4) for d in range(4)]
                for (t, d) in (rem[2*(a-opt.v0a):2*(a-opt.v0a)+2] if a >= opt.v0a else []):
                    if d == 0: R.site(("x2", t), ("x2", t))
                    if R.mode == "emit": job_valu(A, RAW2 + 12 * t, 128 + 8 * t, 132 + 8 * t, [d])
                st_at = {0: opt.st0, 1: opt.st0 + 2, 2: opt.st0 + 4, 3: opt.st0 + 6}
                if opt.late: st_at = {t: opt.v0a + 2 * t + 2 for t in range(4)}
                for t in range(4):
                    if a == st_at[t]: xstores(R, t)
                if a == opt.sig_a - 2:
                    E("global_load_dword v87, v86, s[12:13] sc1")
                    R.vm.append("nonce")
                if a == opt.sig_a - 1:
                    R.site(("nonce",), "nonce")
                    E("v_readfirstlane_b32 s47, v87")
                    E("s_cmp_lg_u32 s47, 0")
                    E("s_cbranch_scc1 L_nok")
                    spin(R, "n", "global_load_dword v87, v86, s[12:13] sc1", (["v_readfirstlane_b32 s47, v87"], ["s_cmp_eq_u32 s47, 0"]), "s_cbranch_scc1")
                    R.site(("sig",), "xs")
                if a == opt.sig_a:
                    E("s_cmp_lg_u32 s30, 6")
                    E("s_cbranch_scc1 L_nosig")
                    E("s_or_b32 s44, s47, s93")
                    E("v_mov_b32 v11, s44")
                    E("s_mov_b64 exec, 1")
                    E("global_store_dword v84, v11, s[14:15] sc1")
                    E("s_mov_b64 exec, -1")
                    if R.mode == "emit": A.label("L_nosig")
                if a == opt.poll_a - 2:
                    E("global_load_dword v87, v85, s[14:15] sc1")
                    R.vm.append("poll")
                if a == opt.poll_a - 1:
                    R.site(("poll",), "poll")
                    E("v_and_b32 v12, -16, v87")
                    E("v_cmp_eq_u32 vcc, s47, v12")
                    E("s_nop 1")
                    E("s_cmp_eq_u64 vcc, -1")
                    E("s_cbranch_scc1 L_xok")
                    spin(R, "x", "global_load_dword v87, v85, s[14:15] sc1", (["v_and_b32 v12, -16, v87", "v_cmp_eq_u32 vcc, s47, v12"], ["s_cmp_eq_u64 vcc, -1"]), "s_cbranch_scc0")
                    E("s_or_b32 s44, s47, s93")
                    E("v_cmp_eq_u32 vcc, s44, v87")
                    E("s_mov_b32 s94, 0")
                    E("s_nop 0")
                    E("s_cmp_eq_u64 vcc, -1")
                    E("s_cselect_b32 s94, 1, 0")
                    if opt.slowmode: E("s_mov_b32 s94, 0")
                    E("v_mov_b32 v12, s94")
                    E("v_mov_b32 v13, s47")
                    E(f"v_mov_b32 v14, {MODE_LDS}")
                    E("ds_write_b64 v14, v[12:13]")
                    E("s_waitcnt lgkmcnt(0)")
            elif kind == "mid":
                if 1 <= a <= 8:
                    for k in range(2):
                        kk = 2 * (a - 1) + k
                        if kk < 15: xdma(R, c + 1, kk)
                if a == 13: R.site(("xl",), ("x", c + 1))
                if opt.otouch and a == 14:
                    E("s_cmp_lg_u32 s38, %d" % opt.otouch)
                    E("s_cbranch_scc1 L_noot")
                    E("s_add_u32 s60, s10, s35"); E("s_addc_u32 s61, s11, 0"); E("s_mov_b32 s62, 2048000"); E("s_mov_b32 s63, 0x20000")
                    E("buffer_load_dword v115, v77, s[60:63], 0 offen")
                    if R.mode == "emit": A.label("L_noot")
                if opt.wtouch and a in opt.wt_a:
                    E("s_cmp_gt_u32 s38, %d" % opt.wt_it)
                    E(f"s_cbranch_scc1 L_nowt{a}")
                    E("buffer_load_dword v117, v76, s[24:27], s95 offen")
                    E("s_add_u32 s95, s95, 32768")
                    if R.mode == "emit": A.label(f"L_nowt{a}")
                if a == 15:
                    E("s_add_u32 s57, s57, 32768")
                    E(f"s_xor_b32 s58, s58, {XBUF}")
            elif kind == "last":
                if opt.tailpf >= 0 and a == opt.tailpf and R.mode == "emit":
                    A("s_getpc_b64 s[44:45]")
                    A.label("L_pcref2")
                    A(f"s_sub_u32 s44, s44, L_pcref2-{MAIN}")
                    A("s_subb_u32 s45, s45, 0")
                    A("v_lshlrev_b32 v11, 6, v5")
                    A(f"v_add_u32 v12, L_cepi-{MAIN}, v11")
                    A(f"v_add_u32 v13, L_store_p-{MAIN}, v11")
                    A("s_cmp_eq_u32 s30, 6")
                    A("s_cselect_b64 vcc, -1, 0")
                    A("v_cndmask_b32 v11, v13, v12, vcc")
                    A(f"v_min_u32 v11, L_end-{MAIN}, v11")
                    A("global_load_dword v114, v11, s[44:45]")
                wo_sched(R, a)
    def a_all(R, loop):
        a_prologue(R)
        a_body(R, "first", 0)
        if loop:
            A("s_mov_b32 s38, 6"); A.label("L_aloop")
            a_body(R, "mid", 1)
            A("s_sub_u32 s38, s38, 1"); A("s_cmp_lg_u32 s38, 0"); A("s_cbranch_scc1 L_aloop")
        else:
            for c in range(1, 7): a_body(R, "mid", c)
        wo_setup(R.E)
        a_body(R, "last", 7)
    a_all(RA, False)
    RA.vm = []; RA.mode = "emit"; RA.E = A
    a_all(RA, True)

    A.label("L_store_p")
    dstamp(A, 50, opt)
    A("v_and_b32 v1, 7, v5")
    A("v_lshrrev_b32 v2, 3, v5")
    A("s_and_b32 s40, s30, 3")
    A("s_lshl_b32 s41, s40, 3")
    A("v_add_u32 v2, s41, v2")
    A("v_and_b32 v3, 7, v2")
    A("v_xor_b32 v3, v3, v1")
    A("v_lshlrev_b32 v3, 4, v3")
    A("v_lshl_add_u32 v3, v2, 7, v3")
    A(f"v_add_u32 v3, {HST}, v3")
    A("v_lshlrev_b32 v4, 7, v2")
    A("v_lshl_add_u32 v4, v1, 4, v4")
    A("s_lshl_b32 s39, s29, 18")
    A("s_lshl_b32 s40, s28, 12")
    A("s_add_u32 s39, s39, s40")
    halves = [range(0, 4), range(4, 8)] if opt.half2 else [range(0, 8)]
    for hi_, blk in enumerate(halves):
        if hi_ == len(halves) - 1:
            A("s_waitcnt vmcnt(%d)" % (14 if opt.half2 else 10))
        dstamp(A, 51, opt) if hi_ == 0 else None
        gbar(A, opt)
        dstamp(A, 52, opt) if hi_ == len(halves) - 1 else None
        n = len(blk)
        for i in blk: A(f"ds_read_b128 {vr(16+4*i)}, v3 offset:{i*32*128}")
        A("s_cmp_eq_u32 s94, 1")
        A(f"s_cbranch_scc1 L_hfast{hi_}")
        for fl, lab in (("sc1", None), (opt.fastflags, f"L_hfast{hi_}")):
            if lab: A.label(lab)
            g = guard_begin(A, opt)
            for k, i in enumerate(blk):
                A(f"s_waitcnt lgkmcnt({n-1-k})")
                A(f"s_add_u32 s41, s39, {i*32768}")
                A(f"buffer_store_dwordx4 {vr(16+4*i)}, v4, s[24:27], s41 offen {fl}")
            guard_end(A, g)
            if not lab: A(f"s_branch L_hs{hi_}")
        A.label(f"L_hs{hi_}")
    def afrags(kaps):
        for kap in kaps:
            for hf in range(2):
                off = kap * 32 * 512 + 8 * hf
                areg = 10 if kap < 4 else 12
                off -= 0 if kap < 4 else 65536
                d = 128 + 8 * kap + 4 * hf
                A(f"ds_read_b64_tr_b16 {vr(d,2)}, v{areg} offset:{off}")
                A(f"ds_read_b64_tr_b16 {vr(d+2,2)}, v{areg} offset:{off+2048}")
    def tail_setup(kaps):
        A("v_and_b32 v6, 15, v5")
        A("v_lshrrev_b32 v7, 4, v5")
        A("v_lshrrev_b32 v8, 2, v6")
        A("v_and_b32 v13, 3, v6")
        A("s_lshl_b32 s44, s30, 2")
        A("v_add_u32 v10, s44, v13")
        A("v_lshlrev_b32 v11, 2, v8")
        A("v_xor_b32 v10, v10, v11")
        A("v_lshlrev_b32 v10, 4, v10")
        A("v_lshl_add_u32 v11, v7, 3, v8")
        A("v_lshl_add_u32 v10, v11, 9, v10")
        A("v_add_u32 v12, 0x10000, v10")
        afrags(kaps)
        A("s_add_u32 s96, s10, s35")
        A("s_addc_u32 s97, s11, 0")
        A("s_mov_b32 s98, 2048000")
        A("s_mov_b32 s99, 0x20000")
        A("v_lshrrev_b32 v2, 4, v0")
        A("v_and_b32 v3, 15, v0")
        A("v_lshrrev_b32 v4, 3, v3")
        A("v_lshlrev_b32 v4, 12, v4")
        A("v_lshl_add_u32 v4, v2, 7, v4")
        A("v_and_b32 v14, 7, v3")
        A("v_lshl_add_u32 v4, v14, 4, v4")
        A("s_lshl_b32 s88, s29, 18")
        A("s_lshl_b32 s89, s28, 15")
        A("s_add_u32 s88, s88, s89")
        A("s_add_u32 s89, s88, 8192")
        A("s_add_u32 s91, s88, 16384")
        A("s_add_u32 s92, s88, 24576")
        A("s_mov_b32 s48, 0xc038aa3b")
        A("s_mov_b32 s49, 0xc038aa3b")
        A("s_mov_b32 s50, 0xbfb8aa3b")
        A("s_mov_b32 s51, 0xbfb8aa3b")
        A("s_mov_b32 s52, 1.0")
        A("s_mov_b32 s53, 1.0")
        A("s_mov_b32 s43, 0x42700000")
        A(f"v_mul_u32_u24 v9, {ZP}, v2")
        A("v_lshl_add_u32 v9, v3, 4, v9")
        A(f"v_add_u32 v9, {HST}, v9")
        A(f"v_mul_u32_u24 v11, {ZP}, v6")
        A("v_lshl_add_u32 v11, v7, 4, v11")
        A(f"v_add_u32 v11, {HST}, v11")
        A("v_lshlrev_b32 v8, 3, v6")
        A("s_add_u32 s44, s31, s28")
        A("v_add_u32 v8, s44, v8")
        A("v_lshlrev_b32 v8, 11, v8")
        A("s_lshl_b32 s44, s33, 9")
        A("s_lshl_b32 s45, s30, 6")
        A("s_add_u32 s44, s44, s45")
        A("v_add_u32 v8, s44, v8")
        A("v_lshl_add_u32 v8, v7, 4, v8")
        A("v_mov_b32 v14, 0xc2700000")
    A("s_waitcnt vmcnt(0)")
    dstamp(A, 55, opt)
    A("s_barrier")
    dstamp(A, 56, opt)
    tail_setup(range(8))
    dstamp(A, 54, opt)
    A("s_branch L_hwait")
    A.label("L_store")
    A("s_barrier")
    dstamp(A, 52, opt)
    A("v_readfirstlane_b32 s94, v246")
    A("v_readfirstlane_b32 s47, v247")
    tail_setup([0, 1, 4, 5, 6])
    A("s_lshl_b32 s44, s29, 3")
    A("s_add_u32 s44, s44, s28")
    A("s_lshl_b32 s44, s44, 7")
    A(f"s_add_u32 s44, s44, {WS_FLAGS + 65536}")
    A("v_mov_b32 v84, s44")
    A("v_and_b32 v85, 7, v5")
    A("s_lshl_b32 s44, s29, 10")
    A(f"s_add_u32 s44, s44, {WS_FLAGS + 65536}")
    A("v_lshl_add_u32 v85, v85, 7, s44")
    A("v_mov_b32 v15, s47")
    dstamp(A, 54, opt)
    A("s_barrier")
    dstamp(A, 56, opt)
    stamp(A, 3, opt)
    A("s_cmp_lg_u32 s30, 0")
    A("s_cbranch_scc1 L_nofl")
    A("s_mov_b64 exec, 1")
    A("s_cmp_eq_u32 s94, 1")
    A("s_cbranch_scc1 L_ffast")
    A("global_store_dword v84, v15, s[14:15] sc1")
    A("s_branch L_fdone")
    A.label("L_ffast")
    A("global_store_dword v84, v15, s[14:15]")
    A.label("L_fdone")
    A("s_mov_b64 exec, -1")
    A("global_load_dword v87, v85, s[14:15] sc1")
    A.label("L_nofl")
    afrags([2, 3, 7])
    A("s_cmp_lg_u32 s30, 0")
    A("s_cbranch_scc1 L_hwait")
    A("s_mov_b32 s46, 0x100000")
    A("s_branch L_hchk")
    A.label("L_hspin")
    A("global_load_dword v87, v85, s[14:15] sc1")
    A.label("L_hchk")
    A("s_waitcnt vmcnt(0)")
    A("v_cmp_eq_u32 vcc, s47, v87")
    A("s_sub_u32 s46, s46, 1")
    A("s_cmp_eq_u32 s46, 0")
    A("s_cbranch_scc1 L_hwait")
    A("s_cmp_eq_u64 vcc, -1")
    A("s_cbranch_scc0 L_hspin")
    A.label("L_hwait")
    A("s_waitcnt lgkmcnt(0)")
    gbar(A, opt)
    dstamp(A, 57, opt)
    stamp(A, 4, opt)
    g = guard_begin(A, opt)
    A(f"buffer_load_dwordx4 {vr(16)}, v4, s[24:27], s88 offen {opt.hload}")
    A(f"buffer_load_dwordx4 {vr(20)}, v4, s[24:27], s91 offen {opt.hload}")
    A(f"buffer_load_dwordx4 {vr(24)}, v4, s[24:27], s89 offen {opt.hload}")
    A(f"buffer_load_dwordx4 {vr(28)}, v4, s[24:27], s92 offen {opt.hload}")
    guard_end(A, g)
    for half in range(2):
        A(f"s_waitcnt vmcnt({2 if half == 0 else 0})")
        dstamp(A, 58 + half, opt)
        fb, gb = 16 + 8 * half, 20 + 8 * half
        zb = 32 + 4 * half
        for d0 in range(0, 4, 2):
            TT = [(40, d0), (52, d0 + 1)]
            for t, d in TT:
                A(f"v_lshlrev_b32 v{t}, 16, v{fb+d}"); A(f"v_and_b32 v{t+1}, s36, v{fb+d}")
                A(f"v_lshlrev_b32 v{t+2}, 16, v{gb+d}"); A(f"v_and_b32 v{t+3}, s36, v{gb+d}")
            for t, d in TT:
                A(f"v_pk_mul_f32 {vr(t,2)}, {vr(t,2)}, s[48:49]")
                A(f"v_pk_mul_f32 {vr(t+2,2)}, {vr(t+2,2)}, s[50:51]")
            for t, d in TT:
                A(f"v_med3_f32 v{t}, v{t}, s43, v14"); A(f"v_med3_f32 v{t+1}, v{t+1}, s43, v14")
            for t, d in TT:
                A(f"v_exp_f32 v{t+2}, v{t+2}"); A(f"v_exp_f32 v{t+3}, v{t+3}")
            for t, d in TT:
                A(f"v_exp_f32 v{t}, v{t}"); A(f"v_exp_f32 v{t+1}, v{t+1}")
            for t, d in TT:
                A(f"v_pk_add_f32 {vr(t+2,2)}, {vr(t+2,2)}, s[52:53]")
            for t, d in TT:
                A(f"v_pk_add_f32 {vr(t+4,2)}, {vr(t,2)}, s[52:53]")
                A(f"v_pk_add_f32 {vr(t,2)}, {vr(t,2)}, s[52:53] neg_lo:[1,0] neg_hi:[1,0]")
            for t, d in TT:
                A(f"v_pk_mul_f32 {vr(t+4,2)}, {vr(t+4,2)}, {vr(t+2,2)}")
            for t, d in TT:
                A(f"v_rcp_f32 v{t+4}, v{t+4}"); A(f"v_rcp_f32 v{t+5}, v{t+5}")
            A("s_nop 0")
            for t, d in TT:
                A(f"v_pk_mul_f32 {vr(t,2)}, {vr(t,2)}, {vr(t+4,2)}")
            for t, d in TT:
                A(f"v_cvt_pk_bf16_f32 v{zb+d}, v{t}, v{t+1}")
        A(f"ds_write_b128 v9, {vr(zb)} offset:{256*half}")
    A("s_waitcnt lgkmcnt(0)")
    dstamp(A, 60, opt)
    gbar(A, opt)
    dstamp(A, 61, opt)
    tr = LdsTracker()
    AF = 128
    ACC2 = 64
    BF = 192
    ops = []
    for kap in range(8):
        for tau in range(2):
            d = BF + 8 * (kap % 4) + 4 * tau
            if kap < 4: ops.append(("lds", f"ds_read_b128 {vr(d)}, v11 offset:{tau*16*ZP + kap*64}", rng(d, 4), []))
    for kap in range(8):
        for hf in range(2):
            for tau in range(2):
                acc = ACC2 + 4 * (2 * tau + hf)
                af = AF + 8 * kap + 4 * hf
                bf = BF + 8 * (kap % 4) + 4 * tau
                c = vr(acc) if kap > 0 else "0"
                ops.append(("mfma", f"v_mfma_f32_16x16x32_bf16 {vr(acc)}, {vr(af)}, {vr(bf)}, {c}", [], rng(bf, 4)))
        if kap < 4:
            for tau in range(2):
                d = BF + 8 * (kap % 4) + 4 * tau
                ops.append(("lds", f"ds_read_b128 {vr(d)}, v11 offset:{tau*16*ZP + (kap+4)*64}", rng(d, 4), []))
    emit_with_waits(A, ops, tr)
    A("s_nop 7")
    A("s_nop 1")
    dstamp(A, 62, opt)
    for tau in range(2):
        a_ = ACC2 + 8 * tau
        t = 16 + 4 * tau
        A(f"v_cvt_pk_bf16_f32 v{t}, v{a_}, v{a_+1}")
        A(f"v_cvt_pk_bf16_f32 v{t+1}, v{a_+2}, v{a_+3}")
        A(f"v_cvt_pk_bf16_f32 v{t+2}, v{a_+4}, v{a_+5}")
        A(f"v_cvt_pk_bf16_f32 v{t+3}, v{a_+6}, v{a_+7}")
    if opt.tdry: A("s_cbranch_execz L_tdry_ret")
    for tau in range(2):
        t = 16 + 4 * tau
        A(f"buffer_store_dwordx4 {vr(t)}, v8, s[96:99], 0 offen offset:{1024*tau} {opt.outflags}")
    if opt.stamps and not opt.dbgat:
        A("s_waitcnt vmcnt(0)")
        dstamp(A, 63, opt)
        stamp(A, 5, opt)
        A("s_waitcnt lgkmcnt(0)")
        if opt.dstamps:
            A("s_and_b32 s50, s30, 1")
            A("s_cmp_lg_u32 s50, 0")
            A("s_cbranch_scc1 L_nods")
            A("s_lshl_b32 s50, s2, 10")
            A("s_lshr_b32 s51, s30, 1")
            A("s_lshl_b32 s51, s51, 8")
            A("s_add_u32 s50, s50, s51")
            A(f"s_add_u32 s50, s50, {STAMP_OFF + 131072}")
            A("v_lshl_add_u32 v1, v5, 2, s50")
            A("global_store_dword v1, v245, s[14:15]")
            A.label("L_nods")
        if opt.cstamps:
            A("v_cmp_gt_u32 vcc, 16, v0")
            A("s_and_saveexec_b64 s[48:49], vcc")
            A("s_cbranch_execz L_nocs")
            A("s_lshl_b32 s50, s2, 6")
            A(f"s_add_u32 s50, s50, {STAMP_OFF + 65536}")
            A("v_lshl_add_u32 v1, v0, 2, s50")
            A("global_store_dword v1, v244, s[14:15]")
            A.label("L_nocs")
            A("s_mov_b64 exec, s[48:49]")
        A("v_cmp_eq_u32 vcc, 0, v0")
        A("s_and_saveexec_b64 s[48:49], vcc")
        A("s_cbranch_execz L_end")
        A("s_lshl_b32 s50, s2, 6")
        A(f"s_add_u32 s50, s50, {STAMP_OFF}")
        A("v_mov_b32 v1, s50")
        order = [60, 61, 80, 81, 62, 63, 82, 83, 64, 65, 68, 69, 66, 70, 76, 77] if opt.looprt else [60, 61, 80, 81, 62, 63, 82, 83, 64, 65, 68, 69, 72, 73, 76, 77]
        for i in range(0, 16, 4):
            for k in range(4): A(f"v_mov_b32 v{4+k}, s{order[i+k]}")
            A(f"global_store_dwordx4 v1, v[4:7], s[14:15] offset:{i*4}")
            A("s_nop 1")
    if opt.dbgat:
        A("s_waitcnt vmcnt(0)")
        stamp(A, 5, opt)
        A("s_waitcnt lgkmcnt(0)")
        A("v_cmp_eq_u32 vcc, 0, v0")
        A("s_and_saveexec_b64 s[48:49], vcc")
        A("s_cbranch_execz L_end")
        A("v_mov_b32 v1, 0")
        def amax(word, expr):
            for l in expr: A(l)
            A("v_mov_b32 v2, s50")
            A(f"global_atomic_umax v1, v2, s[12:13] offset:{4*word}")
        amax(4, ["s_mov_b32 s50, s82"])
        amax(5, ["s_not_b32 s50, s62"])
        amax(6, ["s_sub_u32 s50, s80, s60"])
        amax(7, ["s_sub_u32 s50, s64, s60"])
        amax(8, ["s_sub_u32 s50, s68, s60"])
        amax(9, ["s_sub_u32 s50, s72, s60"])
        amax(10, ["s_sub_u32 s50, s76, s60"])
        amax(11, ["s_sub_u32 s50, s82, s62"])
        A("s_waitcnt vmcnt(0)")
    A.label("L_end")
    A("s_endpgm")
    return A.text()


ST2 = "wavenet_stage2_kernel"
def map_ids(A, opt):
    if opt.map == "n8":
        A("s_and_b32 s28, s2, 7"); A("s_lshr_b32 s29, s2, 3")
    elif opt.map == "m4":
        for l in ["s_and_b32 s29, s2, 7", "s_lshl_b32 s29, s29, 2", "s_lshr_b32 s28, s2, 3", "s_lshr_b32 s35, s28, 3",
                  "s_add_u32 s29, s29, s35", "s_and_b32 s28, s28, 7"]: A(l)
    else:
        for l in ["s_lshr_b32 s35, s2, 3", "s_and_b32 s28, s2, 1", "s_lshl_b32 s28, s28, 2", "s_and_b32 s29, s35, 3",
                  "s_add_u32 s28, s28, s29", "s_lshr_b32 s29, s2, 1", "s_and_b32 s29, s29, 3", "s_lshl_b32 s29, s29, 3",
                  "s_lshr_b32 s35, s35, 2", "s_add_u32 s29, s29, s35"]: A(l)

def gating(A):
    A("v_mov_b32 v14, 0xc2700000")
    for half in range(2):
        fb, gb = 16 + 8 * half, 20 + 8 * half
        zb = 32 + 4 * half
        yield half
        for d0 in range(0, 4, 2):
            TT = [(40, d0), (52, d0 + 1)]
            for t, d in TT:
                A(f"v_lshlrev_b32 v{t}, 16, v{fb+d}"); A(f"v_and_b32 v{t+1}, s36, v{fb+d}")
                A(f"v_lshlrev_b32 v{t+2}, 16, v{gb+d}"); A(f"v_and_b32 v{t+3}, s36, v{gb+d}")
            for t, d in TT:
                A(f"v_pk_mul_f32 {vr(t,2)}, {vr(t,2)}, s[48:49]")
                A(f"v_pk_mul_f32 {vr(t+2,2)}, {vr(t+2,2)}, s[50:51]")
            for t, d in TT:
                A(f"v_med3_f32 v{t}, v{t}, s43, v14"); A(f"v_med3_f32 v{t+1}, v{t+1}, s43, v14")
            for t, d in TT:
                A(f"v_exp_f32 v{t+2}, v{t+2}"); A(f"v_exp_f32 v{t+3}, v{t+3}")
            for t, d in TT:
                A(f"v_exp_f32 v{t}, v{t}"); A(f"v_exp_f32 v{t+1}, v{t+1}")
            for t, d in TT:
                A(f"v_pk_add_f32 {vr(t+2,2)}, {vr(t+2,2)}, s[52:53]")
            for t, d in TT:
                A(f"v_pk_add_f32 {vr(t+4,2)}, {vr(t,2)}, s[52:53]")
                A(f"v_pk_add_f32 {vr(t,2)}, {vr(t,2)}, s[52:53] neg_lo:[1,0] neg_hi:[1,0]")
            for t, d in TT:
                A(f"v_pk_mul_f32 {vr(t+4,2)}, {vr(t+4,2)}, {vr(t+2,2)}")
            for t, d in TT:
                A(f"v_rcp_f32 v{t+4}, v{t+4}"); A(f"v_rcp_f32 v{t+5}, v{t+5}")
            A("s_nop 0")
            for t, d in TT:
                A(f"v_pk_mul_f32 {vr(t,2)}, {vr(t,2)}, {vr(t+4,2)}")
            for t, d in TT:
                A(f"v_cvt_pk_bf16_f32 v{zb+d}, v{t}, v{t+1}")
        A(f"ds_write_b128 v9, {vr(zb)} offset:{256*half}")

def gen_stage2(opt):
    A = Asm()
    A.raw(f".globl {ST2}\n.p2align 8\n.type {ST2},@function\n{ST2}:")
    A("s_cmp_ge_u32 s2, 256")
    A("s_cbranch_scc1 L2_end")
    A("s_load_dwordx4 s[8:11], s[0:1], 16")
    A("s_load_dwordx2 s[14:15], s[0:1], 40")
    A("v_lshrrev_b32 v1, 6, v0")
    A("v_and_b32 v5, 63, v0")
    map_ids(A, opt)
    A("v_readfirstlane_b32 s30, v1")
    A("s_and_b32 s31, s29, 7")
    A("s_lshl_b32 s31, s31, 7")
    A("s_lshr_b32 s32, s29, 3")
    A("s_and_b32 s33, s32, 1")
    A("s_lshr_b32 s34, s32, 1")
    A("s_mul_i32 s35, s34, 2048000")
    A("s_mov_b32 s36, 0xffff0000")
    A("v_lshrrev_b32 v2, 4, v0")
    A("v_and_b32 v3, 15, v0")
    A("v_lshrrev_b32 v4, 3, v3")
    A("v_lshlrev_b32 v4, 12, v4")
    A("v_lshl_add_u32 v4, v2, 7, v4")
    A("v_and_b32 v14, 7, v3")
    A("v_lshl_add_u32 v4, v14, 4, v4")
    A("s_lshl_b32 s39, s29, 18")
    A("s_lshl_b32 s40, s28, 15")
    A("s_add_u32 s39, s39, s40")
    A("s_add_u32 s40, s39, 8192")
    A("s_add_u32 s41, s39, 16384")
    A("s_add_u32 s42, s39, 24576")
    A("v_lshrrev_b32 v12, 5, v5")
    A("s_and_b32 s44, s30, 1")
    A("s_lshl_b32 s44, s44, 1")
    A("v_add_u32 v13, s44, v12")
    A("v_lshlrev_b32 v13, 2, v13")
    A("v_and_b32 v15, 31, v5")
    A("v_xor_b32 v15, v15, v13")
    A("v_lshlrev_b32 v15, 4, v15")
    A("v_lshl_add_u32 v15, v12, 9, v15")
    A("s_lshl_b32 s56, s30, 10")
    A("s_waitcnt lgkmcnt(0)")
    for l in ["s_mov_b32 s24, s14", "s_mov_b32 s25, s15", f"s_mov_b32 s26, {WS_BYTES}", "s_mov_b32 s27, 0x20000"]: A(l)
    A(f"buffer_load_dwordx4 {vr(16)}, v4, s[24:27], s39 offen")
    A(f"buffer_load_dwordx4 {vr(20)}, v4, s[24:27], s41 offen")
    A(f"buffer_load_dwordx4 {vr(24)}, v4, s[24:27], s40 offen")
    A(f"buffer_load_dwordx4 {vr(28)}, v4, s[24:27], s42 offen")
    for l in ["s_mov_b32 s52, s8", "s_mov_b32 s53, s9", "s_mov_b32 s54, 131072", "s_mov_b32 s55, 0x20000"]: A(l)
    for k in range(16):
        A(f"s_add_u32 m0, s56, {k*8192}")
        A(f"s_add_u32 s45, s56, {k*8192}")
        A("buffer_load_dwordx4 v15, s[52:55], s45 offen lds")
    A("s_add_u32 s20, s10, s35")
    A("s_addc_u32 s21, s11, 0")
    A("s_mov_b32 s22, 2048000")
    A("s_mov_b32 s23, 0x20000")
    A("v_and_b32 v6, 15, v5")
    A("v_lshrrev_b32 v7, 4, v5")
    A("v_lshrrev_b32 v8, 2, v6")
    A("v_and_b32 v13, 3, v6")
    A("s_lshl_b32 s44, s30, 2")
    A("v_add_u32 v10, s44, v13")
    A("v_lshlrev_b32 v11, 2, v8")
    A("v_xor_b32 v10, v10, v11")
    A("v_lshlrev_b32 v10, 4, v10")
    A("v_lshl_add_u32 v11, v7, 3, v8")
    A("v_lshl_add_u32 v10, v11, 9, v10")
    A("v_add_u32 v12, 0x10000, v10")
    A("s_mov_b32 s48, 0xc038aa3b"); A("s_mov_b32 s49, 0xc038aa3b")
    A("s_mov_b32 s50, 0xbfb8aa3b"); A("s_mov_b32 s51, 0xbfb8aa3b")
    A("s_mov_b32 s58, 1.0"); A("s_mov_b32 s59, 1.0")
    A("s_mov_b32 s43, 0x42700000")
    A(f"v_mul_u32_u24 v9, {ZP}, v2")
    A("v_lshl_add_u32 v9, v3, 4, v9")
    A(f"v_add_u32 v9, {HST}, v9")
    A(f"v_mul_u32_u24 v11, {ZP}, v6")
    A("v_lshl_add_u32 v11, v7, 4, v11")
    A(f"v_add_u32 v11, {HST}, v11")
    A("v_lshlrev_b32 v8, 3, v6")
    A("s_add_u32 s44, s31, s28")
    A("v_add_u32 v8, s44, v8")
    A("v_lshlrev_b32 v8, 11, v8")
    A("s_lshl_b32 s44, s33, 9")
    A("s_lshl_b32 s45, s30, 6")
    A("s_add_u32 s44, s44, s45")
    A("v_add_u32 v8, s44, v8")
    A("v_lshl_add_u32 v8, v7, 4, v8")
    B = Asm()
    for half in gating(B):
        B(f"s_waitcnt vmcnt({18 if half == 0 else 16})")
    A.lines += [l.replace("s[52:53]", "s[58:59]") for l in B.lines]
    A("s_waitcnt vmcnt(0) lgkmcnt(0)")
    A("s_barrier")
    AF, BF, ACC2 = 64, 128, 160
    tr = LdsTracker()
    ops = []
    def rdA(kap):
        o = []
        for hf in range(2):
            off = kap * 32 * 512 + 8 * hf
            areg = 10 if kap < 4 else 12
            off -= 0 if kap < 4 else 65536
            d = AF + 8 * kap + 4 * hf
            o.append(("lds", f"ds_read_b64_tr_b16 {vr(d,2)}, v{areg} offset:{off}", rng(d, 2), []))
            o.append(("lds", f"ds_read_b64_tr_b16 {vr(d+2,2)}, v{areg} offset:{off+2048}", rng(d+2, 2), []))
        for tau in range(2):
            d = BF + 8 * (kap % 4) + 4 * tau
            o.append(("lds", f"ds_read_b128 {vr(d)}, v11 offset:{tau*16*ZP + kap*64}", rng(d, 4), []))
        return o
    ops += rdA(0) + rdA(1)
    for kap in range(8):
        if kap + 2 < 8: ops += rdA(kap + 2)
        for hf in range(2):
            for tau in range(2):
                acc = ACC2 + 4 * (2 * tau + hf)
                af = AF + 8 * kap + 4 * hf
                bf = BF + 8 * (kap % 4) + 4 * tau
                c = vr(acc) if kap > 0 else "0"
                ops.append(("mfma", f"v_mfma_f32_16x16x32_bf16 {vr(acc)}, {vr(af)}, {vr(bf)}, {c}", [], rng(bf, 4) + rng(af, 4)))
    emit_with_waits(A, ops, tr)
    A("s_nop 7"); A("s_nop 1")
    for tau in range(2):
        a_ = ACC2 + 8 * tau
        t = 16 + 4 * tau
        A(f"v_cvt_pk_bf16_f32 v{t}, v{a_}, v{a_+1}")
        A(f"v_cvt_pk_bf16_f32 v{t+1}, v{a_+2}, v{a_+3}")
        A(f"v_cvt_pk_bf16_f32 v{t+2}, v{a_+4}, v{a_+5}")
        A(f"v_cvt_pk_bf16_f32 v{t+3}, v{a_+6}, v{a_+7}")
        A(f"buffer_store_dwordx4 {vr(t)}, v8, s[20:23], 0 offen offset:{1024*tau} {opt.outflags}")
    A.label("L2_end")
    A("s_endpgm")
    return A.text()

def kd(name, nv, ns=102):
    return f""".amdhsa_kernel {name}
  .amdhsa_next_free_vgpr {nv}
  .amdhsa_next_free_sgpr {ns}
  .amdhsa_accum_offset {(nv + 3) // 4 * 4}
  .amdhsa_group_segment_fixed_size 0
  .amdhsa_kernarg_size 48
  .amdhsa_user_sgpr_count 2
  .amdhsa_user_sgpr_kernarg_segment_ptr 1
  .amdhsa_system_sgpr_workgroup_id_x 1
.end_amdhsa_kernel
"""

HEADER = """; Kernarg layout for this problem (48 bytes, ptrs only, base s[0:1]):
;
"""

def main():
    ap = argparse.ArgumentParser()
    ap.add_argument("-o", default="standalone__autoregressive_conv_wavenet__speech.s")
    ap.add_argument("--stamps", action="store_true")
    ap.add_argument("--cap", type=int, default=2)
    ap.add_argument("--outflags", default="nt")
    ap.add_argument("--cstamps", action="store_true")
    ap.add_argument("--dstamps", action="store_true")
    ap.add_argument("--xplain", action="store_true")
    ap.add_argument("--align", action="store_true")
    ap.add_argument("--no-prefetch", dest="prefetch", action="store_false")
    ap.add_argument("--pf_a", type=int, default=3)
    ap.add_argument("--st0", type=int, default=0)
    ap.add_argument("--nwin", type=int, default=3)
    ap.add_argument("--w_early", type=int, default=4)
    ap.add_argument("--map", default="m4")
    ap.add_argument("--sig_a", type=int, default=11)
    ap.add_argument("--poll_a", type=int, default=16)
    ap.add_argument("--wo_gaps", type=lambda s: [int(x) for x in s.split(",")], default=[9, 10])
    ap.add_argument("--we_gaps", type=lambda s: [int(x) for x in s.split(",")], default=[17, 18])
    ap.add_argument("--bar_after", type=int, default=1)
    ap.add_argument("--e64", action="store_true")
    ap.add_argument("--novalu", action="store_true")
    ap.add_argument("--st128", action="store_true")
    ap.add_argument("--late", action="store_true")
    ap.add_argument("--v0a", type=int, default=0)
    ap.add_argument("--whelp", action="store_true")
    ap.add_argument("--no-pf0", dest="pf0", action="store_false")
    ap.add_argument("--ldsalone", action="store_true")
    ap.add_argument("--g0free", action="store_true")
    ap.add_argument("--no-onewait", dest="onewait", action="store_false")
    ap.add_argument("--vstart", type=int, default=0)
    ap.add_argument("--looprt", action="store_true")
    ap.add_argument("--no-epk", dest="epk", action="store_false")
    ap.add_argument("--tdry", action="store_true")
    ap.add_argument("--dry", action="store_true")
    ap.add_argument("--otouch", type=int, default=0)
    ap.add_argument("--ptouch", action="store_true")
    ap.add_argument("--no-half2", dest="half2", action="store_false")
    ap.add_argument("--tailpf", type=int, default=-1)
    ap.add_argument("--hload", default="sc1")
    ap.add_argument("--fastflags", default="nt")
    ap.add_argument("--no-wtouch", dest="wtouch", action="store_false")
    ap.add_argument("--wt_a", type=lambda s: [int(x) for x in s.split(",")], default=[9, 14])
    ap.add_argument("--wt_it", type=int, default=2)
    ap.add_argument("--slowmode", action="store_true")
    ap.add_argument("--codepf", type=int, default=1)
    ap.add_argument("--split", action="store_true")
    ap.add_argument("--hflags", default="sc1")
    ap.add_argument("--dbgat", action="store_true")
    ap.add_argument("--dot2", action="store_true")
    ap.add_argument("--swap", action="store_true")
    opt = ap.parse_args()
    ONEWAIT[0] = opt.onewait
    WHELP[0] = opt.whelp
    E64[0] = opt.e64; NOVALU[0] = opt.novalu; DOT2[0] = opt.dot2; SWAP[0] = opt.swap
    m = gen_main(opt)
    out = HEADER
    if opt.split:
        out += f"; @launch kernel={MAIN} grid=(256,1,1) block=(512,1,1) lds={HST + 32768}\n"
        out += f"; @launch kernel={ST2} grid=(256,1,1) block=(512,1,1) lds={HST + 32*ZP}\n"
    else:
        out += f"; @launch grid=(256,1,1) block=(512,1,1) lds={LDS_TOTAL}\n"
    out += '.amdgcn_target "amdgcn-amd-amdhsa--gfx950"\n.text\n'
    out += m
    out += '.section .rodata,"a"\n.p2align 6\n' + kd(MAIN, 251 if opt.codepf else NV + (2 if (opt.cstamps or opt.dstamps) else 0))
    if opt.split: out += ".p2align 6\n" + kd(ST2, 176)
    open(opt.o, "w").write(out)

if __name__ == "__main__":
    main()
```

```python
import sys, argparse

MAIN = "standalone__autoregressive_conv_wavenet__speech_kernel"

XROWG = 19
XARR = 152 * 64
XBUF = 32768
WRING = 65536
WSLOT = 8192
NSLOT = 8
HST = 131072
LDS_TOTAL = 163840
ZP = 528
WS_XIMG = 8 << 20
WS_BYTES = 16 << 20
MODE_LDS = 30720
STAMP_OFF = 16 << 20
WS_FLAGS = 17 << 20

class Asm:
    def __init__(self): self.lines = []
    def __call__(self, s): self.lines.append("    " + s)
    def label(self, s): self.lines.append(s + ":")
    def raw(self, s): self.lines.append(s)
    def text(self): return "\n".join(self.lines) + "\n"
class Null:
    def __call__(self, s): pass
    def label(self, s): pass
    def raw(self, s): pass

def vr(b, n=4): return f"v[{b}:{b+n-1}]"
def rng(b, n): return list(range(b, b + n))

V_XA0, V_XA1, V_XA2, V_WA = 1, 2, 3, 4
TMP = [8, 12]
WSET = {0: 16, 1: 28, 2: 232}
WIN = {"D1": 40, "D2": 72, "X0": 104}
ARR = {"D1": 0, "D2": 1, "X0": 2}
ACC = {"Q1": 136, "Q2": 168, "Q0": 200}
NV = 244

def wset(a):
    a %= 16
    return WSET[2] if a == 0 else WSET[a & 1]

class LdsTracker:
    def __init__(self): self.out = []
    def issue(self, regs): self.out.append(set(regs))
    def need(self, regs):
        regs = set(regs); p = -1
        for i, d in enumerate(self.out):
            if d & regs: p = i
        if p < 0: return None
        n = min(len(self.out) - p - 1, 15)
        self.out = self.out[len(self.out) - n:] if n > 0 else []
        return n
    def waitall(self): self.out = []

def x_read(arr, idx0, dst, nxt=False):
    q0, mp = idx0 >> 3, idx0 & 7
    areg = V_XA2 if nxt else (V_XA0 if q0 == 0 else V_XA1)
    assert (q0 == 2) if nxt else (q0 in (0, 1))
    off = ARR[arr] * XARR + (mp * XROWG + q0) * 64
    return ("lds", f"ds_read_b128 {vr(dst)}, v{areg} offset:{off}", rng(dst, 4), [])

def w_read(slot, tile, dst):
    off = (slot % NSLOT) * WSLOT + tile * 4096
    return [("lds", f"ds_read_b64_tr_b16 {vr(dst,2)}, v{V_WA} offset:{off}", rng(dst, 2), []),
            ("lds", f"ds_read_b64_tr_b16 {vr(dst+2,2)}, v{V_WA} offset:{off+512}", rng(dst + 2, 2), [])]

E64 = [False]
NOVALU = [False]
ONEWAIT = [False]
DOT2 = [False]
SWAP = [False]
def ws_valu(base):
    ops = []
    if NOVALU[0]: return ops
    if DOT2[0]:
        for d0 in (0, 2):
            seq = []
            for d in (d0, d0 + 1):
                o, e = base + d, base + 4 + d
                t = TMP[d & 1]
                seq.append([("valu", f"v_dot2_f32_bf16 v{t}, v{o}, s91, 0", [], [o]),
                            ("valu", f"v_dot2_f32_bf16 v{t+1}, v{o}, s92, 0", [], [o]),
                            ("valu", f"v_dot2_f32_bf16 v{t}, v{e}, s91, v{t}", [], [e]),
                            ("valu", f"v_dot2_f32_bf16 v{t+1}, v{e}, s92, v{t+1}", [], [e]),
                            ("valu", f"v_cvt_pk_bf16_f32 v{base+8+d}, v{t}, v{t+1}", [], [])])
            a_, b_ = seq
            ops += [a_[0], a_[1], a_[2], a_[3], b_[0], b_[1], b_[2], b_[3], a_[4], ("valu", "s_nop 0", [], []), b_[4]] if d0 == 2 else [a_[0], a_[1], a_[2], a_[3], b_[0], b_[1], b_[2], b_[3], a_[4]]
            if d0 == 0: pend = b_[4]
            else: ops.insert(len(ops) - 11 + 3, pend)
        return ops
    for d in range(4):
        o, e, s = base + d, base + 4 + d, base + 8 + d
        t = TMP[d & 1]
        x = "_e64" if E64[0] else ""
        ops += [("valu", f"v_lshlrev_b32{x} v{t}, 16, v{o}", [], [o]),
                ("valu", f"v_lshlrev_b32{x} v{t+1}, 16, v{e}", [], [e]),
                ("valu", f"v_and_b32{x} v{t+2}, s36, v{o}", [], [o]),
                ("valu", f"v_and_b32{x} v{t+3}, s36, v{e}", [], [e]),
                ("valu", f"v_add_f32{x} v{t}, v{t}, v{t+1}", [], []),
                ("valu", f"v_add_f32{x} v{t+2}, v{t+2}, v{t+3}", [], []),
                ("valu", f"v_cvt_pk_bf16_f32 v{s}, v{t}, v{t+2}", [], [])]
    if ONEWAIT[0]:
        k, tx, de, rd = ops[0]
        ops[0] = (k, tx, de, list(range(base, base + 8)))
    return ops

def gen_period(a, opt):
    cur = wset(a)
    if a <= 14: steps = [("Q1", cur + 0, "D1"), ("Q2", cur + 4, "D2"), ("Q0", cur + 8, "X0")]
    else: steps = [("Q2", cur + 8, "D2"), ("Q0", cur + 8, "X0")]
    ng = 8 * len(steps)
    fill = [[] for _ in range(ng)]
    mf = []
    last = {"D1": 14, "D2": 15, "X0": 15}
    for si, (q, wreg, arr) in enumerate(steps):
        for k in range(8):
            m = 7 - k
            sl = (m - a) % 8
            b = WIN[arr] + 4 * sl
            acc = ACC[q] + 4 * m
            if SWAP[0]: mf.append(("mfma", f"v_mfma_f32_16x16x32_bf16 {vr(acc)}, {vr(b)}, {vr(wreg)}, {vr(acc)}", [], rng(wreg, 4) + rng(b, 4)))
            else: mf.append(("mfma", f"v_mfma_f32_16x16x32_bf16 {vr(acc)}, {vr(wreg)}, {vr(b)}, {vr(acc)}", [], rng(wreg, 4) + rng(b, 4)))
            g = 8 * si + k
            if a == last[arr]: fill[g].append(x_read(arr, 16 + sl, b, nxt=True))
            elif k == 0: fill[g].append(x_read(arr, 15 - a, b))
    def place(ops, gaps):
        for o, g in zip(ops, gaps): fill[g].append(o)
    if a <= 12:
        nb = wset(a + 2)
        place(w_read(a + 2, 0, nb + 0), opt.wo_gaps)
        place(w_read(a + 2, 1, nb + 4), opt.we_gaps)
    elif a == 14:
        nb = wset(0)
        place(w_read(16, 0, nb + 0), [0, 1])
        place(w_read(16, 1, nb + 4), [2, 3])
        place(w_read(15, 1, wset(15) + 8), [4, 5])
    elif a == 15:
        nb = wset(1)
        place(w_read(17, 0, nb + 0), [1, 3])
        place(w_read(17, 1, nb + 4), [9, 11])
    if a == 2: fill[12].append(("lds", "ds_read_b64 v[246:247], v248", [246, 247], []))
    valu = []; g0 = 0
    if a <= 13: valu = ws_valu(wset(a + 1)); g0 = opt.vstart
    elif a == 14: valu = ws_valu(wset(0)); g0 = 9
    if a == 0: valu = [("valu", f"v_xor_b32 v{V_XA2}, s37, v{V_XA2}", [], [])] + valu
    if a == 15:
        fill[12].append(("valu", f"v_xor_b32 v{V_XA0}, s37, v{V_XA0}", [], []))
        fill[13].append(("valu", f"v_xor_b32 v{V_XA1}, s37, v{V_XA1}", [], []))
    if valu:
        gaps = list(range(g0, ng)); n = len(valu)
        cap = {g: (max(0, opt.cap - len(fill[g])) if not (opt.ldsalone and fill[g]) else 0) for g in gaps}
        if opt.g0free and 0 in cap: cap[0] = 0
        if sum(cap.values()) < n:
            for g in gaps: cap[g] = max(cap[g], 1)
        assert sum(cap.values()) >= n
        tot = sum(cap.values()); i = 0; accq = 0.0
        for g in gaps:
            accq += cap[g] * n / tot
            take = min(int(accq + 1e-9) - i, cap[g])
            for _ in range(take):
                fill[g].append(valu[i]); i += 1
        while i < n:
            fill[ng - 1].append(valu[i]); i += 1
    out = []
    for g in range(ng):
        out.append(mf[g]); out += fill[g]
    return out

def emit_with_waits(A, ops, tr):
    for kind, text, dests, reads in ops:
        if reads:
            n = tr.need(reads)
            if n is not None: A(f"s_waitcnt lgkmcnt({n})")
        if kind == "label": A.label(text)
        else: A(text)
        if kind == "lds": tr.issue(dests)

NST = 6
def dstamp(A, k, opt):
    if not opt.dstamps: return
    A("s_memtime s[86:87]")
    A("s_waitcnt lgkmcnt(0)")
    A(f"v_writelane_b32 v245, s86, {k}")
def stamp(A, idx, opt):
    if not opt.stamps: return
    A(f"s_memtime s[{60+4*idx}:{61+4*idx}]")
    A(f"s_memrealtime s[{62+4*idx}:{63+4*idx}]")

XO, XW = 110, 120
RAW = 16
PT = 88
PD1, PD2 = 100, 104
NPT = 5
WHELP = [False]
BIG = 0x40000000

def pair_addr(A):
    A("v_lshrrev_b32 v11, 3, v5")
    A("v_and_b32 v12, 7, v5")
    A("s_lshl_b32 s44, s33, 9")
    A("s_lshl_b32 s42, s30, 3")
    A("s_add_u32 s42, s42, s31")
    A("s_sub_u32 s42, s42, 16")
    A("v_add_u32 v14, s42, v11")
    A("v_lshl_add_u32 v8, v12, 4, s44")
    A("v_lshl_add_u32 v15, v14, 11, v8")
    A("v_cmp_gt_i32 s[46:47], 0, v14")
    A("v_cmp_gt_i32 s[48:49], 1, v14")
    A("v_add_u32 v113, 0x10000, v15")
    A("v_add_u32 v10, 0xfffffc00, v15")
    A("v_mov_b32 v9, 0x40000000")
    A("v_add_u32 v112, 0xfc00, v15")
    A("v_cndmask_b32 v111, v15, v9, s[46:47]")
    A("v_cndmask_b32 v110, v10, v9, s[48:49]")
    A("v_and_b32 v7, 3, v12")
    A("v_lshrrev_b32 v6, 2, v12")
    A("v_lshlrev_b32 v6, 15, v6")
    A(f"v_mul_u32_u24 v10, {XROWG*64}, v11")
    A("s_lshl_b32 s41, s30, 6")
    A("v_add3_u32 v6, v6, v10, s41")
    A("v_lshl_add_u32 v120, v7, 4, v6")
    A("v_xor_b32 v7, 2, v7")
    A("v_lshl_add_u32 v121, v7, 4, v6")
    A("s_cmp_ge_u32 s30, 2")
    A(f"s_cselect_b32 s41, 0x40000000, {3*65536}")

def npt(): return 3 if WHELP[0] else NPT
def pair_loads(A):
    for t in range(npt()):
        b = RAW + 12 * t
        va, vb = (110, 111) if t == 0 else (112, 113)
        so = {0: "0", 1: "0", 2: "s42", 3: "s43", 4: "s41"}[t]
        if t == 2: A("s_mov_b32 s42, 0x10000")
        if t == 3: A("s_mov_b32 s43, 0x20000")
        A(f"buffer_load_dwordx4 {vr(b)}, v{va}, s[16:19], {so} offen")
        A(f"buffer_load_dwordx4 {vr(b+4)}, v{vb}, s[16:19], {so} offen")
        A(f"buffer_load_dwordx4 {vr(b+8)}, v{vb}, s[16:19], {so} offen offset:1024")

def job_loads(A, raw, offs, n):
    for t in range(n):
        b = raw + 12 * t
        A(f"buffer_load_dwordx4 {vr(b)}, v{offs+2*t}, s[16:19], 0 offen")
        A(f"buffer_load_dwordx4 {vr(b+4)}, v{offs+1+2*t}, s[16:19], 0 offen")
        A(f"buffer_load_dwordx4 {vr(b+8)}, v{offs+1+2*t}, s[16:19], 0 offen offset:1024")

def job_valu(A, b, pd1, pd2, ds=range(4)):
    for d in ds:
        m_, x0, x1 = b + d, b + 4 + d, b + 8 + d
        T = PT + 6 * (d & 1)
        A(f"v_lshlrev_b32 v{T}, 16, v{x0}")
        A(f"v_and_b32 v{T+1}, s36, v{x0}")
        A(f"v_lshlrev_b32 v{T+2}, 16, v{x1}")
        A(f"v_and_b32 v{T+3}, s36, v{x1}")
        A(f"v_lshlrev_b32 v{T+4}, 16, v{m_}")
        A(f"v_and_b32 v{T+5}, s36, v{m_}")
        A(f"v_sub_f32 v{T+2}, v{T+2}, v{T}")
        A(f"v_sub_f32 v{T+3}, v{T+3}, v{T+1}")
        A(f"v_sub_f32 v{T+4}, v{T+4}, v{T}")
        A(f"v_sub_f32 v{T+5}, v{T+5}, v{T+1}")
        A(f"v_cvt_pk_bf16_f32 v{pd2+d}, v{T+2}, v{T+3}")
        A(f"v_cvt_pk_bf16_f32 v{pd1+d}, v{T+4}, v{T+5}")

def pair_compute(A):
    for t in range(npt()):
        if t == 4:
            A("s_cmp_ge_u32 s30, 2")
            A("s_cbranch_scc1 L_pj")
        A(f"s_waitcnt vmcnt({3 * (npt() - 1 - t)})")
        b = RAW + 12 * t
        pd1, pd2 = PD1 + 28 * (t & 1), PD2 + 28 * (t & 1)
        job_valu(A, b, pd1, pd2)
        A(f"ds_write_b128 v{120 + (t & 1)}, {vr(pd1)} offset:{0*XARR + t*256}")
        A(f"ds_write_b128 v{120 + (t & 1)}, {vr(pd2)} offset:{1*XARR + t*256}")
        A(f"ds_write_b128 v{120 + (t & 1)}, {vr(b+4)} offset:{2*XARR + t*256}")
    A.label("L_pj")

RAW2, SO, SS = 16, 64, 72
def shared_addr(A):
    A("v_mov_b32 v83, 0x40000000")
    A("s_lshl_b32 s45, s33, 9")
    A("s_add_u32 s45, s45, 128")
    A("s_mul_i32 s46, s28, %d" % (XROWG * 64))
    A("s_lshl_b32 s44, s29, 18")
    A("s_add_u32 s46, s46, s44")
    A(f"s_add_u32 s46, s46, {WS_XIMG + 2*32768}")
    A("s_add_u32 s44, s31, s28")
    A("s_sub_u32 s44, s44, 16")
    A("s_movk_i32 s55, 911")
    A("v_and_b32 v10, 3, v5")
    for k in range(4):
        A(f"s_add_u32 s41, s40, {2*k}")
        A("s_lshl_b32 s41, s41, 6")
        A("v_add_u32 v11, s41, v5")
        A("v_mul_u32_u24 v12, s55, v11")
        A("v_lshrrev_b32 v12, 16, v12")
        A("v_mul_u32_u24 v13, 72, v12")
        A("v_sub_u32 v13, v11, v13")
        A("v_lshrrev_b32 v13, 2, v13")
        A("v_lshl_add_u32 v14, v13, 3, s44")
        A("v_lshlrev_b32 v15, 11, v14")
        A("v_lshl_add_u32 v15, v12, 6, v15")
        A("v_lshl_add_u32 v15, v10, 4, v15")
        A("v_add_u32 v15, s45, v15")
        A("v_add_u32 v82, 0xfffffc00, v15")
        A("v_cmp_gt_i32 s[48:49], 0, v14")
        A("v_cmp_gt_i32 s[50:51], 1, v14")
        A("v_cmp_le_u32 vcc, 0x1b0, v11")
        A("v_lshrrev_b32 v14, 1, v13")
        A("v_and_b32 v14, 2, v14")
        A("s_or_b64 s[48:49], s[48:49], vcc")
        A("s_or_b64 s[50:51], s[50:51], vcc")
        A("v_xor_b32 v14, v14, v10")
        A(f"v_cndmask_b32 v{SO+1+2*k}, v15, v83, s[48:49]")
        A(f"v_cndmask_b32 v{SO+2*k}, v82, v83, s[50:51]")
        A("v_lshlrev_b32 v14, 4, v14")
        A("v_lshl_add_u32 v14, v13, 6, v14")
        A("v_lshl_add_u32 v14, v12, 15, v14")
        A("v_add_u32 v14, s46, v14")
        A(f"v_cndmask_b32 v{SS+k}, v14, v83, vcc")

def wdma_addr(A):
    A("v_lshrrev_b32 v6, 3, v5")
    A("s_lshl_b32 s44, s40, 3")
    A("v_add_u32 v6, s44, v6")
    A("v_and_b32 v7, 7, v5")
    A("v_lshrrev_b32 v8, 1, v6")
    A("v_and_b32 v8, 1, v8")
    A("v_lshrrev_b32 v9, 2, v6")
    A("v_and_b32 v9, 2, v9")
    A("v_or_b32 v8, v9, v8")
    A("v_lshrrev_b32 v9, 1, v7")
    A("v_xor_b32 v8, v8, v9")
    A("v_lshlrev_b32 v8, 5, v8")
    A("v_and_b32 v9, 1, v7")
    A("v_lshl_add_u32 v8, v9, 4, v8")
    A("v_lshl_add_u32 v8, v6, 10, v8")
    A("s_lshl_b32 s44, s28, 7")
    A("v_add_u32 v1, s44, v8")
    A("s_lshl_b32 s42, s40, 10")
    A(f"s_add_u32 s42, s42, {WRING}")

def dma_text(sig, creg):
    out = []
    a = sig & 15
    for tile, tap in ((0, min(2 * a + 1, 30)), (1, 2 * a)):
        out.append(f"s_add_u32 m0, s42, {(sig % NSLOT) * WSLOT + tile * 4096}")
        if creg is None: out.append(f"s_mov_b32 s45, {tap * 262144}")
        else: out.append(f"s_add_u32 s45, {creg}, {tap * 262144}")
        out.append(f"buffer_load_dwordx4 v1, s[20:23], s45 offen lds")
    return out

_gid = [0]
def guard_begin(A, opt):
    if not opt.tdry: return None
    _gid[0] += 1
    lab = f"L_g{_gid[0]}"
    A(f"s_cbranch_execz {lab}")
    return lab
def guard_end(A, lab):
    if lab: A.label(lab)
def gbar(A, opt):
    g = guard_begin(A, opt); A("s_barrier"); guard_end(A, g)

def gen_main(opt):
    A = Asm()
    A.raw(f".globl {MAIN}\n.p2align 8\n.type {MAIN},@function\n{MAIN}:")
    A("s_cmp_ge_u32 s2, 256")
    A("s_cbranch_scc1 L_end")
    A("s_load_dwordx4 s[4:7], s[0:1], 0")
    A("s_load_dwordx4 s[8:11], s[0:1], 16")
    A("s_load_dwordx4 s[12:15], s[0:1], 32")
    if opt.codepf:
        A("s_getpc_b64 s[44:45]")
        A.label("L_pcref")
        A(f"s_sub_u32 s44, s44, L_pcref-{MAIN}")
        A("s_subb_u32 s45, s45, 0")
        A("v_lshlrev_b32 v11, 6, v0")
        A(f"v_min_u32 v11, L_end-{MAIN}, v11")
        A("global_load_dword v250, v11, s[44:45]")
    stamp(A, 0, opt)
    dstamp(A, 0, opt)
    A("v_lshrrev_b32 v1, 6, v0")
    A("v_and_b32 v5, 63, v0")
    A("v_readfirstlane_b32 s30, v1")
    if opt.map == "n8":
        A("s_and_b32 s28, s2, 7")
        A("s_lshr_b32 s29, s2, 3")
    elif opt.map == "m4":
        A("s_and_b32 s29, s2, 7")
        A("s_lshl_b32 s29, s29, 2")
        A("s_lshr_b32 s28, s2, 3")
        A("s_lshr_b32 s35, s28, 3")
        A("s_add_u32 s29, s29, s35")
        A("s_and_b32 s28, s28, 7")
    else:
        A("s_lshr_b32 s35, s2, 3")
        A("s_and_b32 s28, s2, 1")
        A("s_lshl_b32 s28, s28, 2")
        A("s_and_b32 s29, s35, 3")
        A("s_add_u32 s28, s28, s29")
        A("s_lshr_b32 s29, s2, 1")
        A("s_and_b32 s29, s29, 3")
        A("s_lshl_b32 s29, s29, 3")
        A("s_lshr_b32 s35, s35, 2")
        A("s_add_u32 s29, s29, s35")
    A("s_and_b32 s31, s29, 7")
    A("s_lshl_b32 s31, s31, 7")
    A("s_lshr_b32 s32, s29, 3")
    A("s_and_b32 s33, s32, 1")
    A("s_lshr_b32 s34, s32, 1")
    A("v_mov_b32 v84, 0")
    A("v_mov_b32 v85, 0")
    A("s_mov_b32 s36, 0xffff0000")
    A("s_mov_b32 s91, 0x00003f80")
    A("s_mov_b32 s92, 0x3f800000")
    A(f"s_mov_b32 s37, {XBUF}")
    A("s_mul_i32 s35, s34, 2048000")
    A("s_and_b32 s40, s30, 3")
    A("s_cmp_ge_u32 s30, 4")
    A("s_cbranch_scc1 L_prod")

    pair_addr(A)
    dstamp(A, 1, opt)
    A("s_waitcnt lgkmcnt(0)")
    A("s_add_u32 s16, s4, s35")
    A("s_addc_u32 s17, s5, 0")
    A("s_mov_b32 s18, 2048000")
    A("s_mov_b32 s19, 0x20000")
    pair_loads(A)
    A("s_mov_b32 s20, s6")
    A("s_mov_b32 s21, s7")
    A(f"s_mov_b32 s22, {31*256*512*2}")
    A("s_mov_b32 s23, 0x20000")
    A("s_mov_b32 s24, s14")
    A("s_mov_b32 s25, s15")
    A(f"s_mov_b32 s26, {WS_BYTES}")
    A("s_mov_b32 s27, 0x20000")
    dstamp(A, 2, opt)
    for q in ("Q1", "Q2", "Q0"):
        for i in range(32): A(f"v_mov_b32 v{ACC[q]+i}, 0")
    dstamp(A, 3, opt)
    if opt.dstamps:
        A(f"s_waitcnt vmcnt({3*(npt()-1)})")
        dstamp(A, 4, opt)
    pair_compute(A)
    dstamp(A, 5, opt)
    A("v_and_b32 v6, 15, v5")
    A("v_lshrrev_b32 v7, 4, v5")
    for q0, reg in ((0, V_XA0), (1, V_XA1), (2, V_XA2)):
        A(f"v_add_u32 v8, {q0}, v6")
        A("v_lshrrev_b32 v8, 1, v8")
        A("v_and_b32 v8, 2, v8")
        A("v_xor_b32 v8, v8, v7")
        A("v_lshlrev_b32 v8, 4, v8")
        A(f"v_lshl_add_u32 v{reg}, v6, 6, v8")
    A("v_lshrrev_b32 v8, 2, v6")
    A("v_and_b32 v9, 3, v6")
    A("v_lshrrev_b32 v10, 1, v8")
    A("v_and_b32 v10, 1, v10")
    A("v_and_b32 v11, 1, v7")
    A("v_lshl_or_b32 v10, v11, 1, v10")
    A("v_xor_b32 v10, s30, v10")
    A("v_lshlrev_b32 v10, 5, v10")
    A("v_lshl_add_u32 v11, v7, 3, v8")
    A("v_lshl_add_u32 v10, v11, 7, v10")
    A("v_lshl_add_u32 v10, v9, 3, v10")
    A(f"v_add_u32 v{V_WA}, {WRING}, v10")
    A(f"v_mov_b32 v248, {MODE_LDS}")
    A("s_waitcnt vmcnt(0) lgkmcnt(0)")
    dstamp(A, 6, opt)
    A("s_barrier")
    dstamp(A, 7, opt)
    stamp(A, 1, opt)
    tr = LdsTracker()
    pro = w_read(0, 0, wset(0)) + w_read(0, 1, wset(0) + 4)
    for jj in range(7, -1, -1): pro.append(x_read("D1", 16 + jj, WIN["D1"] + 4 * jj, nxt=True))
    pro += w_read(1, 0, wset(1)) + w_read(1, 1, wset(1) + 4)
    for arr in ("D2", "X0"):
        for jj in range(7, -1, -1): pro.append(x_read(arr, 16 + jj, WIN[arr] + 4 * jj, nxt=True))
    pro += ws_valu(wset(0))
    emit_with_waits(A, pro, tr)
    A("s_waitcnt lgkmcnt(0)")
    dstamp(A, 8, opt)
    tr.waitall()
    A("s_mov_b32 s38, 8")
    if opt.cstamps:
        A("s_memtime s[84:85]")
        A("s_waitcnt lgkmcnt(0)")
    DRY_EXIT = {5: "L_wdry_ret", 10: "L_wdry_ret", 13: "L_adry_ret"}
    def body(AA, tr):
        for a in range(16):
            if opt.dry:
                if a in DRY_EXIT: AA(f"s_cbranch_execz {DRY_EXIT[a]}")
                AA.label(f"L_cp{a}")
            if a == 15:
                AA("s_waitcnt lgkmcnt(0)"); tr.waitall()
            ops = gen_period(a, opt)
            bar = [("bar", "s_barrier", [], [])]
            if opt.dry: bar = [("bar", f"s_cbranch_execz L_nb{a}", [], []), ("bar", "s_barrier", [], []), ("label", f"L_nb{a}", [], [])]
            if opt.bar_after:
                k = opt.bar_after
                mi = [i for i, o in enumerate(ops) if o[0] == "mfma"]
                moved = [o for i, o in enumerate(ops[:mi[k-1]+1]) if o[0] == "lds"]
                keepv = [(i, o) for i, o in enumerate(ops[:mi[k-1]+1]) if o[0] != "lds"]
                ops = [o for i, o in keepv] + bar + moved + ops[mi[k-1]+1:]
            else:
                ops = bar + ops
            emit_with_waits(AA, ops, tr)
        if opt.dry: AA("s_cbranch_execz L_adry_ret")
    body(Null(), tr)
    if opt.align: A.raw(".p2align 6")
    A.label("L_cloop")
    body(A, tr)
    if opt.cstamps:
        A("s_mov_b32 m0, s38")
        A("s_nop 0")
        A("v_writelane_b32 v244, s84, m0")
        A("s_memtime s[84:85]")
    A("s_sub_u32 s38, s38, 1")
    A("s_cmp_lg_u32 s38, 0")
    A("s_cbranch_scc1 L_cloop")
    if opt.cstamps:
        A("s_waitcnt lgkmcnt(0)")
        A("v_writelane_b32 v244, s84, 0")
    A.label("L_cepi")
    stamp(A, 2, opt)
    dstamp(A, 50, opt)
    A("v_and_b32 v6, 15, v5")
    A("v_lshrrev_b32 v7, 4, v5")
    A("s_lshl_b32 s39, s30, 2")
    A("v_add_u32 v8, s39, v7")
    A("v_and_b32 v9, 7, v6")
    A("v_lshlrev_b32 v9, 1, v9")
    A("v_xor_b32 v8, v8, v9")
    A("v_lshlrev_b32 v8, 3, v8")
    A("v_lshl_add_u32 v1, v6, 7, v8")
    A(f"v_add_u32 v1, {HST}, v1")
    if opt.st128:
        A("v_lshrrev_b32 v8, 1, v7")
        A("s_lshl_b32 s39, s30, 1")
        A("v_add_u32 v8, s39, v8")
        A("v_and_b32 v9, 7, v6")
        A("v_xor_b32 v8, v8, v9")
        A("v_lshlrev_b32 v8, 4, v8")
        A("v_lshl_add_u32 v8, v6, 7, v8")
        A("v_and_b32 v9, 1, v7")
        A("v_lshl_add_u32 v8, v9, 11, v8")
        A(f"v_add_u32 v1, {HST}, v8")
    A("s_nop 4")
    A("s_waitcnt lgkmcnt(0)")
    dstamp(A, 40, opt)
    for hb in range(2):
        blocks = [(m, q) for m in range(4 * hb, 4 * hb + 4) for q in range(2)]
        for (m, q) in blocks:
            a0 = ACC["Q0"] + 4 * m; a1 = ACC["Q1" if q == 0 else "Q2"] + 4 * m
            if opt.epk:
                A(f"v_pk_add_f32 {vr(a1,2)}, {vr(a0,2)}, {vr(a1,2)}")
                A(f"v_pk_add_f32 {vr(a1+2,2)}, {vr(a0+2,2)}, {vr(a1+2,2)}")
            else:
                for i in range(4): A(f"v_add_f32 v{a1+i}, v{a0+i}, v{a1+i}")
        for k, (m, q) in enumerate(blocks):
            a1 = ACC["Q1" if q == 0 else "Q2"] + 4 * m
            t = 8 + 2 * k + 16 * hb
            A(f"v_cvt_pk_bf16_f32 v{t}, v{a1}, v{a1+1}")
            A(f"v_cvt_pk_bf16_f32 v{t+1}, v{a1+2}, v{a1+3}")
        if opt.st128:
            for k in range(0, 8, 2):
                t = 8 + 2 * k + 16 * hb
                A(f"v_permlane16_swap_b32 v{t}, v{t+2}")
                A(f"v_permlane16_swap_b32 v{t+1}, v{t+3}")
            for k in range(0, 8, 2):
                t = 8 + 2 * k + 16 * hb
                A(f"ds_write_b128 v1, {vr(t)} offset:{blocks[k][0]*4096}")
        else:
            for k, (m, q) in enumerate(blocks):
                t = 8 + 2 * k + 16 * hb
                A(f"ds_write_b64 v1, {vr(t,2)} offset:{(2*m+q)*16*128}")
        if hb == 0 and opt.half2:
            dstamp(A, 41, opt)
            A("s_waitcnt lgkmcnt(0)")
            dstamp(A, 42, opt)
            gbar(A, opt)
            dstamp(A, 43, opt)
    A("s_waitcnt lgkmcnt(0)")
    dstamp(A, 51, opt)
    if opt.tdry: A("s_cbranch_execz L_store_p")
    A("s_branch L_store")

    srd_x = ["s_add_u32 s16, s4, s35", "s_addc_u32 s17, s5, 0", "s_mov_b32 s18, 2048000", "s_mov_b32 s19, 0x20000"]
    srd_w = ["s_mov_b32 s20, s6", "s_mov_b32 s21, s7", f"s_mov_b32 s22, {31*256*512*2}", "s_mov_b32 s23, 0x20000"]
    srd_s = ["s_mov_b32 s24, s14", "s_mov_b32 s25, s15", f"s_mov_b32 s26, {WS_BYTES}", "s_mov_b32 s27, 0x20000"]
    class Role:
        def __init__(self): self.vm = []; self.waits = {}; self.mode = "sim"; self.E = Null()
        def cnt(self, tag):
            l = [i for i, x in enumerate(self.vm) if x == tag]
            if not l: return 63
            return len(self.vm) - max(l) - 1
        def site(self, key, tag, extra=""):
            if self.mode == "sim": self.waits[key] = min(self.waits.get(key, 63), self.cnt(tag), 63)
            else: self.E(f"s_waitcnt vmcnt({self.waits[key]}){extra}")
    def wodma(R, i0):
        R.E(f"s_add_u32 m0, s56, {i0*1024}")
        R.E(f"s_add_u32 s45, s56, {i0*1024}")
        R.E(f"buffer_load_dwordx4 v8, s[52:55], s45 offen lds")
        R.vm.append("wo")
    def wo_setup(E):
        for l in ["s_mov_b32 s52, s8", "s_mov_b32 s53, s9", "s_mov_b32 s54, 131072", "s_mov_b32 s55, 0x20000",
                  "s_and_b32 s40, s30, 3", "s_lshl_b32 s56, s40, 10",
                  "v_lshrrev_b32 v12, 5, v5", "s_and_b32 s44, s40, 1", "s_lshl_b32 s44, s44, 1", "v_add_u32 v13, s44, v12",
                  "v_lshlrev_b32 v13, 2, v13", "v_and_b32 v8, 31, v5", "v_xor_b32 v8, v8, v13", "v_lshlrev_b32 v8, 4, v8",
                  "v_lshl_add_u32 v8, v12, 9, v8"]: E(l)
    def wo_sched(R, a):
        if opt.split: return
        if a < 8: wodma(R, 4 * a)
        else:
            for k in range(2): wodma(R, 64 + 8 * (a - 8) + 4 * k)
        if a == 15:
            for k in range(8): wodma(R, 32 + 4 * k)

    A.label("L_prod")
    A("s_cmp_ge_u32 s30, 6")
    A("s_cbranch_scc1 L_aux")
    RW = Role()
    def wdma(R, sig, creg):
        a = sig & 15
        for tile, tap in ((0, min(2 * a + 1, 30)), (1, 2 * a)):
            if tile == 0 and a == 15: continue
            for h in range(2):
                R.E(f"s_add_u32 m0, s42, {(sig % NSLOT) * WSLOT + tile * 4096 + h * 2048}")
                if creg is None: R.E(f"s_mov_b32 s45, {tap * 262144 + h * 16384}")
                else: R.E(f"s_add_u32 s45, {creg}, {tap * 262144 + h * 16384}")
                R.E(f"buffer_load_dwordx4 v1, s[20:23], s45 offen lds")
                R.vm.append(("w", sig))
    def w_pair_addr():
        A("v_lshrrev_b32 v11, 3, v5")
        A("v_and_b32 v12, 7, v5")
        A("s_lshl_b32 s44, s33, 9")
        A("s_add_u32 s45, s40, 12")
        A("s_lshl_b32 s45, s45, 3")
        A("s_add_u32 s45, s45, s31")
        A("s_sub_u32 s45, s45, 16")
        A("v_add_u32 v14, s45, v11")
        A("v_lshl_add_u32 v8, v12, 4, s44")
        A("v_lshl_add_u32 v113, v14, 11, v8")
        A("v_add_u32 v112, 0xfffffc00, v113")
        A("v_and_b32 v7, 3, v12")
        A("v_lshrrev_b32 v6, 2, v12")
        A("v_lshlrev_b32 v6, 15, v6")
        A(f"v_mul_u32_u24 v10, {XROWG*64}, v11")
        A("s_add_u32 s45, s40, 12")
        A("s_lshl_b32 s45, s45, 6")
        A("v_add3_u32 v6, v6, v10, s45")
        A("v_lshl_add_u32 v120, v7, 4, v6")
        A("v_xor_b32 v7, 2, v7")
        A("v_lshl_add_u32 v121, v7, 4, v6")
    def w_prologue(R):
        E = R.E
        if opt.whelp:
            for sg in range(2): wdma(R, sg, None)
            for t in range(3):
                b_ = RAW + 12 * t
                E(f"s_mov_b32 s45, {t*32768}")
                E(f"buffer_load_dwordx4 {vr(b_)}, v112, s[16:19], s45 offen")
                E(f"buffer_load_dwordx4 {vr(b_+4)}, v113, s[16:19], s45 offen")
                E(f"buffer_load_dwordx4 {vr(b_+8)}, v113, s[16:19], s45 offen offset:1024")
                R.vm.extend([("xp", t)] * 3)
            for sg in range(2, opt.w_early): wdma(R, sg, None)
            for t in range(3):
                R.site(("xp", t), ("xp", t))
                if R.mode == "emit":
                    b_ = RAW + 12 * t
                    pd1, pd2 = PD1 + 28 * (t & 1), PD2 + 28 * (t & 1)
                    job_valu(A, b_, pd1, pd2)
                    ar = 121 if t < 2 else 120
                    A(f"ds_write_b128 v{ar}, {vr(pd1)} offset:{0*XARR + t*128}")
                    A(f"ds_write_b128 v{ar}, {vr(pd2)} offset:{1*XARR + t*128}")
                    A(f"ds_write_b128 v{ar}, {vr(b_+4)} offset:{2*XARR + t*128}")
            E("s_waitcnt lgkmcnt(0)")
        else:
            for sg in range(opt.w_early): wdma(R, sg, None)
        if opt.tdry and R.mode == "emit":
            A("s_mov_b32 s94, 1")
            A("s_mov_b64 exec, 0")
            A("s_cmp_eq_u32 s30, 4")
            A("s_cbranch_scc1 L_cepi")
            A("s_branch L_hst")
            A.label("L_tdry_ret")
            A("s_mov_b64 exec, -1")
        if R.mode == "emit":
            dstamp(A, 3, opt)
            if opt.dstamps and not opt.whelp:
                A(f"s_waitcnt vmcnt({4*opt.w_early - 2})"); dstamp(A, 4, opt)
                A(f"s_waitcnt vmcnt({4*(opt.w_early-1)})"); dstamp(A, 5, opt)
        E("s_mov_b32 s50, 0"); E("s_mov_b32 s51, 32768")
        if opt.dry and R.mode == "emit":
            A("s_mov_b64 exec, 0")
            A("s_cmp_eq_u32 s30, 4")
            A("s_cbranch_scc1 L_cp0")
            A("s_branch L_cp5")
            A.label("L_wdry_ret")
            A("s_mov_b64 exec, -1")
        R.site(("p1",), ("w", 1))
        if R.mode == "emit": dstamp(A, 6, opt)
        E("s_barrier")
        if R.mode == "emit": dstamp(A, 7, opt)
        for sg in range(opt.w_early, 8): wdma(R, sg, None)
        R.site(("p2",), ("w", 2))
        if R.mode == "emit": dstamp(A, 9, opt)
    def w_body(R, kind, c):
        E = R.E
        for a in range(16):
            s = 16 * c + a
            if kind == "first" and R.mode == "emit": dstamp(A, 32 + a, opt)
            E("s_barrier")
            if kind == "first" and R.mode == "emit": dstamp(A, 16 + a, opt)
            sig = s + 8
            if sig < 128: wdma(R, sig, "s51" if a >= 8 else "s50")
            if kind == "last": wo_sched(R, a)
            if a == 15 and kind != "last":
                E("s_mov_b32 s50, s51"); E("s_add_u32 s51, s51, 32768")
            if s + 3 < 128: R.site(("w", kind, a), ("w", s + 3))
    def w_all(R, loop):
        w_prologue(R)
        w_body(R, "first", 0)
        if loop:
            A("s_mov_b32 s38, 6"); A.label("L_wloop")
            w_body(R, "mid", 1)
            A("s_sub_u32 s38, s38, 1"); A("s_cmp_lg_u32 s38, 0"); A("s_cbranch_scc1 L_wloop")
        else:
            for c in range(1, 7): w_body(R, "mid", c)
        R.E(f"v_mov_b32 v13, {MODE_LDS}")
        R.E("ds_read_b32 v12, v13")
        R.E("s_waitcnt lgkmcnt(0)")
        R.E("v_readfirstlane_b32 s94, v12")
        wo_setup(R.E)
        w_body(R, "last", 7)
    wdma_addr(A)
    if opt.whelp: w_pair_addr()
    dstamp(A, 1, opt)
    A("s_waitcnt lgkmcnt(0)")
    for l in srd_w + srd_s + srd_x: A(l)
    if opt.pf0:
        A("v_and_b32 v11, 15, v5")
        A("s_lshl_b32 s44, s40, 4")
        A("v_add_u32 v11, s44, v11")
        A("v_lshlrev_b32 v11, 10, v11")
        A("s_lshl_b32 s44, s28, 7")
        A("v_add_u32 v11, s44, v11")
        A("s_mul_i32 s44, s29, 262144")
        A("buffer_load_dword v12, v11, s[20:23], s44 offen")
    if opt.ptouch:
        A("s_lshr_b32 s44, s2, 3")
        A("s_lshl_b32 s44, s44, 1")
        A("s_add_u32 s44, s44, s40")
        A("v_lshlrev_b32 v11, 16, v5")
        A("s_cmp_eq_u32 s44, 0"); A("s_cbranch_scc0 L_pt1")
        A("buffer_load_dword v12, v11, s[20:23], 0 offen"); A("s_branch L_ptd")
        A.label("L_pt1"); A("s_cmp_eq_u32 s44, 1"); A("s_cbranch_scc0 L_pt2")
        A("s_mov_b32 s45, 0x400000"); A("buffer_load_dword v12, v11, s[20:23], s45 offen"); A("s_branch L_ptd")
        A.label("L_pt2"); A("s_cmp_eq_u32 s44, 2"); A("s_cbranch_scc0 L_pt4")
        A("v_min_u32 v11, 0x3e7ffc, v11"); A("global_load_dword v12, v11, s[10:11]"); A("s_branch L_ptd")
        A.label("L_pt4"); A("s_cmp_eq_u32 s44, 3"); A("s_cbranch_scc0 L_ptd")
        A("v_min_u32 v11, 0x3e7ffc, v11"); A("global_load_dword v12, v11, s[4:5]")
        A.label("L_ptd")
    w_all(RW, False)
    RW.vm = []; RW.mode = "emit"; RW.E = A
    w_all(RW, True)
    A("s_branch L_store_p")

    A.label("L_aux")
    RA = Role()
    A("s_and_b32 s40, s30, 1")
    shared_addr(A)
    A("v_and_b32 v11, 15, v5")
    A("s_lshl_b32 s44, s40, 4")
    A("v_add_u32 v11, s44, v11")
    A("v_lshlrev_b32 v11, 10, v11")
    A("s_lshl_b32 s44, s28, 7")
    A("v_add_u32 v11, s44, v11")
    A("s_mul_i32 s44, s29, 262144")
    A("v_add_u32 v82, s44, v11")
    A("s_mov_b32 s90, 32768")
    A("s_and_b32 s44, s29, 15")
    A("s_lshl_b32 s44, s44, 1")
    A("s_add_u32 s44, s44, s40")
    A("s_lshl_b32 s44, s44, 5")
    A("v_and_b32 v83, 31, v5")
    A("v_add_u32 v83, s44, v83")
    A("v_lshlrev_b32 v83, 7, v83")
    A("v_lshlrev_b32 v2, 4, v5")
    A("s_lshl_b32 s56, s40, 10")
    A("s_lshl_b32 s57, s29, 18")
    A("s_add_u32 s57, s57, s56")
    A(f"s_add_u32 s57, s57, {WS_XIMG + 2*32768}")
    A("s_mov_b32 s58, s56")
    A("s_getreg_b32 s93, hwreg(HW_REG_XCC_ID)")
    A("s_and_b32 s93, s93, 15")
    A("v_mov_b32 v86, 0")
    A("s_lshl_b32 s59, s29, 3")
    A("s_add_u32 s59, s59, s28")
    A("s_lshl_b32 s59, s59, 7")
    A(f"s_add_u32 s59, s59, {WS_FLAGS}")
    A("v_mov_b32 v84, s59")
    A("v_and_b32 v85, 7, v5")
    A("s_lshl_b32 s59, s29, 10")
    A(f"s_add_u32 s59, s59, {WS_FLAGS}")
    A("v_lshl_add_u32 v85, v85, 7, s59")
    if opt.sent:
        for i in range(4): A(f"v_mov_b32 v{124+i}, -1")
        A("s_lshl_b32 s100, s29, 18")
        A("s_lshl_b32 s44, s28, 15")
        A("s_add_u32 s100, s100, s44")
        A("s_lshl_b32 s44, s40, 14")
        A("s_add_u32 s100, s100, s44")
    if opt.wtouch:
        A("v_and_b32 v11, 31, v5")
        A("v_lshlrev_b32 v11, 7, v11")
        A("s_lshl_b32 s44, s29, 18")
        A("s_lshl_b32 s45, s28, 12")
        A("s_add_u32 s44, s44, s45")
        A("s_lshl_b32 s45, s40, 17")
        A("s_add_u32 s44, s44, s45")
        A("v_add_u32 v76, s44, v11")
        A("s_mov_b32 s95, 0")
        A("v_lshrrev_b32 v11, 2, v5")
        A("v_lshlrev_b32 v11, 3, v11")
        A("s_add_u32 s44, s31, s28")
        A("v_add_u32 v11, s44, v11")
        A("v_lshlrev_b32 v11, 11, v11")
        A("v_and_b32 v12, 3, v5")
        A("v_lshl_add_u32 v11, v12, 7, v11")
        A("s_lshl_b32 s44, s33, 9")
        A("s_lshl_b32 s45, s40, 10")
        A("s_add_u32 s44, s44, s45")
        A("v_add_u32 v77, s44, v11")
    dstamp(A, 1, opt)
    A("s_waitcnt lgkmcnt(0)")
    for l in srd_x + srd_w + srd_s: A(l)
    def xdma(R, c1, k):
        R.E(f"s_add_u32 m0, s58, {k*2048}")
        R.E(f"s_add_u32 s45, s57, {k*2048}")
        R.E(f"buffer_load_dwordx4 v2, s[24:27], s45 offen {'' if opt.xplain else 'sc1 '}lds")
        R.vm.append(("x", c1))
    def spin(R, name, load, check, fail_branch):
        E = R.E
        E("s_mov_b32 s46, 0x100000")
        if R.mode == "emit": A.label(f"L_{name}spin")
        E("s_sleep 2"); E(load); E("s_waitcnt vmcnt(0)")
        for l in check[0]: E(l)
        E("s_sub_u32 s46, s46, 1"); E("s_cmp_eq_u32 s46, 0"); E(f"s_cbranch_scc1 L_{name}ok")
        for l in check[1]: E(l)
        E(f"{fail_branch} L_{name}spin")
        if R.mode == "emit": A.label(f"L_{name}ok")
    def xstores(R, t):
        E = R.E
        E(f"s_mov_b32 s45, {XARR}")
        E(f"s_mov_b32 s46, {2*XARR}")
        E(f"buffer_store_dwordx4 {vr(128 + 8*t)}, v{SS+t}, s[24:27], 0 offen sc1")
        E(f"buffer_store_dwordx4 {vr(132 + 8*t)}, v{SS+t}, s[24:27], s45 offen sc1")
        E(f"buffer_store_dwordx4 {vr(RAW2 + 12*t + 4)}, v{SS+t}, s[24:27], s46 offen sc1")
        R.vm.extend(["xs"] * 3)
    def a_loads(R):
        E = R.E
        for t in range(4):
            b_ = RAW2 + 12 * t
            E(f"buffer_load_dwordx4 {vr(b_)}, v{SO+2*t}, s[16:19], 0 offen")
            E(f"buffer_load_dwordx4 {vr(b_+4)}, v{SO+1+2*t}, s[16:19], 0 offen")
            E(f"buffer_load_dwordx4 {vr(b_+8)}, v{SO+1+2*t}, s[16:19], 0 offen offset:1024")
            R.vm.extend([("x2", t)] * 3)
    def a_prologue(R):
        E = R.E
        if not opt.late: a_loads(R)
        if R.mode == "emit":
            for l in ["s_cmp_lg_u32 s2, 0", "s_cbranch_scc1 L_nononce", "s_cmp_lg_u32 s30, 6", "s_cbranch_scc1 L_nononce",
                      "s_memrealtime s[46:47]", "s_waitcnt lgkmcnt(0)", "s_and_b32 s46, s46, 0xfffffff0", "s_or_b32 s46, s46, 16", "v_mov_b32 v7, s46",
                      "s_mov_b64 exec, 1", "global_store_dword v86, v7, s[12:13] sc1", "s_mov_b64 exec, -1"]: A(l)
            A.label("L_nononce")
            dstamp(A, 3, opt)
            if opt.dry:
                A("s_mov_b64 exec, 0")
                A("s_cmp_eq_u32 s30, 6")
                A("s_cbranch_scc1 L_cp10")
                A("s_branch L_cp13")
                A.label("L_adry_ret")
                A("s_mov_b64 exec, -1")
        if R.mode == "emit": dstamp(A, 6, opt)
        E("s_barrier")
        if R.mode == "emit": dstamp(A, 7, opt)
        if opt.late: a_loads(R)
        for t in range(opt.nwin):
            R.site(("x2", t), ("x2", t))
            if R.mode == "emit": job_valu(A, RAW2 + 12 * t, 128 + 8 * t, 132 + 8 * t)
        if R.mode == "emit": dstamp(A, 9, opt)
    def a_body(R, kind, c):
        E = R.E
        for a in range(16):
            if kind == "first" and R.mode == "emit": dstamp(A, 32 + a, opt)
            E("s_barrier")
            if kind == "first" and R.mode == "emit": dstamp(A, 16 + a, opt)
            if opt.prefetch and kind != "last" and a == opt.pf_a:
                E("buffer_load_dword v119, v82, s[20:23], s90 offen")
                E("s_add_u32 s90, s90, 32768")
                R.vm.append("pf")
            if opt.prefetch and kind == "first" and a == 12:
                E("global_load_dword v118, v83, s[8:9]")
                R.vm.append("pf")
            if kind == "first":
                rem = [(t, d) for t in range(opt.nwin, 4) for d in range(4)]
                for (t, d) in (rem[2*(a-opt.v0a):2*(a-opt.v0a)+2] if a >= opt.v0a else []):
                    if d == 0: R.site(("x2", t), ("x2", t))
                    if R.mode == "emit": job_valu(A, RAW2 + 12 * t, 128 + 8 * t, 132 + 8 * t, [d])
                st_at = {0: opt.st0, 1: opt.st0 + 2, 2: opt.st0 + 4, 3: opt.st0 + 6}
                if opt.late: st_at = {t: opt.v0a + 2 * t + 2 for t in range(4)}
                for t in range(4):
                    if a == st_at[t]: xstores(R, t)
                if a == opt.sig_a - 2:
                    E("global_load_dword v87, v86, s[12:13] sc1")
                    R.vm.append("nonce")
                if a == opt.sig_a - 1:
                    R.site(("nonce",), "nonce")
                    E("v_readfirstlane_b32 s47, v87")
                    E("s_cmp_lg_u32 s47, 0")
                    E("s_cbranch_scc1 L_nok")
                    spin(R, "n", "global_load_dword v87, v86, s[12:13] sc1", (["v_readfirstlane_b32 s47, v87"], ["s_cmp_eq_u32 s47, 0"]), "s_cbranch_scc1")
                    R.site(("sig",), "xs")
                if a == opt.sig_a:
                    E("s_cmp_lg_u32 s30, 6")
                    E("s_cbranch_scc1 L_nosig")
                    E("s_or_b32 s44, s47, s93")
                    E("v_mov_b32 v11, s44")
                    E("s_mov_b64 exec, 1")
                    E("global_store_dword v84, v11, s[14:15] sc1")
                    E("s_mov_b64 exec, -1")
                    if R.mode == "emit": A.label("L_nosig")
                if a == opt.poll_a - 2:
                    E("global_load_dword v87, v85, s[14:15] sc1")
                    R.vm.append("poll")
                if a == opt.poll_a - 1:
                    R.site(("poll",), "poll")
                    E("v_and_b32 v12, -16, v87")
                    E("v_cmp_eq_u32 vcc, s47, v12")
                    E("s_nop 1")
                    E("s_cmp_eq_u64 vcc, -1")
                    E("s_cbranch_scc1 L_xok")
                    spin(R, "x", "global_load_dword v87, v85, s[14:15] sc1", (["v_and_b32 v12, -16, v87", "v_cmp_eq_u32 vcc, s47, v12"], ["s_cmp_eq_u64 vcc, -1"]), "s_cbranch_scc0")
                    E("s_or_b32 s44, s47, s93")
                    E("v_cmp_eq_u32 vcc, s44, v87")
                    E("s_mov_b32 s94, 0")
                    E("s_nop 0")
                    E("s_cmp_eq_u64 vcc, -1")
                    E("s_cselect_b32 s94, 1, 0")
                    if opt.slowmode: E("s_mov_b32 s94, 0")
                    E("v_mov_b32 v12, s94")
                    E("v_mov_b32 v13, s47")
                    E(f"v_mov_b32 v14, {MODE_LDS}")
                    E("ds_write_b64 v14, v[12:13]")
                    E("s_waitcnt lgkmcnt(0)")
            elif kind == "mid":
                if 1 <= a <= 8:
                    for k in range(2):
                        kk = 2 * (a - 1) + k
                        if kk < 15: xdma(R, c + 1, kk)
                if opt.sent and a in (9, 10, 11):
                    E("s_cmp_lg_u32 s38, 4"); E(f"s_cbranch_scc1 L_nocl{a}")
                    E("s_cmp_lg_u32 s94, 1"); E(f"s_cbranch_scc1 L_nocl{a}")
                    for k in range({9: 0, 10: 6, 11: 11}[a], {9: 6, 10: 11, 11: 16}[a]):
                        E(f"s_add_u32 s45, s100, {k*1024}")
                        E("buffer_store_dwordx4 v[124:127], v2, s[24:27], s45 offen")
                    if R.mode == "emit": A.label(f"L_nocl{a}")
                if a == 13: R.site(("xl",), ("x", c + 1))
                if opt.sent and a == 14:
                    E("s_cmp_lg_u32 s38, 4"); E("s_cbranch_scc1 L_nof2")
                    E("s_cmp_lg_u32 s94, 1"); E("s_cbranch_scc1 L_nof2")
                    E("s_cmp_lg_u32 s30, 6"); E("s_cbranch_scc1 L_nof2")
                    E("v_add_u32 v12, 0x20000, v84")
                    E("v_mov_b32 v11, s47")
                    E("s_mov_b64 exec, 1")
                    E("global_store_dword v12, v11, s[14:15]")
                    E("s_mov_b64 exec, -1")
                    if R.mode == "emit": A.label("L_nof2")
                if opt.sent and a == 2:
                    E("s_cmp_lg_u32 s38, 3"); E("s_cbranch_scc1 L_nop2")
                    E("s_cmp_lg_u32 s94, 1"); E("s_cbranch_scc1 L_nop2")
                    E("v_add_u32 v12, 0x20000, v85")
                    E("global_load_dword v87, v12, s[14:15] sc1")
                    if R.mode == "emit": A.label("L_nop2")
                if opt.sent and a == 4:
                    E("s_cmp_lg_u32 s38, 3"); E("s_cbranch_scc1 L_cok")
                    E("s_cmp_lg_u32 s94, 1"); E("s_cbranch_scc1 L_cok")
                    E("s_waitcnt vmcnt(4)")
                    E("v_cmp_eq_u32 vcc, s47, v87")
                    E("s_nop 1")
                    E("s_cmp_eq_u64 vcc, -1")
                    E("s_cbranch_scc1 L_cok")
                    spin(R, "c", "global_load_dword v87, v12, s[14:15] sc1", (["v_cmp_eq_u32 vcc, s47, v87"], ["s_cmp_eq_u64 vcc, -1"]), "s_cbranch_scc0")
                if opt.otouch and a == 14:
                    E("s_cmp_lg_u32 s38, %d" % opt.otouch)
                    E("s_cbranch_scc1 L_noot")
                    E("s_add_u32 s60, s10, s35"); E("s_addc_u32 s61, s11, 0"); E("s_mov_b32 s62, 2048000"); E("s_mov_b32 s63, 0x20000")
                    E("buffer_load_dword v115, v77, s[60:63], 0 offen")
                    if R.mode == "emit": A.label("L_noot")
                if opt.wtouch and a in opt.wt_a:
                    E("s_cmp_gt_u32 s38, %d" % opt.wt_it)
                    E(f"s_cbranch_scc1 L_nowt{a}")
                    E("buffer_load_dword v117, v76, s[24:27], s95 offen")
                    E("s_add_u32 s95, s95, 32768")
                    if R.mode == "emit": A.label(f"L_nowt{a}")
                if a == 15:
                    E("s_add_u32 s57, s57, 32768")
                    E(f"s_xor_b32 s58, s58, {XBUF}")
            elif kind == "last":
                if opt.tailpf >= 0 and a == opt.tailpf and R.mode == "emit":
                    A("s_getpc_b64 s[44:45]")
                    A.label("L_pcref2")
                    A(f"s_sub_u32 s44, s44, L_pcref2-{MAIN}")
                    A("s_subb_u32 s45, s45, 0")
                    A("v_lshlrev_b32 v11, 6, v5")
                    A(f"v_add_u32 v12, L_cepi-{MAIN}, v11")
                    A(f"v_add_u32 v13, L_store_p-{MAIN}, v11")
                    A("s_cmp_eq_u32 s30, 6")
                    A("s_cselect_b64 vcc, -1, 0")
                    A("v_cndmask_b32 v11, v13, v12, vcc")
                    A(f"v_min_u32 v11, L_end-{MAIN}, v11")
                    A("global_load_dword v114, v11, s[44:45]")
                wo_sched(R, a)
    def a_all(R, loop):
        a_prologue(R)
        a_body(R, "first", 0)
        if loop:
            A("s_mov_b32 s38, 6"); A.label("L_aloop")
            a_body(R, "mid", 1)
            A("s_sub_u32 s38, s38, 1"); A("s_cmp_lg_u32 s38, 0"); A("s_cbranch_scc1 L_aloop")
        else:
            for c in range(1, 7): a_body(R, "mid", c)
        wo_setup(R.E)
        a_body(R, "last", 7)
    a_all(RA, False)
    RA.vm = []; RA.mode = "emit"; RA.E = A
    a_all(RA, True)

    A.label("L_store_p")
    dstamp(A, 50, opt)
    A("v_and_b32 v1, 7, v5")
    A("v_lshrrev_b32 v2, 3, v5")
    A("s_and_b32 s40, s30, 3")
    A("s_lshl_b32 s41, s40, 3")
    A("v_add_u32 v2, s41, v2")
    A("v_and_b32 v3, 7, v2")
    A("v_xor_b32 v3, v3, v1")
    A("v_lshlrev_b32 v3, 4, v3")
    A("v_lshl_add_u32 v3, v2, 7, v3")
    A(f"v_add_u32 v3, {HST}, v3")
    A("v_lshlrev_b32 v4, 7, v2")
    A("v_lshl_add_u32 v4, v1, 4, v4")
    A("s_lshl_b32 s39, s29, 18")
    A("s_lshl_b32 s40, s28, 12")
    A("s_add_u32 s39, s39, s40")
    halves = [range(0, 4), range(4, 8)] if opt.half2 else [range(0, 8)]
    for hi_, blk in enumerate(halves):
        if hi_ == len(halves) - 1:
            A("s_waitcnt vmcnt(%d)" % (14 if opt.half2 else 10))
        dstamp(A, 51, opt) if hi_ == 0 else None
        gbar(A, opt)
        dstamp(A, 52, opt) if hi_ == len(halves) - 1 else None
        n = len(blk)
        for i in blk: A(f"ds_read_b128 {vr(16+4*i)}, v3 offset:{i*32*128}")
        A("s_cmp_eq_u32 s94, 1")
        A(f"s_cbranch_scc1 L_hfast{hi_}")
        for fl, lab in (("sc1", None), (opt.fastflags, f"L_hfast{hi_}")):
            if lab: A.label(lab)
            g = guard_begin(A, opt)
            for k, i in enumerate(blk):
                A(f"s_waitcnt lgkmcnt({n-1-k})")
                A(f"s_add_u32 s41, s39, {i*32768}")
                A(f"buffer_store_dwordx4 {vr(16+4*i)}, v4, s[24:27], s41 offen {fl}")
            guard_end(A, g)
            if not lab: A(f"s_branch L_hs{hi_}")
        A.label(f"L_hs{hi_}")
    def afrags(kaps):
        for kap in kaps:
            for hf in range(2):
                off = kap * 32 * 512 + 8 * hf
                areg = 10 if kap < 4 else 12
                off -= 0 if kap < 4 else 65536
                d = 128 + 8 * kap + 4 * hf
                A(f"ds_read_b64_tr_b16 {vr(d,2)}, v{areg} offset:{off}")
                A(f"ds_read_b64_tr_b16 {vr(d+2,2)}, v{areg} offset:{off+2048}")
    def tail_setup(kaps):
        A("v_and_b32 v6, 15, v5")
        A("v_lshrrev_b32 v7, 4, v5")
        A("v_lshrrev_b32 v8, 2, v6")
        A("v_and_b32 v13, 3, v6")
        A("s_lshl_b32 s44, s30, 2")
        A("v_add_u32 v10, s44, v13")
        A("v_lshlrev_b32 v11, 2, v8")
        A("v_xor_b32 v10, v10, v11")
        A("v_lshlrev_b32 v10, 4, v10")
        A("v_lshl_add_u32 v11, v7, 3, v8")
        A("v_lshl_add_u32 v10, v11, 9, v10")
        A("v_add_u32 v12, 0x10000, v10")
        afrags(kaps)
        A("s_add_u32 s96, s10, s35")
        A("s_addc_u32 s97, s11, 0")
        A("s_mov_b32 s98, 2048000")
        A("s_mov_b32 s99, 0x20000")
        A("v_lshrrev_b32 v2, 4, v0")
        A("v_and_b32 v3, 15, v0")
        A("v_lshrrev_b32 v4, 3, v3")
        A("v_lshlrev_b32 v4, 12, v4")
        A("v_lshl_add_u32 v4, v2, 7, v4")
        A("v_and_b32 v14, 7, v3")
        A("v_lshl_add_u32 v4, v14, 4, v4")
        A("s_lshl_b32 s88, s29, 18")
        A("s_lshl_b32 s89, s28, 15")
        A("s_add_u32 s88, s88, s89")
        A("s_add_u32 s89, s88, 8192")
        A("s_add_u32 s91, s88, 16384")
        A("s_add_u32 s92, s88, 24576")
        A("s_mov_b32 s48, 0xc038aa3b")
        A("s_mov_b32 s49, 0xc038aa3b")
        A("s_mov_b32 s50, 0xbfb8aa3b")
        A("s_mov_b32 s51, 0xbfb8aa3b")
        A("s_mov_b32 s52, 1.0")
        A("s_mov_b32 s53, 1.0")
        A("s_mov_b32 s43, 0x42700000")
        A(f"v_mul_u32_u24 v9, {ZP}, v2")
        A("v_lshl_add_u32 v9, v3, 4, v9")
        A(f"v_add_u32 v9, {HST}, v9")
        A(f"v_mul_u32_u24 v11, {ZP}, v6")
        A("v_lshl_add_u32 v11, v7, 4, v11")
        A(f"v_add_u32 v11, {HST}, v11")
        A("v_lshlrev_b32 v8, 3, v6")
        A("s_add_u32 s44, s31, s28")
        A("v_add_u32 v8, s44, v8")
        A("v_lshlrev_b32 v8, 11, v8")
        A("s_lshl_b32 s44, s33, 9")
        A("s_lshl_b32 s45, s30, 6")
        A("s_add_u32 s44, s44, s45")
        A("v_add_u32 v8, s44, v8")
        A("v_lshl_add_u32 v8, v7, 4, v8")
        A("v_mov_b32 v14, 0xc2700000")
    if opt.sent:
        A("s_cmp_eq_u32 s94, 1")
        A("s_cbranch_scc1 L_e2f")
    A("s_waitcnt vmcnt(0)")
    if opt.sent:
        A("s_branch L_e2p")
        A.label("L_e2f")
        A("s_waitcnt vmcnt(8) lgkmcnt(0)")
        A.label("L_e2p")
    dstamp(A, 55, opt)
    A("s_barrier")
    dstamp(A, 56, opt)
    tail_setup(range(8))
    dstamp(A, 54, opt)
    A("s_branch L_hwait")
    A.label("L_store")
    A("s_barrier")
    dstamp(A, 52, opt)
    A("v_readfirstlane_b32 s94, v246")
    A("v_readfirstlane_b32 s47, v247")
    tail_setup([0, 1, 4, 5, 6])
    A("s_lshl_b32 s44, s29, 3")
    A("s_add_u32 s44, s44, s28")
    A("s_lshl_b32 s44, s44, 7")
    A(f"s_add_u32 s44, s44, {WS_FLAGS + 65536}")
    A("v_mov_b32 v84, s44")
    A("v_and_b32 v85, 7, v5")
    A("s_lshl_b32 s44, s29, 10")
    A(f"s_add_u32 s44, s44, {WS_FLAGS + 65536}")
    A("v_lshl_add_u32 v85, v85, 7, s44")
    A("v_mov_b32 v15, s47")
    dstamp(A, 54, opt)
    A("s_barrier")
    dstamp(A, 56, opt)
    stamp(A, 3, opt)
    if opt.sent:
        A("s_cmp_eq_u32 s94, 1")
        A("s_cbranch_scc1 L_nofl")
    A("s_cmp_lg_u32 s30, 0")
    A("s_cbranch_scc1 L_nofl")
    A("s_mov_b64 exec, 1")
    A("s_cmp_eq_u32 s94, 1")
    A("s_cbranch_scc1 L_ffast")
    A("global_store_dword v84, v15, s[14:15] sc1")
    A("s_branch L_fdone")
    A.label("L_ffast")
    A("global_store_dword v84, v15, s[14:15]")
    A.label("L_fdone")
    A("s_mov_b64 exec, -1")
    A("global_load_dword v87, v85, s[14:15] sc1")
    A.label("L_nofl")
    afrags([2, 3, 7])
    if opt.sent:
        A("s_cmp_eq_u32 s94, 1")
        A("s_cbranch_scc1 L_hwait")
    A("s_cmp_lg_u32 s30, 0")
    A("s_cbranch_scc1 L_hwait")
    A("s_mov_b32 s46, 0x100000")
    A("s_branch L_hchk")
    A.label("L_hspin")
    A("global_load_dword v87, v85, s[14:15] sc1")
    A.label("L_hchk")
    A("s_waitcnt vmcnt(0)")
    A("v_cmp_eq_u32 vcc, s47, v87")
    A("s_sub_u32 s46, s46, 1")
    A("s_cmp_eq_u32 s46, 0")
    A("s_cbranch_scc1 L_hwait")
    A("s_cmp_eq_u64 vcc, -1")
    A("s_cbranch_scc0 L_hspin")
    A.label("L_hwait")
    if opt.sent:
        A("s_cmp_eq_u32 s94, 1")
        A("s_cbranch_scc1 L_hfl")
    A("s_waitcnt lgkmcnt(0)")
    gbar(A, opt)
    dstamp(A, 57, opt)
    stamp(A, 4, opt)
    g = guard_begin(A, opt)
    A(f"buffer_load_dwordx4 {vr(16)}, v4, s[24:27], s88 offen {opt.hload}")
    A(f"buffer_load_dwordx4 {vr(20)}, v4, s[24:27], s91 offen {opt.hload}")
    A(f"buffer_load_dwordx4 {vr(24)}, v4, s[24:27], s89 offen {opt.hload}")
    A(f"buffer_load_dwordx4 {vr(28)}, v4, s[24:27], s92 offen {opt.hload}")
    guard_end(A, g)
    if opt.sent:
        A("s_branch L_gate")
        A.label("L_hfl")
        stamp(A, 4, opt)
        A("s_movk_i32 s46, 0x4000")
        A.label("L_hfspin")
        A(f"buffer_load_dwordx4 {vr(16)}, v4, s[24:27], s88 offen {opt.hload}")
        A(f"buffer_load_dwordx4 {vr(20)}, v4, s[24:27], s91 offen {opt.hload}")
        A(f"buffer_load_dwordx4 {vr(24)}, v4, s[24:27], s89 offen {opt.hload}")
        A(f"buffer_load_dwordx4 {vr(28)}, v4, s[24:27], s92 offen {opt.hload}")
        A("s_waitcnt vmcnt(0)")
        A("v_max3_u32 v32, v16, v17, v18")
        A("v_max3_u32 v33, v19, v20, v21")
        A("v_max3_u32 v34, v22, v23, v24")
        A("v_max3_u32 v35, v25, v26, v27")
        A("v_max3_u32 v32, v32, v28, v29")
        A("v_max3_u32 v33, v33, v30, v31")
        A("v_max3_u32 v32, v32, v33, v34")
        A("v_max_u32 v32, v32, v35")
        A("v_cmp_eq_u32 vcc, -1, v32")
        A("s_sub_u32 s46, s46, 1")
        A("s_cmp_eq_u32 s46, 0")
        A("s_cbranch_scc1 L_gate")
        A("s_cbranch_vccnz L_hfspin")
        A.label("L_gate")
    for half in range(2):
        A(f"s_waitcnt vmcnt({2 if half == 0 else 0})")
        dstamp(A, 58 + half, opt)
        fb, gb = 16 + 8 * half, 20 + 8 * half
        zb = 32 + 4 * half
        for d0 in range(0, 4, 2):
            TT = [(40, d0), (52, d0 + 1)]
            for t, d in TT:
                A(f"v_lshlrev_b32 v{t}, 16, v{fb+d}"); A(f"v_and_b32 v{t+1}, s36, v{fb+d}")
                A(f"v_lshlrev_b32 v{t+2}, 16, v{gb+d}"); A(f"v_and_b32 v{t+3}, s36, v{gb+d}")
            for t, d in TT:
                A(f"v_pk_mul_f32 {vr(t,2)}, {vr(t,2)}, s[48:49]")
                A(f"v_pk_mul_f32 {vr(t+2,2)}, {vr(t+2,2)}, s[50:51]")
            for t, d in TT:
                A(f"v_med3_f32 v{t}, v{t}, s43, v14"); A(f"v_med3_f32 v{t+1}, v{t+1}, s43, v14")
            for t, d in TT:
                A(f"v_exp_f32 v{t+2}, v{t+2}"); A(f"v_exp_f32 v{t+3}, v{t+3}")
            for t, d in TT:
                A(f"v_exp_f32 v{t}, v{t}"); A(f"v_exp_f32 v{t+1}, v{t+1}")
            for t, d in TT:
                A(f"v_pk_add_f32 {vr(t+2,2)}, {vr(t+2,2)}, s[52:53]")
            for t, d in TT:
                A(f"v_pk_add_f32 {vr(t+4,2)}, {vr(t,2)}, s[52:53]")
                A(f"v_pk_add_f32 {vr(t,2)}, {vr(t,2)}, s[52:53] neg_lo:[1,0] neg_hi:[1,0]")
            for t, d in TT:
                A(f"v_pk_mul_f32 {vr(t+4,2)}, {vr(t+4,2)}, {vr(t+2,2)}")
            for t, d in TT:
                A(f"v_rcp_f32 v{t+4}, v{t+4}"); A(f"v_rcp_f32 v{t+5}, v{t+5}")
            A("s_nop 0")
            for t, d in TT:
                A(f"v_pk_mul_f32 {vr(t,2)}, {vr(t,2)}, {vr(t+4,2)}")
            for t, d in TT:
                A(f"v_cvt_pk_bf16_f32 v{zb+d}, v{t}, v{t+1}")
        A(f"ds_write_b128 v9, {vr(zb)} offset:{256*half}")
    A("s_waitcnt lgkmcnt(0)")
    dstamp(A, 60, opt)
    gbar(A, opt)
    dstamp(A, 61, opt)
    tr = LdsTracker()
    AF = 128
    ACC2 = 64
    BF = 192
    ops = []
    for kap in range(8):
        for tau in range(2):
            d = BF + 8 * (kap % 4) + 4 * tau
            if kap < 4: ops.append(("lds", f"ds_read_b128 {vr(d)}, v11 offset:{tau*16*ZP + kap*64}", rng(d, 4), []))
    for kap in range(8):
        for hf in range(2):
            for tau in range(2):
                acc = ACC2 + 4 * (2 * tau + hf)
                af = AF + 8 * kap + 4 * hf
                bf = BF + 8 * (kap % 4) + 4 * tau
                c = vr(acc) if kap > 0 else "0"
                ops.append(("mfma", f"v_mfma_f32_16x16x32_bf16 {vr(acc)}, {vr(af)}, {vr(bf)}, {c}", [], rng(bf, 4)))
        if kap < 4:
            for tau in range(2):
                d = BF + 8 * (kap % 4) + 4 * tau
                ops.append(("lds", f"ds_read_b128 {vr(d)}, v11 offset:{tau*16*ZP + (kap+4)*64}", rng(d, 4), []))
    emit_with_waits(A, ops, tr)
    A("s_nop 7")
    A("s_nop 1")
    dstamp(A, 62, opt)
    for tau in range(2):
        a_ = ACC2 + 8 * tau
        t = 16 + 4 * tau
        A(f"v_cvt_pk_bf16_f32 v{t}, v{a_}, v{a_+1}")
        A(f"v_cvt_pk_bf16_f32 v{t+1}, v{a_+2}, v{a_+3}")
        A(f"v_cvt_pk_bf16_f32 v{t+2}, v{a_+4}, v{a_+5}")
        A(f"v_cvt_pk_bf16_f32 v{t+3}, v{a_+6}, v{a_+7}")
    if opt.tdry: A("s_cbranch_execz L_tdry_ret")
    for tau in range(2):
        t = 16 + 4 * tau
        A(f"buffer_store_dwordx4 {vr(t)}, v8, s[96:99], 0 offen offset:{1024*tau} {opt.outflags}")
    if opt.stamps and not opt.dbgat:
        A("s_waitcnt vmcnt(0)")
        dstamp(A, 63, opt)
        stamp(A, 5, opt)
        A("s_waitcnt lgkmcnt(0)")
        if opt.dstamps:
            A("s_and_b32 s50, s30, 1")
            A("s_cmp_lg_u32 s50, 0")
            A("s_cbranch_scc1 L_nods")
            A("s_lshl_b32 s50, s2, 10")
            A("s_lshr_b32 s51, s30, 1")
            A("s_lshl_b32 s51, s51, 8")
            A("s_add_u32 s50, s50, s51")
            A(f"s_add_u32 s50, s50, {STAMP_OFF + 131072}")
            A("v_lshl_add_u32 v1, v5, 2, s50")
            A("global_store_dword v1, v245, s[14:15]")
            A.label("L_nods")
        if opt.cstamps:
            A("v_cmp_gt_u32 vcc, 16, v0")
            A("s_and_saveexec_b64 s[48:49], vcc")
            A("s_cbranch_execz L_nocs")
            A("s_lshl_b32 s50, s2, 6")
            A(f"s_add_u32 s50, s50, {STAMP_OFF + 65536}")
            A("v_lshl_add_u32 v1, v0, 2, s50")
            A("global_store_dword v1, v244, s[14:15]")
            A.label("L_nocs")
            A("s_mov_b64 exec, s[48:49]")
        A("v_cmp_eq_u32 vcc, 0, v0")
        A("s_and_saveexec_b64 s[48:49], vcc")
        A("s_cbranch_execz L_end")
        A("s_lshl_b32 s50, s2, 6")
        A(f"s_add_u32 s50, s50, {STAMP_OFF}")
        A("v_mov_b32 v1, s50")
        order = [60, 61, 80, 81, 62, 63, 82, 83, 64, 65, 68, 69, 66, 70, 76, 77] if opt.looprt else [60, 61, 80, 81, 62, 63, 82, 83, 64, 65, 68, 69, 72, 73, 76, 77]
        for i in range(0, 16, 4):
            for k in range(4): A(f"v_mov_b32 v{4+k}, s{order[i+k]}")
            A(f"global_store_dwordx4 v1, v[4:7], s[14:15] offset:{i*4}")
            A("s_nop 1")
    if opt.dbgat:
        A("s_waitcnt vmcnt(0)")
        stamp(A, 5, opt)
        A("s_waitcnt lgkmcnt(0)")
        A("v_cmp_eq_u32 vcc, 0, v0")
        A("s_and_saveexec_b64 s[48:49], vcc")
        A("s_cbranch_execz L_end")
        A("v_mov_b32 v1, 0")
        def amax(word, expr):
            for l in expr: A(l)
            A("v_mov_b32 v2, s50")
            A(f"global_atomic_umax v1, v2, s[12:13] offset:{4*word}")
        amax(4, ["s_mov_b32 s50, s82"])
        amax(5, ["s_not_b32 s50, s62"])
        amax(6, ["s_sub_u32 s50, s80, s60"])
        amax(7, ["s_sub_u32 s50, s64, s60"])
        amax(8, ["s_sub_u32 s50, s68, s60"])
        amax(9, ["s_sub_u32 s50, s72, s60"])
        amax(10, ["s_sub_u32 s50, s76, s60"])
        amax(11, ["s_sub_u32 s50, s82, s62"])
        A("s_waitcnt vmcnt(0)")
    A.label("L_end")
    A("s_endpgm")
    return A.text()


ST2 = "wavenet_stage2_kernel"
def map_ids(A, opt):
    if opt.map == "n8":
        A("s_and_b32 s28, s2, 7"); A("s_lshr_b32 s29, s2, 3")
    elif opt.map == "m4":
        for l in ["s_and_b32 s29, s2, 7", "s_lshl_b32 s29, s29, 2", "s_lshr_b32 s28, s2, 3", "s_lshr_b32 s35, s28, 3",
                  "s_add_u32 s29, s29, s35", "s_and_b32 s28, s28, 7"]: A(l)
    else:
        for l in ["s_lshr_b32 s35, s2, 3", "s_and_b32 s28, s2, 1", "s_lshl_b32 s28, s28, 2", "s_and_b32 s29, s35, 3",
                  "s_add_u32 s28, s28, s29", "s_lshr_b32 s29, s2, 1", "s_and_b32 s29, s29, 3", "s_lshl_b32 s29, s29, 3",
                  "s_lshr_b32 s35, s35, 2", "s_add_u32 s29, s29, s35"]: A(l)

def gating(A):
    A("v_mov_b32 v14, 0xc2700000")
    for half in range(2):
        fb, gb = 16 + 8 * half, 20 + 8 * half
        zb = 32 + 4 * half
        yield half
        for d0 in range(0, 4, 2):
            TT = [(40, d0), (52, d0 + 1)]
            for t, d in TT:
                A(f"v_lshlrev_b32 v{t}, 16, v{fb+d}"); A(f"v_and_b32 v{t+1}, s36, v{fb+d}")
                A(f"v_lshlrev_b32 v{t+2}, 16, v{gb+d}"); A(f"v_and_b32 v{t+3}, s36, v{gb+d}")
            for t, d in TT:
                A(f"v_pk_mul_f32 {vr(t,2)}, {vr(t,2)}, s[48:49]")
                A(f"v_pk_mul_f32 {vr(t+2,2)}, {vr(t+2,2)}, s[50:51]")
            for t, d in TT:
                A(f"v_med3_f32 v{t}, v{t}, s43, v14"); A(f"v_med3_f32 v{t+1}, v{t+1}, s43, v14")
            for t, d in TT:
                A(f"v_exp_f32 v{t+2}, v{t+2}"); A(f"v_exp_f32 v{t+3}, v{t+3}")
            for t, d in TT:
                A(f"v_exp_f32 v{t}, v{t}"); A(f"v_exp_f32 v{t+1}, v{t+1}")
            for t, d in TT:
                A(f"v_pk_add_f32 {vr(t+2,2)}, {vr(t+2,2)}, s[52:53]")
            for t, d in TT:
                A(f"v_pk_add_f32 {vr(t+4,2)}, {vr(t,2)}, s[52:53]")
                A(f"v_pk_add_f32 {vr(t,2)}, {vr(t,2)}, s[52:53] neg_lo:[1,0] neg_hi:[1,0]")
            for t, d in TT:
                A(f"v_pk_mul_f32 {vr(t+4,2)}, {vr(t+4,2)}, {vr(t+2,2)}")
            for t, d in TT:
                A(f"v_rcp_f32 v{t+4}, v{t+4}"); A(f"v_rcp_f32 v{t+5}, v{t+5}")
            A("s_nop 0")
            for t, d in TT:
                A(f"v_pk_mul_f32 {vr(t,2)}, {vr(t,2)}, {vr(t+4,2)}")
            for t, d in TT:
                A(f"v_cvt_pk_bf16_f32 v{zb+d}, v{t}, v{t+1}")
        A(f"ds_write_b128 v9, {vr(zb)} offset:{256*half}")

def gen_stage2(opt):
    A = Asm()
    A.raw(f".globl {ST2}\n.p2align 8\n.type {ST2},@function\n{ST2}:")
    A("s_cmp_ge_u32 s2, 256")
    A("s_cbranch_scc1 L2_end")
    A("s_load_dwordx4 s[8:11], s[0:1], 16")
    A("s_load_dwordx2 s[14:15], s[0:1], 40")
    A("v_lshrrev_b32 v1, 6, v0")
    A("v_and_b32 v5, 63, v0")
    map_ids(A, opt)
    A("v_readfirstlane_b32 s30, v1")
    A("s_and_b32 s31, s29, 7")
    A("s_lshl_b32 s31, s31, 7")
    A("s_lshr_b32 s32, s29, 3")
    A("s_and_b32 s33, s32, 1")
    A("s_lshr_b32 s34, s32, 1")
    A("s_mul_i32 s35, s34, 2048000")
    A("s_mov_b32 s36, 0xffff0000")
    A("v_lshrrev_b32 v2, 4, v0")
    A("v_and_b32 v3, 15, v0")
    A("v_lshrrev_b32 v4, 3, v3")
    A("v_lshlrev_b32 v4, 12, v4")
    A("v_lshl_add_u32 v4, v2, 7, v4")
    A("v_and_b32 v14, 7, v3")
    A("v_lshl_add_u32 v4, v14, 4, v4")
    A("s_lshl_b32 s39, s29, 18")
    A("s_lshl_b32 s40, s28, 15")
    A("s_add_u32 s39, s39, s40")
    A("s_add_u32 s40, s39, 8192")
    A("s_add_u32 s41, s39, 16384")
    A("s_add_u32 s42, s39, 24576")
    A("v_lshrrev_b32 v12, 5, v5")
    A("s_and_b32 s44, s30, 1")
    A("s_lshl_b32 s44, s44, 1")
    A("v_add_u32 v13, s44, v12")
    A("v_lshlrev_b32 v13, 2, v13")
    A("v_and_b32 v15, 31, v5")
    A("v_xor_b32 v15, v15, v13")
    A("v_lshlrev_b32 v15, 4, v15")
    A("v_lshl_add_u32 v15, v12, 9, v15")
    A("s_lshl_b32 s56, s30, 10")
    A("s_waitcnt lgkmcnt(0)")
    for l in ["s_mov_b32 s24, s14", "s_mov_b32 s25, s15", f"s_mov_b32 s26, {WS_BYTES}", "s_mov_b32 s27, 0x20000"]: A(l)
    A(f"buffer_load_dwordx4 {vr(16)}, v4, s[24:27], s39 offen")
    A(f"buffer_load_dwordx4 {vr(20)}, v4, s[24:27], s41 offen")
    A(f"buffer_load_dwordx4 {vr(24)}, v4, s[24:27], s40 offen")
    A(f"buffer_load_dwordx4 {vr(28)}, v4, s[24:27], s42 offen")
    for l in ["s_mov_b32 s52, s8", "s_mov_b32 s53, s9", "s_mov_b32 s54, 131072", "s_mov_b32 s55, 0x20000"]: A(l)
    for k in range(16):
        A(f"s_add_u32 m0, s56, {k*8192}")
        A(f"s_add_u32 s45, s56, {k*8192}")
        A("buffer_load_dwordx4 v15, s[52:55], s45 offen lds")
    A("s_add_u32 s20, s10, s35")
    A("s_addc_u32 s21, s11, 0")
    A("s_mov_b32 s22, 2048000")
    A("s_mov_b32 s23, 0x20000")
    A("v_and_b32 v6, 15, v5")
    A("v_lshrrev_b32 v7, 4, v5")
    A("v_lshrrev_b32 v8, 2, v6")
    A("v_and_b32 v13, 3, v6")
    A("s_lshl_b32 s44, s30, 2")
    A("v_add_u32 v10, s44, v13")
    A("v_lshlrev_b32 v11, 2, v8")
    A("v_xor_b32 v10, v10, v11")
    A("v_lshlrev_b32 v10, 4, v10")
    A("v_lshl_add_u32 v11, v7, 3, v8")
    A("v_lshl_add_u32 v10, v11, 9, v10")
    A("v_add_u32 v12, 0x10000, v10")
    A("s_mov_b32 s48, 0xc038aa3b"); A("s_mov_b32 s49, 0xc038aa3b")
    A("s_mov_b32 s50, 0xbfb8aa3b"); A("s_mov_b32 s51, 0xbfb8aa3b")
    A("s_mov_b32 s58, 1.0"); A("s_mov_b32 s59, 1.0")
    A("s_mov_b32 s43, 0x42700000")
    A(f"v_mul_u32_u24 v9, {ZP}, v2")
    A("v_lshl_add_u32 v9, v3, 4, v9")
    A(f"v_add_u32 v9, {HST}, v9")
    A(f"v_mul_u32_u24 v11, {ZP}, v6")
    A("v_lshl_add_u32 v11, v7, 4, v11")
    A(f"v_add_u32 v11, {HST}, v11")
    A("v_lshlrev_b32 v8, 3, v6")
    A("s_add_u32 s44, s31, s28")
    A("v_add_u32 v8, s44, v8")
    A("v_lshlrev_b32 v8, 11, v8")
    A("s_lshl_b32 s44, s33, 9")
    A("s_lshl_b32 s45, s30, 6")
    A("s_add_u32 s44, s44, s45")
    A("v_add_u32 v8, s44, v8")
    A("v_lshl_add_u32 v8, v7, 4, v8")
    B = Asm()
    for half in gating(B):
        B(f"s_waitcnt vmcnt({18 if half == 0 else 16})")
    A.lines += [l.replace("s[52:53]", "s[58:59]") for l in B.lines]
    A("s_waitcnt vmcnt(0) lgkmcnt(0)")
    A("s_barrier")
    AF, BF, ACC2 = 64, 128, 160
    tr = LdsTracker()
    ops = []
    def rdA(kap):
        o = []
        for hf in range(2):
            off = kap * 32 * 512 + 8 * hf
            areg = 10 if kap < 4 else 12
            off -= 0 if kap < 4 else 65536
            d = AF + 8 * kap + 4 * hf
            o.append(("lds", f"ds_read_b64_tr_b16 {vr(d,2)}, v{areg} offset:{off}", rng(d, 2), []))
            o.append(("lds", f"ds_read_b64_tr_b16 {vr(d+2,2)}, v{areg} offset:{off+2048}", rng(d+2, 2), []))
        for tau in range(2):
            d = BF + 8 * (kap % 4) + 4 * tau
            o.append(("lds", f"ds_read_b128 {vr(d)}, v11 offset:{tau*16*ZP + kap*64}", rng(d, 4), []))
        return o
    ops += rdA(0) + rdA(1)
    for kap in range(8):
        if kap + 2 < 8: ops += rdA(kap + 2)
        for hf in range(2):
            for tau in range(2):
                acc = ACC2 + 4 * (2 * tau + hf)
                af = AF + 8 * kap + 4 * hf
                bf = BF + 8 * (kap % 4) + 4 * tau
                c = vr(acc) if kap > 0 else "0"
                ops.append(("mfma", f"v_mfma_f32_16x16x32_bf16 {vr(acc)}, {vr(af)}, {vr(bf)}, {c}", [], rng(bf, 4) + rng(af, 4)))
    emit_with_waits(A, ops, tr)
    A("s_nop 7"); A("s_nop 1")
    for tau in range(2):
        a_ = ACC2 + 8 * tau
        t = 16 + 4 * tau
        A(f"v_cvt_pk_bf16_f32 v{t}, v{a_}, v{a_+1}")
        A(f"v_cvt_pk_bf16_f32 v{t+1}, v{a_+2}, v{a_+3}")
        A(f"v_cvt_pk_bf16_f32 v{t+2}, v{a_+4}, v{a_+5}")
        A(f"v_cvt_pk_bf16_f32 v{t+3}, v{a_+6}, v{a_+7}")
        A(f"buffer_store_dwordx4 {vr(t)}, v8, s[20:23], 0 offen offset:{1024*tau} {opt.outflags}")
    A.label("L2_end")
    A("s_endpgm")
    return A.text()

def kd(name, nv, ns=102):
    return f""".amdhsa_kernel {name}
  .amdhsa_next_free_vgpr {nv}
  .amdhsa_next_free_sgpr {ns}
  .amdhsa_accum_offset {(nv + 3) // 4 * 4}
  .amdhsa_group_segment_fixed_size 0
  .amdhsa_kernarg_size 48
  .amdhsa_user_sgpr_count 2
  .amdhsa_user_sgpr_kernarg_segment_ptr 1
  .amdhsa_system_sgpr_workgroup_id_x 1
.end_amdhsa_kernel
"""

HEADER = """; Kernarg layout for this problem (48 bytes, ptrs only, base s[0:1]):
;
"""

def main():
    ap = argparse.ArgumentParser()
    ap.add_argument("-o", default="standalone__autoregressive_conv_wavenet__speech.s")
    ap.add_argument("--stamps", action="store_true")
    ap.add_argument("--cap", type=int, default=2)
    ap.add_argument("--outflags", default="nt")
    ap.add_argument("--cstamps", action="store_true")
    ap.add_argument("--dstamps", action="store_true")
    ap.add_argument("--xplain", action="store_true")
    ap.add_argument("--align", action="store_true")
    ap.add_argument("--no-prefetch", dest="prefetch", action="store_false")
    ap.add_argument("--pf_a", type=int, default=3)
    ap.add_argument("--st0", type=int, default=0)
    ap.add_argument("--nwin", type=int, default=3)
    ap.add_argument("--w_early", type=int, default=4)
    ap.add_argument("--map", default="m4")
    ap.add_argument("--sig_a", type=int, default=11)
    ap.add_argument("--poll_a", type=int, default=16)
    ap.add_argument("--wo_gaps", type=lambda s: [int(x) for x in s.split(",")], default=[9, 10])
    ap.add_argument("--we_gaps", type=lambda s: [int(x) for x in s.split(",")], default=[17, 18])
    ap.add_argument("--bar_after", type=int, default=1)
    ap.add_argument("--e64", action="store_true")
    ap.add_argument("--novalu", action="store_true")
    ap.add_argument("--sent", action="store_true")
    ap.add_argument("--st128", action="store_true")
    ap.add_argument("--late", action="store_true")
    ap.add_argument("--v0a", type=int, default=0)
    ap.add_argument("--whelp", action="store_true")
    ap.add_argument("--no-pf0", dest="pf0", action="store_false")
    ap.add_argument("--ldsalone", action="store_true")
    ap.add_argument("--g0free", action="store_true")
    ap.add_argument("--no-onewait", dest="onewait", action="store_false")
    ap.add_argument("--vstart", type=int, default=0)
    ap.add_argument("--looprt", action="store_true")
    ap.add_argument("--no-epk", dest="epk", action="store_false")
    ap.add_argument("--tdry", action="store_true")
    ap.add_argument("--dry", action="store_true")
    ap.add_argument("--otouch", type=int, default=0)
    ap.add_argument("--ptouch", action="store_true")
    ap.add_argument("--no-half2", dest="half2", action="store_false")
    ap.add_argument("--tailpf", type=int, default=-1)
    ap.add_argument("--hload", default="sc1")
    ap.add_argument("--fastflags", default="nt")
    ap.add_argument("--no-wtouch", dest="wtouch", action="store_false")
    ap.add_argument("--wt_a", type=lambda s: [int(x) for x in s.split(",")], default=[9, 14])
    ap.add_argument("--wt_it", type=int, default=2)
    ap.add_argument("--slowmode", action="store_true")
    ap.add_argument("--codepf", type=int, default=1)
    ap.add_argument("--split", action="store_true")
    ap.add_argument("--hflags", default="sc1")
    ap.add_argument("--dbgat", action="store_true")
    ap.add_argument("--dot2", action="store_true")
    ap.add_argument("--swap", action="store_true")
    opt = ap.parse_args()
    ONEWAIT[0] = opt.onewait
    WHELP[0] = opt.whelp
    E64[0] = opt.e64; NOVALU[0] = opt.novalu; DOT2[0] = opt.dot2; SWAP[0] = opt.swap
    m = gen_main(opt)
    out = HEADER
    if opt.split:
        out += f"; @launch kernel={MAIN} grid=(256,1,1) block=(512,1,1) lds={HST + 32768}\n"
        out += f"; @launch kernel={ST2} grid=(256,1,1) block=(512,1,1) lds={HST + 32*ZP}\n"
    else:
        out += f"; @launch grid=(256,1,1) block=(512,1,1) lds={LDS_TOTAL}\n"
    out += '.amdgcn_target "amdgcn-amd-amdhsa--gfx950"\n.text\n'
    out += m
    out += '.section .rodata,"a"\n.p2align 6\n' + kd(MAIN, 251 if opt.codepf else NV + (2 if (opt.cstamps or opt.dstamps) else 0))
    if opt.split: out += ".p2align 6\n" + kd(ST2, 176)
    open(opt.o, "w").write(out)

if __name__ == "__main__":
    main()
```
